```python
import torch

def _softmax(x, axis=-1):
    return torch.softmax(x, dim=axis)
def _gelu(x):
    return torch.nn.functional.gelu(x, approximate="tanh")
def _silu(x):
    return torch.nn.functional.silu(x)
def _sigmoid(x):
    return torch.sigmoid(x)
def _layernorm(x, axis=-1, eps=1e-5):
    m = x.mean(dim=axis, keepdim=True)
    v = x.var(dim=axis, keepdim=True, unbiased=False)
    return (x - m) / torch.sqrt(v + eps)
def _scatter_add(tgt, idx, src, axis=0):
    return tgt.clone().index_add_(axis, idx, src)
def _segment_sum(src, seg, n):
    out = torch.zeros((n,) + src.shape[1:], dtype=src.dtype)
    return out.index_add_(0, seg, src)
def _pad(x, pw):
    flat = tuple(v for pair in reversed(pw) for v in pair)
    return torch.nn.functional.pad(x, flat)

kernel_name = 'concat_heads__mha_block_cached__gqa_block_cached__near_ridge'

def setup_inputs():

    _w = (lambda a: (lambda t: t.to(torch.bfloat16) if t.is_floating_point() else t)(torch.as_tensor(a)))
    def _A_setup():
        B, Sq, D = 16, 112, 576
        H, Sk, Dh = 32, 512, 128
        return {
            "x": _w((lambda *s: torch.randn(*s, dtype=torch.bfloat16) * 0.8)(B, Sq, D)),
            "k_cache": _w((lambda *s: torch.randn(*s, dtype=torch.bfloat16) * 0.8)(B, H, Sk, Dh)),
            "v_cache": _w((lambda *s: torch.randn(*s, dtype=torch.bfloat16) * 0.05)(B, H, Sk, Dh)),
            "wq": _w((lambda *s: torch.randn(*s, dtype=torch.bfloat16) * 0.8)(D, H * Dh) * (D ** -0.5)),
            "wo": _w((lambda *s: torch.randn(*s, dtype=torch.bfloat16) * 0.05)(H * Dh, D) * ((H * Dh) ** -0.5)),
        }
    _A_in = _A_setup()

    def _B_setup():
        B, Sq, D = 16, 112, 576
        Hq, Hkv, Sk, Dh = 32, 32, 512, 128
        assert Hq % Hkv == 0, (Hq, Hkv)
        return {
            "x": _w((lambda *s: torch.randn(*s, dtype=torch.bfloat16) * 0.8)(B, Sq, D)),
            "k_cache": _w((lambda *s: torch.randn(*s, dtype=torch.bfloat16) * 0.8)(B, Hkv, Sk, Dh)),
            "v_cache": _w((lambda *s: torch.randn(*s, dtype=torch.bfloat16) * 0.05)(B, Hkv, Sk, Dh)),
            "wq": _w((lambda *s: torch.randn(*s, dtype=torch.bfloat16) * 0.8)(D, Hq * Dh) * (D ** -0.5)),
            "wo": _w((lambda *s: torch.randn(*s, dtype=torch.bfloat16) * 0.05)(Hq * Dh, D) * ((Hq * Dh) ** -0.5)),
        }
    _B_in = _B_setup()

    return {
        "A_x": _A_in["x"],
        "A_k_cache": _A_in["k_cache"],
        "A_v_cache": _A_in["v_cache"],
        "A_wq": _A_in["wq"],
        "A_wo": _A_in["wo"],
        "B_x": _B_in["x"],
        "B_k_cache": _B_in["k_cache"],
        "B_v_cache": _B_in["v_cache"],
        "B_wq": _B_in["wq"],
        "B_wo": _B_in["wo"],
    }

def reference(A_x, A_k_cache, A_v_cache, A_wq, A_wo, B_x, B_k_cache, B_v_cache, B_wq, B_wo):
    def _A_ref(x, k_cache, v_cache, wq, wo):
        B, Sq, D = x.shape
        H, Dh = 32, 128
        q = (lambda x, *d: x.permute(*d))((x @ wq).reshape(B, Sq, H, Dh), 0, 2, 1, 3)
        scores = torch.einsum("bhqd,bhkd->bhqk", q, k_cache) * (Dh ** -0.5)
        p = _softmax(scores, axis=-1)
        o = torch.einsum("bhqk,bhkd->bhqd", p, v_cache)
        return (lambda x, *d: x.permute(*d))(o, 0, 2, 1, 3).reshape(B, Sq, H * Dh) @ wo

    def _B_ref(x, k_cache, v_cache, wq, wo):
        B, Sq, D = x.shape
        Hq, Dh = 32, 128
        Hkv = k_cache.shape[1]
        rep = Hq // Hkv
        q = (lambda x, *d: x.permute(*d))((x @ wq).reshape(B, Sq, Hq, Dh), 0, 2, 1, 3)
        k = (lambda x, n, axis: torch.repeat_interleave(x, n, dim=axis))(k_cache, rep, axis=1)
        v = (lambda x, n, axis: torch.repeat_interleave(x, n, dim=axis))(v_cache, rep, axis=1)
        scores = torch.einsum("bhqd,bhkd->bhqk", q, k) * (Dh ** -0.5)
        p = _softmax(scores, axis=-1)
        o = torch.einsum("bhqk,bhkd->bhqd", p, v)
        return (lambda x, *d: x.permute(*d))(o, 0, 2, 1, 3).reshape(B, Sq, Hq * Dh) @ wo

    a = _A_ref(A_x, A_k_cache, A_v_cache, A_wq, A_wo)
    b = _B_ref(B_x, B_k_cache, B_v_cache, B_wq, B_wo)
    return torch.concatenate([a, b], axis=-1)
```

```python
KN = "concat_heads__mha_block_cached__gqa_block_cached__near_ridge_kernel"

def header(launches):
    s = []
    if len(launches) == 1 and launches[0][0] == KN:
        k, g, b, l = launches[0]
        s.append(f"; @launch grid=({g[0]},{g[1]},{g[2]}) block=({b[0]},{b[1]},{b[2]}) lds={l}")
    else:
        for k, g, b, l in launches:
            s.append(f"; @launch kernel={k} grid=({g[0]},{g[1]},{g[2]}) block=({b[0]},{b[1]},{b[2]}) lds={l}")
    s.append('.amdgcn_target "amdgcn-amd-amdhsa--gfx950"')
    s.append(".text")
    return "\n".join(s) + "\n"

def kstart(name):
    return f".globl {name}\n.p2align 8\n.type {name},@function\n{name}:\n"

def kdesc(name, vgpr, sgpr=102, accum=None, wg_y=False):
    if accum is None:
        accum = min(256, (vgpr + 3) // 4 * 4)
    s = f""".section .rodata,"a"
.p2align 6
.amdhsa_kernel {name}
  .amdhsa_next_free_vgpr {vgpr}
  .amdhsa_next_free_sgpr {sgpr}
  .amdhsa_accum_offset {accum}
  .amdhsa_group_segment_fixed_size 0
  .amdhsa_kernarg_size 104
  .amdhsa_user_sgpr_count 2
  .amdhsa_user_sgpr_kernarg_segment_ptr 1
  .amdhsa_system_sgpr_workgroup_id_x 1
"""
    if wg_y:
        s += "  .amdhsa_system_sgpr_workgroup_id_y 1\n"
    s += ".end_amdhsa_kernel\n.text\n"
    return s
```

```python
import re

class I:
    __slots__ = ("text", "kind", "rd", "wr", "cost", "tag", "comment")
    def __init__(self, text, kind, rd=(), wr=(), cost=4, tag=None):
        self.text = text; self.kind = kind
        self.rd = frozenset(rd); self.wr = frozenset(wr)
        self.cost = cost; self.tag = tag
    def __repr__(self): return self.text

def R(p, lo, n=1):
    return [(p, lo + i) for i in range(n)]

def rs(p, lo, n):
    if n == 1: return f"{p}{lo}"
    return f"{p}[{lo}:{lo+n-1}]"

def parse_regs(op):
    op = op.strip()
    neg = op.lstrip("-")
    if neg.startswith("abs(") and neg.endswith(")"): neg = neg[4:-1]
    m = re.fullmatch(r"([vas])(\d+)", neg)
    if m: return [(m.group(1), int(m.group(2)))]
    m = re.fullmatch(r"([vas])\[(\d+):(\d+)\]", neg)
    if m: return [(m.group(1), i) for i in range(int(m.group(2)), int(m.group(3)) + 1)]
    if neg == "vcc": return [("s", 106), ("s", 107)]
    if neg == "m0": return [("s", 124)]
    if neg == "exec": return [("s", 126), ("s", 127)]
    if neg == "scc": return [("scc", 0)]
    return []

TRANS = ("v_exp_f32", "v_log_f32", "v_rcp_f32", "v_rsq_f32", "v_sqrt_f32")

def valu(op, dst, *srcs, extra=""):
    rd = []
    for s in srcs: rd += parse_regs(str(s))
    wr = parse_regs(dst)
    kind = "trans" if op in TRANS else "valu"
    if op.startswith("v_permlane"):
        kind = "permlane"; rd += wr; wr = wr + parse_regs(srcs[0])
    if op in ("v_fmac_f32",): rd += wr
    if op.startswith("v_cmp"): kind = "valu"
    if op == "v_readfirstlane_b32": kind = "readlane"
    text = f"{op} {dst}, " + ", ".join(str(s) for s in srcs) + (" " + extra if extra else "")
    return I(text, kind, rd, wr, cost=8 if kind == "trans" else 4)

def salu(op, dst, *srcs):
    rd = []
    for s in srcs: rd += parse_regs(str(s))
    wr = parse_regs(dst) if dst is not None else []
    if op.startswith("s_cmp") or op in ("s_add_u32", "s_sub_u32", "s_addc_u32", "s_lshl_b32", "s_lshr_b32", "s_and_b32", "s_or_b32", "s_and_b64", "s_or_b64", "s_xor_b32", "s_bitcmp1_b32"):
        wr = wr + [("scc", 0)]
    if op in ("s_cselect_b32", "s_addc_u32", "s_cselect_b64"): rd.append(("scc", 0))
    ops = ([dst] if dst is not None else []) + [str(s) for s in srcs]
    return I(f"{op} " + ", ".join(ops), "salu", rd, wr)

def mfma(d, a, b, c):
    cs = str(c)
    rd = parse_regs(a) + parse_regs(b) + parse_regs(cs)
    i = I(f"v_mfma_f32_32x32x16_bf16 {d}, {a}, {b}, {cs}", "mfma", rd, parse_regs(d), cost=8)
    i.tag = (tuple(parse_regs(a)), tuple(parse_regs(b)), tuple(parse_regs(cs)), tuple(parse_regs(d)))
    return i

def ds_read(kind, dst, addr, off):
    op = {"b128": "ds_read_b128", "tr": "ds_read_b64_tr_b16", "b32": "ds_read_b32", "b64": "ds_read_b64"}[kind]
    assert 0 <= off < 65536, off
    return I(f"{op} {dst}, {addr} offset:{off}", "lds", parse_regs(addr), parse_regs(dst))

def ds_write(kind, addr, src, off):
    op = {"b128": "ds_write_b128", "b32": "ds_write_b32", "b64": "ds_write_b64"}[kind]
    return I(f"{op} {addr}, {src} offset:{off}", "lds", parse_regs(addr) + parse_regs(src), [])

def dma(voff, srd, soff, imm, nt=False):
    assert 0 <= imm < 4096
    return I(f"buffer_load_dwordx4 {voff}, {srd}, {soff} offen offset:{imm}{' nt' if nt else ''} lds", "vmem",
             parse_regs(voff) + parse_regs(srd) + parse_regs(str(soff)) + [("s", 124)], [])

def bload(n, dst, voff, srd, soff, imm, flags=""):
    op = {1: "buffer_load_dword", 2: "buffer_load_dwordx2", 4: "buffer_load_dwordx4"}[n]
    return I(f"{op} {dst}, {voff}, {srd}, {soff} offen offset:{imm}{flags}", "vmem",
             parse_regs(voff) + parse_regs(srd) + parse_regs(str(soff)), parse_regs(dst))

def bstore(n, src, voff, srd, soff, imm, flags=""):
    op = {1: "buffer_store_dword", 2: "buffer_store_dwordx2", 4: "buffer_store_dwordx4"}[n]
    i = I(f"{op} {src}, {voff}, {srd}, {soff} offen offset:{imm}{flags}", "vstore",
          parse_regs(src) + parse_regs(voff) + parse_regs(srd) + parse_regs(str(soff)), [])
    i.tag = tuple(parse_regs(src))
    return i

def wait(vm=None, lgkm=None):
    p = []
    if vm is not None:
        assert 0 <= vm <= 63, vm
        p.append(f"vmcnt({vm})")
    if lgkm is not None:
        assert 0 <= lgkm <= 15, lgkm
        p.append(f"lgkmcnt({lgkm})")
    return I("s_waitcnt " + " ".join(p), "wait")

def nop(n):
    i = I(f"s_nop {n}", "nop"); i.cost = 4 * (n + 1); i.tag = n + 1
    return i
def barrier(): return I("s_barrier", "barrier")
def raw(text, kind="raw", rd=(), wr=()): return I(text, kind, rd, wr)
def label(name): return I(f"{name}:", "label", cost=0)
def comment(t): return I(f"; {t}", "comment", cost=0)

def check_hazards(seq, name=""):
    probs = []
    pos = 0
    last_valu_w = {}
    last_trans_w = {}
    last_mfma_w = {}
    last_mfma_c = {}
    last_valu_sw = {}
    last_salu_m0 = -100
    last_store = {}
    for ins in seq:
        k = ins.kind
        if k in ("label", "comment"): continue
        def need(dist, have, what):
            if have < dist:
                probs.append(f"{name}: {what}: need {dist} have {have}: {ins.text}")
        isvalu = k in ("valu", "trans", "permlane", "readlane")
        if k == "mfma":
            a, b, c, d = ins.tag
            for r in a + b + c:
                if r in last_valu_w: need(2, pos - last_valu_w[r] - 1, f"VALU->MFMA src {r}")
            for r in a + b:
                if r in last_mfma_w: need(12, pos - last_mfma_w[r][0] - 1, f"MFMA D->MFMA A/B {r}")
            for r in c:
                if r in last_mfma_w:
                    p, D = last_mfma_w[r]
                    if D != c: need(10, pos - p - 1, f"MFMA D->C overlap {r}")
            for r in d:
                if r not in c and r in last_mfma_w:
                    need(10, pos - last_mfma_w[r][0] - 1, f"MFMA WAW {r}")
        else:
            for r in list(ins.rd) + list(ins.wr):
                if r in last_mfma_w and (isvalu or k in ("lds", "vmem", "vstore")):
                    need(12, pos - last_mfma_w[r][0] - 1, f"MFMA D->{k} {r}")
            if isvalu:
                for r in ins.wr:
                    if r in last_mfma_c: need(7, pos - last_mfma_c[r] - 1, f"MFMA C WAR {r}")
                    if r in last_store: need(2, pos - last_store[r] - 1, f"store data WAR {r}")
                for r in ins.rd:
                    if r in last_trans_w and k != "trans": need(1, pos - last_trans_w[r] - 1, f"trans->valu {r}")
                    if r[0] == "s" and r in last_valu_sw: need(2, pos - last_valu_sw[r] - 1, f"VALU sgpr->VALU read {r}")
            if k == "permlane":
                for r in ins.rd:
                    if r in last_valu_w: need(2, pos - last_valu_w[r] - 1, f"VALU->permlane {r}")
            if k == "readlane":
                for r in ins.rd:
                    if r in last_valu_w: need(1, pos - last_valu_w[r] - 1, f"VALU->readlane {r}")
            if k in ("vmem", "vstore"):
                for r in ins.rd:
                    if r[0] == "s" and r in last_valu_sw: need(5, pos - last_valu_sw[r] - 1, f"VALU sgpr->VMEM {r}")
                if k == "vmem" and "lds" in ins.text.split()[-1:]:
                    need(1, pos - last_salu_m0 - 1, "m0->DMA")
            if k == "lds":
                for r in ins.rd:
                    if r in last_trans_w: need(1, pos - last_trans_w[r] - 1, f"trans->lds {r}")
        if k == "mfma":
            a, b, c, d = ins.tag
            for r in d: last_mfma_w[r] = (pos, d); last_valu_w.pop(r, None); last_trans_w.pop(r, None)
            for r in c: last_mfma_c[r] = pos
        elif isvalu:
            for r in ins.wr:
                if r[0] == "s": last_valu_sw[r] = pos
                else:
                    last_valu_w[r] = pos; last_mfma_w.pop(r, None)
                    if k == "trans": last_trans_w[r] = pos
                    else: last_trans_w.pop(r, None)
        elif k == "salu":
            for r in ins.wr:
                if r == ("s", 124): last_salu_m0 = pos
                last_valu_sw.pop(r, None)
        elif k in ("lds", "vmem"):
            for r in ins.wr:
                last_valu_w.pop(r, None); last_mfma_w.pop(r, None); last_trans_w.pop(r, None)
        elif k == "vstore":
            if len(ins.tag) >= 3:
                for r in ins.tag: last_store[r] = pos
        pos += ins.tag if k == "nop" else 1
    return probs
```

```python
import sys, math
from asmlib import *
sys.path.insert(0, "work")
from gcommon import header, kstart, kdesc, KN

MAIN = "fa_main_kernel"
RED = "fa_reduce_kernel"

VBASE = 0
WQBASE = 32768
KBASE = 65536
OBASE = 98304
XBASE = 135168
LDS_TOTAL = 163840
OSLOT = 9216
XSLOT = 7168

V_T0, V_T1 = 1, 2
V_K = [3, 4, 5, 6]
V_X = [7, 8]
V_W = 9
V_D = [10, 11, 12, 13]
V_NEGM, V_L, V_TS = 14, 15, 16
V_TMP = [17, 18, 19, 20, 21, 22, 23]
V_P = 24
V_S = [32, 48]
V_OACC = 64
V_OUTX = 128
V_QF = 160
V_OF = 192
V_AF = 224
NB = 8

S_SRD0, S_SRD1, S_SRD2, S_SRDP = 40, 44, 48, 52
S_W, S_WL, S_R = 56, 57, 58
S_WL4096 = 59
S_A, S_B2, S_C = 60, 61, 62
S_X = [64, 65, 66, 67]
S_OM0 = 68
S_C2 = 69
S_CMP = 70
S_SCALE = 72
S_THR = 73
S_LOOP = 74
S_T = 76

SCALE = 1.4426950408889634 / math.sqrt(128.0)
import struct
def f32bits(x): return struct.unpack("<I", struct.pack("<f", x))[0]

def outacc(nt):
    return rs("a", 16 * nt, 16) if nt < 16 else rs("v", V_OUTX + 16 * (nt - 16), 16)

class Job:
    def __init__(self, epoch, mk, reads, fixed=()):
        self.epoch = epoch
        self.mk = mk
        self.reads = reads
        self.fixed = fixed
        self.ops = []
        self.buf = None
        self.pre = []

class Epoch:
    def __init__(self, name, needs):
        self.name = name
        self.needs = needs
        self.fill = []
        self.first = None

class FillQ:
    def __init__(self, items, start, end, maxper=None, rel=False):
        self.items = list(items); self.start = start; self.end = end; self.maxper = maxper; self.rel = rel; self.isdma = (maxper == 2)

class Prog:
    def __init__(self, role):
        self.role = role
        self.out = []
        self.vq = []
        self.lq = []
        self.nop_id = 0
        self.issued = set()
    def emit(self, ins):
        if isinstance(ins, list):
            for i in ins: self.emit(i)
            return
        if ins.kind == "vmem" and ins.text.endswith("lds") and self.out and ("s", 124) in self.out[-1].wr:
            self.out.append(nop(0))
        self.out.append(ins)
        if ins.kind in ("vmem", "vstore"):
            self.vq.append(ins.tag if ins.kind == "vmem" else "store")
            self.issued.add(ins.tag)
        if ins.kind == "lds":
            self.nop_id += 1
            self.lq.append(self.nop_id)
            return self.nop_id
    def vm_wait_for(self, tags):
        last = -1
        for i, t in enumerate(self.vq):
            if t in tags: last = i
        if last < 0: return None
        return len(self.vq) - 1 - last
    def do_wait(self, vm=None, lgkm=None):
        if vm is not None:
            vm = min(vm, 63)
            self.vq = self.vq[len(self.vq) - vm:] if vm < len(self.vq) else self.vq
            if vm == 0: self.vq = []
        if lgkm is not None:
            if lgkm == 0: self.lq = []
            elif lgkm < len(self.lq): self.lq = self.lq[len(self.lq) - lgkm:]
        self.emit(wait(vm, lgkm))

    def run_stream(self, jobs, LA=7, BAR_LEAD=7, budget=6):
        n = len(jobs)
        for k, j in enumerate(jobs):
            if j.epoch.first is None: j.epoch.first = k
            j.epoch.last = k
        epochs = []
        for j in jobs:
            if not epochs or epochs[-1] is not j.epoch: epochs.append(j.epoch)
        for e in epochs:
            e.bgap = max(-1, e.first - BAR_LEAD)
            e.done_bar = False
        free = list(range(NB))
        off = 0
        for e in epochs:
            ne = e.last - e.first + 1
            for k in range(e.first, e.last + 1):
                jobs[k].want = (off + k - e.first) % NB
            off = (off + ne + (ne & 1)) % NB
        nextrd = 0
        fq = []
        def issue_reads(j):
            b = j.want; free.remove(b)
            j.buf = b
            base = V_AF + 4 * b
            for kind, dst, addr, imm in j.fixed:
                j.ops.append(self.emit(ds_read(kind, dst, addr, imm)))
            sub = 0
            for kind, addr, imm in j.reads:
                w = 4 if kind == "b128" else 2
                j.ops.append(self.emit(ds_read(kind, rs("v", base + sub, w), addr, imm)))
                sub += w
            return len(j.fixed) + len(j.reads)
        state = {'lastrd': -10}
        def do_barrier(e, g):
            for t in e.needs:
                assert t in self.issued, ("not issued", e.name, t)
            vm = self.vm_wait_for(set(e.needs)) if e.needs else None
            self.emit(comment(f"--- barrier {e.name}"))
            self.do_wait(vm=vm, lgkm=0)
            self.emit(barrier())
            e.done_bar = True
            for q in e.fill:
                if q.start < g:
                    q.end += g - q.start if q.rel else 0
                    q.start = g
                if q.isdma and state.get("dq") is not None:
                    state["dq"].items += q.items
                    state["dq"].end = max(state["dq"].end, q.end)
                else:
                    if q.isdma: state["dq"] = q; fq.insert(0, q)
                    else: fq.append(q)
        def wait_for(j):
            idx = -1
            for i, o in enumerate(self.lq):
                if o in j.ops: idx = i
            if idx >= 0:
                self.do_wait(lgkm=min(15, len(self.lq) - 1 - idx))
                return 1
            return 0
        def gap(g):
            nonlocal nextrd
            used = 0
            nx = g + 1
            if nx < n and jobs[nx].ops:
                used += wait_for(jobs[nx])
            nl = 0
            while nextrd < n:
                j = jobs[nextrd]
                e = j.epoch
                lead = nextrd - (g + 1)
                if not e.done_bar:
                    if g == -1 or g >= state["lastrd"] + 2 or lead <= 2:
                        do_barrier(e, g); used += 2
                    else:
                        break
                quota = 99 if g == -1 else (4 if lead < 7 else 2)
                cnt = len(j.fixed) + len(j.reads)
                if j.want in free and (nl + cnt <= quota or nl == 0):
                    c = issue_reads(j); nl += c; used += c
                    nextrd += 1
                    state["lastrd"] = g
                else:
                    break
            late_wait = nx < n and any(o in self.lq for o in jobs[nx].ops)
            rem = budget - used
            for q in fq:
                if not q.items or g < q.start: continue
                left_gaps = max(1, q.end - g + 1)
                cost = sum(i.cost for i in q.items) // 4
                want = -(-cost // left_gaps)
                if q.maxper: want = min(want, q.maxper)
                if g >= q.end: want = cost
                took = 0
                while q.items and took < want:
                    it = q.items[0]
                    if getattr(it, "tag", None) and isinstance(it.tag, tuple) and it.tag and it.tag[0] == "after" and g < it.tag[1]:
                        break
                    q.items.pop(0)
                    self.emit(it); took += max(1, it.cost // 4)
                rem -= took
            if late_wait:
                wait_for(jobs[nx])
        gap(-1)
        for k in range(n):
            j = jobs[k]
            for p in j.pre:
                if callable(p): p(self)
                else: self.emit(p)
            self.emit(j.mk(rs("v", V_AF + 4 * j.buf, 4)))
            free.append(j.buf)
            gap(k)
        for q in fq:
            while q.items: self.emit(q.items.pop(0))

def tagged(ins, tag):
    ins.tag = tag
    return ins

def dma_K(slot, tag):
    b = KBASE + slot * 8192
    return [salu("s_add_u32", "m0", f"s{S_WL4096}", b),
            tagged(dma(f"v{V_D[0]}", rs("s", S_SRD0, 4), f"s{S_A}", 0, nt=True), tag),
            tagged(dma(f"v{V_D[0]}", rs("s", S_SRD0, 4), f"s{S_A}", 2048, nt=True), tag),
            salu("s_add_u32", "m0", f"s{S_WL4096}", b + 1024),
            tagged(dma(f"v{V_D[1]}", rs("s", S_SRD0, 4), f"s{S_A}", 0, nt=True), tag),
            tagged(dma(f"v{V_D[1]}", rs("s", S_SRD0, 4), f"s{S_A}", 2048, nt=True), tag),
            salu("s_add_u32", f"s{S_A}", f"s{S_A}", 8192)]
def dma_V(slot, tag):
    b = VBASE + slot * 8192
    return [salu("s_add_u32", "m0", f"s{S_WL4096}", b),
            tagged(dma(f"v{V_D[2]}", rs("s", S_SRD1, 4), f"s{S_B2}", 0, nt=True), tag),
            tagged(dma(f"v{V_D[2]}", rs("s", S_SRD1, 4), f"s{S_B2}", 2048, nt=True), tag),
            salu("s_add_u32", "m0", f"s{S_WL4096}", b + 1024),
            tagged(dma(f"v{V_D[3]}", rs("s", S_SRD1, 4), f"s{S_B2}", 0, nt=True), tag),
            tagged(dma(f"v{V_D[3]}", rs("s", S_SRD1, 4), f"s{S_B2}", 2048, nt=True), tag),
            salu("s_add_u32", f"s{S_B2}", f"s{S_B2}", 8192)]
def dma_Q(slot, tag, last=False):
    b = WQBASE + slot * 8192
    xb = XBASE + slot * XSLOT
    L = [salu("s_add_u32", "m0", f"s{S_WL4096}", b),
         tagged(dma(f"v{V_D[0]}", rs("s", S_SRD0, 4), f"s{S_A}", 0), tag),
         tagged(dma(f"v{V_D[0]}", rs("s", S_SRD0, 4), f"s{S_B2}", 2048), tag),
         salu("s_add_u32", "m0", f"s{S_WL4096}", b + 1024),
         tagged(dma(f"v{V_D[1]}", rs("s", S_SRD0, 4), f"s{S_A}", 0), tag),
         tagged(dma(f"v{V_D[1]}", rs("s", S_SRD0, 4), f"s{S_B2}", 2048), tag),
         salu("s_add_u32", "m0", f"s{S_C2}", xb)]
    for k in range(4):
        L.append(tagged(dma(f"v{V_D[2]}", rs("s", S_SRD1, 4), f"s{S_X[k]}", 1024 * k), tag))
    if not last:
        L += [salu("s_add_u32", f"s{S_A}", f"s{S_A}", 262144),
              salu("s_add_u32", f"s{S_B2}", f"s{S_B2}", 262144),
              valu("v_add_u32", f"v{V_D[2]}", 64, f"v{V_D[2]}")]
    else:
        d = (-17 * 262144 + 256) & 0xffffffff
        L += [salu("s_add_u32", f"s{S_A}", f"s{S_A}", d),
              salu("s_add_u32", f"s{S_B2}", f"s{S_B2}", d),
              valu("v_subrev_u32", f"v{V_D[2]}", 17 * 64, f"v{V_D[2]}")]
    return L
def dma_O(slot, z, tag):
    b = OBASE + slot * OSLOT
    L = []
    for mm in range(5):
        L.append(salu("s_add_u32", "m0", f"s{S_OM0}", b + mm * 960))
        L.append(tagged(dma(f"v{V_D[3]}", rs("s", S_SRD2, 4), f"s{S_C}", 64 * mm), tag))
    inc = 576 if (z & 1) == 0 else 16 * 1152 - 576
    L.append(salu("s_add_u32", f"s{S_C}", f"s{S_C}", inc))
    return L

def phase_Q(P, role, first_kv_extra):
    jobs = []
    eps = []
    for s in range(18):
        needs = [("Q", s)] if role == "W" else []
        e = Epoch(f"Q{s}", needs); eps.append(e)
        slot = s % 4
        xb = V_S[0] + 8 * (s & 1)
        for t in range(4):
            for ks in range(2):
                acc = rs("v", V_OACC + 16 * t, 16)
                c = "0" if (s == 0 and ks == 0) else acc
                breg = rs("v", xb + 4 * ks, 4)
                base = WQBASE + slot * 8192 + ks * 4096 + (t >> 1) * 1024
                addr = f"v{V_T0 if (t & 1) == 0 else V_T1}"
                reads = [("tr", addr, base), ("tr", addr, base + 512)]
                fixed = []
                if t == 0:
                    fixed = [("b128", breg, f"v{V_X[ks]}", slot * XSLOT)]
                jobs.append(Job(e, (lambda a, acc=acc, breg=breg, c=c: mfma(acc, a, breg, c)), reads, fixed))
        first = 8 * s
        bg = max(-1, first - 7)
        if role == "W" and s + 3 < 18:
            e.fill.append(FillQ(dma_Q((s + 3) % 4, ("Q", s + 3), last=(s + 3 == 17)), bg, bg + 7, maxper=2))
        if role == "KV" and s == 0 and first_kv_extra:
            e.fill.append(FillQ(dma_V(3, ("V", 3)), bg + 1, bg + 8, maxper=2))
    P.run_stream(jobs)
    P.emit(nop(11))
    for t in range(4):
        for u in range(2):
            for jj in range(4):
                a = V_OACC + 16 * t + 8 * u + 2 * jj
                P.emit(valu("v_cvt_pk_bf16_f32", f"v{V_QF + (2 * t + u) * 4 + jj}", f"v{a}", f"v{a+1}"))
    P.emit(nop(1))


S_NSCALE = 75

class Ctx:
    def __init__(self): self.slow = {}

def max16(S, T):
    L = []
    L.append(valu("v_max3_f32", f"v{T[0]}", f"v{S}", f"v{S+1}", f"v{S+2}"))
    L.append(valu("v_max3_f32", f"v{T[1]}", f"v{S+3}", f"v{S+4}", f"v{S+5}"))
    L.append(valu("v_max3_f32", f"v{T[2]}", f"v{S+6}", f"v{S+7}", f"v{S+8}"))
    L.append(valu("v_max3_f32", f"v{T[3]}", f"v{S+9}", f"v{S+10}", f"v{S+11}"))
    L.append(valu("v_max3_f32", f"v{T[0]}", f"v{T[0]}", f"v{S+12}", f"v{S+13}"))
    L.append(valu("v_max3_f32", f"v{T[1]}", f"v{T[1]}", f"v{S+14}", f"v{S+15}"))
    L.append(valu("v_max3_f32", f"v{T[0]}", f"v{T[0]}", f"v{T[1]}", f"v{T[2]}"))
    L.append(valu("v_max_f32", f"v{T[0]}", f"v{T[0]}", f"v{T[3]}"))
    L.append(valu("v_mov_b32", f"v{T[1]}", f"v{T[0]}"))
    L.append(nop(1))
    L.append(valu("v_permlane32_swap_b32", f"v{T[0]}", f"v{T[1]}"))
    L.append(valu("v_max_f32", f"v{T[0]}", f"v{T[0]}", f"v{T[1]}"))
    return L

def exp_items(S, P_after, do_fma=True, sub_reg=None):
    T = V_TMP
    L = []
    for e in range(8):
        a, b = S + 2 * e, S + 2 * e + 1
        t0, t1 = T[1 + (2 * e) % 6], T[1 + (2 * e + 1) % 6]
        if do_fma:
            L.append(valu("v_fma_f32", f"v{a}", f"v{a}", f"s{S_SCALE}", f"v{V_NEGM}"))
            L.append(valu("v_fma_f32", f"v{b}", f"v{b}", f"s{S_SCALE}", f"v{V_NEGM}"))
        else:
            L.append(valu("v_sub_f32", f"v{a}", f"v{a}", f"v{sub_reg}"))
            L.append(valu("v_sub_f32", f"v{b}", f"v{b}", f"v{sub_reg}"))
        L.append(valu("v_exp_f32", f"v{t0}", f"v{a}"))
        L.append(valu("v_exp_f32", f"v{t1}", f"v{b}"))
        if e == 0:
            L.append(valu("v_mov_b32", f"v{V_TS}", f"v{t0}"))
        else:
            L.append(valu("v_add_f32", f"v{V_TS}", f"v{V_TS}", f"v{t0}"))
        L.append(valu("v_add_f32", f"v{V_TS}", f"v{V_TS}", f"v{t1}"))
        cv = valu("v_cvt_pk_bf16_f32", f"v{V_P + e}", f"v{t0}", f"v{t1}")
        if P_after is not None:
            cv.tag = ("after", P_after[0] if e < 4 else P_after[1])
        L.append(cv)
    return L

def softmax_items(i, P_after):
    S = V_S[i & 1]
    T = V_TMP
    L = []
    if i == 0:
        L += max16(S, T)
        L.append(valu("v_mul_f32", f"v{V_NEGM}", f"s{S_NSCALE}", f"v{T[0]}"))
        L.append(valu("v_mov_b32", f"v{V_L}", 0))
    L += exp_items(S, P_after)
    return L

def make_check(ctx, i, uid):
    S = V_S[i & 1]
    T = V_TMP
    def f(P):
        if i > 0:
            P.emit(valu("v_cmp_nle_f32", rs("s", S_CMP, 2), f"v{V_TS}", f"s{S_THR}"))
            P.emit(salu("s_cmp_lg_u64", None, rs("s", S_CMP, 2), 0))
            P.emit(raw(f"s_cbranch_scc1 L_slow_{uid}", "branch"))
            P.emit(label(f"L_back_{uid}"))
        P.emit(valu("v_add_f32", f"v{V_L}", f"v{V_L}", f"v{V_TS}"))
        if i == 0: P.emit(nop(0))
    if i > 0 and uid not in ctx.slow:
        B = [label(f"L_slow_{uid}"), nop(7), nop(7)]
        B += max16(S, T)
        B.append(valu("v_max_f32", f"v{T[0]}", 0, f"v{T[0]}"))
        B.append(valu("v_sub_f32", f"v{T[1]}", 0, f"v{T[0]}"))
        B.append(valu("v_exp_f32", f"v{T[1]}", f"v{T[1]}"))
        B.append(valu("v_sub_f32", f"v{V_NEGM}", f"v{V_NEGM}", f"v{T[0]}"))
        B.append(valu("v_mul_f32", f"v{V_L}", f"v{V_L}", f"v{T[1]}"))
        for r in range(64):
            B.append(valu("v_mul_f32", f"v{V_OACC + r}", f"v{V_OACC + r}", f"v{T[1]}"))
        B += exp_items(S, None, do_fma=False, sub_reg=T[0])
        B.append(nop(1))
        B.append(raw(f"s_branch L_back_{uid}", "branch"))
        ctx.slow[uid] = B
    return f

def qk_jobs(e, i):
    jobs = []
    S = rs("v", V_S[i & 1], 16)
    slot = i % 4
    for sp in range(8):
        c = "0" if sp == 0 else S
        b = rs("v", V_QF + 4 * sp, 4)
        jobs.append(Job(e, (lambda a, S=S, b=b, c=c: mfma(S, a, b, c)),
                        [("b128", f"v{V_K[sp & 3]}", slot * 8192 + (sp >> 2) * 1024)]))
    return jobs
def pv_jobs(e, i):
    jobs = []
    slot = i % 4
    for u1 in range(2):
        for t in range(4):
            acc = rs("v", V_OACC + 16 * t, 16)
            c = "0" if (i == 0 and u1 == 0) else acc
            b = rs("v", V_P + 4 * u1, 4)
            base = VBASE + slot * 8192 + u1 * 4096 + (t >> 1) * 1024
            addr = f"v{V_T0 if (t & 1) == 0 else V_T1}"
            jobs.append(Job(e, (lambda a, acc=acc, b=b, c=c: mfma(acc, a, b, c)),
                            [("tr", addr, base), ("tr", addr, base + 512)]))
    return jobs
def of_shift(n):
    return None
def o_jobs(e, z, mode):
    jobs = []
    slot = z % 4
    ks, half = z >> 1, z & 1
    if mode == "AO":
        if 1 <= ks <= 6: ks = 1 + (ks - 1) % 2
    else:
        ks = ks % 2
    b = rs("v", V_OF + 4 * ks, 4)
    for m in range(9):
        acc = outacc(9 * half + m)
        base = slot * OSLOT + m * 1024
        jobs.append(Job(e, (lambda a, acc=acc, b=b: mfma(acc, a, b, acc)),
                        [("tr", f"v{V_W}", base), ("tr", f"v{V_W}", base + 256)]))
    return jobs

def phase_A(P, ctx, role, has_O, name):
    jobs = []
    eps = []
    e = Epoch(f"{name}pre", [("K", 0)] if role == "KV" else [])
    eps.append(e)
    jobs += qk_jobs(e, 0)
    starts = {}
    pvfirst = {}
    olast = {}
    for i in range(17):
        needs = []
        if role == "KV":
            if i >= 1: needs.append(("V", i - 1))
            if i + 1 <= 15: needs.append(("K", i + 1))
        elif has_O and i <= 15:
            needs.append(("O", i))
        e = Epoch(f"{name}{i}", needs); eps.append(e)
        starts[i] = len(jobs)
        if i >= 1:
            pvfirst[i - 1] = len(jobs)
            pj = pv_jobs(e, i - 1)
            pj[0].pre.append(make_check(ctx, i - 1, f"{name}{i-1}"))
            jobs += pj
        if has_O and i <= 15:
            jobs += o_jobs(e, i, "AO")
            olast[i] = len(jobs) - 1
        if i + 1 <= 15: jobs += qk_jobs(e, i + 1)
    starts[17] = len(jobs)
    for i in range(17):
        e = eps[i + 1]
        f = starts[i]
        bg = max(-1, f - 7)
        if i <= 15:
            if i >= 1: pa = (f + 3, f + 7)
            else: pa = (0, 0)
            st = f + 2
            e.fill.append(FillQ(softmax_items(i, pa), st, starts[i + 1] - 1))
        if has_O and i in (4, 8, 12):
            mv = [valu("v_mov_b32", f"v{V_OF + 4 + r}", f"v{V_OF + 12 + r}") for r in range(4)]
            mv += [valu("v_mov_b32", f"v{V_OF + 12 + r}", f"v{V_OF + 20 + r}") for r in range(4)]
            e.fill.append(FillQ(mv, f + 1, f + 16))
        if has_O and i in (5, 9, 13):
            mv = [valu("v_mov_b32", f"v{V_OF + 8 + r}", f"v{V_OF + 16 + r}") for r in range(4)]
            mv += [valu("v_mov_b32", f"v{V_OF + 16 + r}", f"v{V_OF + 24 + r}") for r in range(4)]
            e.fill.append(FillQ(mv, olast[i], olast[i] + 1))
        d = []
        if role == "KV":
            if i <= 15: d += dma_K(i % 4, ("K", i + 4))
            if i >= 2: d += dma_V((i + 2) % 4, ("V", i + 2))
        else:
            if has_O and i <= 15: d += dma_O((i + 3) % 4, i + 3, ("O", i + 3))
            if (not has_O) and 13 <= i <= 15: d += dma_O((i + 3) % 4, i + 3, ("O", i + 3))
            if i >= 14: d += dma_Q(i - 14, ("Q", 18 + i - 14))
        if d:
            e.fill.insert(0, FillQ(d, bg, max(bg + 1, starts[i + 1] - 8), maxper=2))
    P.run_stream(jobs)
    newq = []
    for t in P.vq:
        if isinstance(t, tuple) and t[0] in ("K", "V", "O") and t[1] >= 16: newq.append((t[0], t[1] - 16))
        elif isinstance(t, tuple) and t[0] == "Q" and t[1] >= 18: newq.append(("Q", t[1] - 18))
        else: newq.append(("old", 0))
    P.vq = newq
    P.issued = set((t[0], t[1] - (18 if t[0] == "Q" else 16)) for t in P.issued if isinstance(t, tuple) and len(t) == 2 and isinstance(t[1], int) and t[1] >= (18 if t[0] == "Q" else 16))
    T = V_TMP
    P.emit(valu("v_mov_b32", f"v{T[0]}", f"v{V_L}"))
    P.emit(nop(1))
    P.emit(valu("v_permlane32_swap_b32", f"v{T[0]}", f"v{V_L}"))
    P.emit(valu("v_add_f32", f"v{T[0]}", f"v{T[0]}", f"v{V_L}"))
    P.emit(valu("v_rcp_f32", f"v{T[1]}", f"v{T[0]}"))
    P.emit(nop(7))
    P.emit(valu("v_mov_b32", f"v{T[2]}", f"v{T[1]}"))
    P.emit(nop(3))
    assert T[1] % 2 == 0
    for r in range(0, 64, 2):
        P.emit(valu("v_pk_mul_f32", rs("v", V_OACC + r, 2), rs("v", V_OACC + r, 2), rs("v", T[1], 2)))
    for t in range(4):
        for u in range(2):
            for jj in range(4):
                a = V_OACC + 16 * t + 8 * u + 2 * jj
                P.emit(valu("v_cvt_pk_bf16_f32", f"v{V_OF + (2 * t + u) * 4 + jj}", f"v{a}", f"v{a+1}"))
    P.emit(nop(1))

def phase_O(P, role):
    jobs = []
    for z in range(16):
        e = Epoch(f"O{z}", [("O", z)] if role == "W" else [])
        f = len(jobs)
        jobs += o_jobs(e, z, "O")
        bg = max(-1, f - 7)
        if role == "W":
            e.fill.append(FillQ(dma_O((z + 3) % 4, z + 3, ("O", z + 3)), bg, bg + 8, maxper=2))
        if z % 4 == 0 and z > 0:
            mv = [valu("v_mov_b32", f"v{V_OF + r}", f"v{V_OF + 8 + r}") for r in range(24)]
            jobs[f].pre += mv + [nop(1)]
    P.run_stream(jobs)
    P.emit(nop(11))
    T = V_S[0]
    v = V_TMP[0]
    P.emit(valu("v_and_b32", f"v{v}", 63, "v0"))
    P.emit(valu("v_and_b32", f"v{V_TMP[1]}", 31, "v0"))
    P.emit(valu("v_lshlrev_b32", f"v{v}", 4, f"v{v}"))
    P.emit(valu("v_cmp_gt_u32", "vcc", 28, f"v{V_TMP[1]}"))
    P.emit(salu("s_mul_i32", f"s{S_T}", f"s{S_W}", 18 * 2 * 1024))
    P.emit(raw("s_and_saveexec_b64 s[78:79], vcc", "salu", rd=[("s",106),("s",107)], wr=[("s",78),("s",79),("s",126),("s",127)]))
    for nt in range(18):
        for pp in range(2):
            k = (nt * 2 + pp) % 2
            tb = T + 16 * k
            if nt < 16:
                for r in range(8):
                    P.emit(valu("v_accvgpr_read_b32", f"v{tb + r}", f"a{16 * nt + 8 * pp + r}"))
                src = tb
            else:
                src = V_OUTX + 16 * (nt - 16) + 8 * pp
            for d in range(4):
                P.emit(valu("v_cvt_pk_bf16_f32", f"v{tb + 8 + d}", f"v{src + 2 * d}", f"v{src + 2 * d + 1}"))
            off = (nt * 2 + pp) * 1024
            if off % 4096 == 0 and off > 0:
                P.emit(salu("s_add_u32", f"s{S_T}", f"s{S_T}", 4096))
            P.emit(bstore(4, rs("v", tb + 8, 4), f"v{v}", rs("s", S_SRDP, 4), f"s{S_T}", off % 4096))

def prologue_common():
    L = []
    A = L.append
    A(raw("s_cmp_ge_u32 s2, 256", "salu", wr=[("scc",0)]))
    A(raw("s_cbranch_scc1 L_end", "branch"))
    A(raw("s_load_dwordx16 s[4:19], s[0:1], 0", "smem"))
    A(raw("s_load_dwordx4 s[20:23], s[0:1], 64", "smem"))
    A(raw("s_load_dwordx2 s[24:25], s[0:1], 96", "smem"))
    A(valu("v_lshrrev_b32", "v1", 6, "v0"))
    A(nop(0))
    A(valu("v_readfirstlane_b32", f"s{S_W}", "v1"))
    A(salu("s_and_b32", "s30", "s2", 7))
    A(salu("s_lshr_b32", "s31", "s2", 3))
    A(salu("s_lshr_b32", "s32", "s30", 2))
    A(salu("s_and_b32", "s33", "s30", 3))
    A(salu("s_lshl_b32", "s33", "s33", 1))
    A(salu("s_and_b32", "s34", "s31", 1))
    A(salu("s_add_u32", "s33", "s33", "s34"))
    A(salu("s_lshr_b32", "s34", "s31", 1))
    A(salu("s_and_b32", f"s{S_WL}", f"s{S_W}", 1))
    A(salu("s_lshl_b32", f"s{S_WL4096}", f"s{S_WL}", 12))
    A(salu("s_mov_b32", f"s{S_R}", 0))
    A(salu("s_mov_b32", f"s{S_SCALE}", hex(f32bits(SCALE))))
    A(salu("s_mov_b32", f"s{S_NSCALE}", hex(f32bits(-SCALE))))
    A(salu("s_mov_b32", f"s{S_THR}", hex(f32bits(4096.0))))
    A(raw("s_waitcnt lgkmcnt(0)", "wait"))
    A(salu("s_cmp_eq_u32", None, "s32", 0))
    for d, a, b in ((4, 4, 14), (6, 6, 16), (8, 8, 18), (10, 10, 20), (12, 12, 22)):
        A(salu("s_cselect_b32", f"s{d}", f"s{a}", f"s{b}"))
        A(salu("s_cselect_b32", f"s{d+1}", f"s{a+1}", f"s{b+1}"))
    A(salu("s_mul_i32", "s35", "s2", 147456))
    A(salu("s_add_u32", f"s{S_SRDP}", "s24", "s35"))
    A(salu("s_addc_u32", f"s{S_SRDP+1}", "s25", 0))
    A(salu("s_mov_b32", f"s{S_SRDP+2}", 147456))
    A(salu("s_mov_b32", f"s{S_SRDP+3}", "0x00020000"))
    l, h, t1, t2, t3 = 17, 18, 19, 20, 21
    A(valu("v_and_b32", f"v{l}", 63, "v0"))
    A(valu("v_lshrrev_b32", f"v{h}", 5, f"v{l}"))
    A(valu("v_lshlrev_b32", f"v{V_T0}", 11, f"v{h}"))
    A(valu("v_bfe_u32", f"v{t1}", f"v{l}", 2, 2))
    A(valu("v_lshl_add_u32", f"v{V_T0}", f"v{t1}", 7, f"v{V_T0}"))
    A(valu("v_lshrrev_b32", f"v{t2}", 1, f"v{t1}"))
    A(valu("v_lshl_add_u32", f"v{V_T0}", f"v{t2}", 6, f"v{V_T0}"))
    A(valu("v_bfe_u32", f"v{t2}", f"v{l}", 4, 1))
    A(valu("v_lshl_add_u32", f"v{V_T0}", f"v{t2}", 5, f"v{V_T0}"))
    A(valu("v_and_b32", f"v{t3}", 1, f"v{l}"))
    A(valu("v_lshl_add_u32", f"v{V_T0}", f"v{t3}", 4, f"v{V_T0}"))
    A(valu("v_bfe_u32", f"v{t3}", f"v{l}", 1, 1))
    A(valu("v_lshl_add_u32", f"v{V_T0}", f"v{t3}", 3, f"v{V_T0}"))
    A(valu("v_xor_b32", f"v{V_T1}", 64, f"v{V_T0}"))
    A(valu("v_lshl_add_u32", f"v{V_W}", f"v{h}", 3, f"v{t1}"))
    A(valu("v_lshlrev_b32", f"v{V_W}", 6, f"v{V_W}"))
    A(valu("v_lshl_add_u32", f"v{V_W}", f"v{t2}", 5, f"v{V_W}"))
    A(valu("v_and_b32", f"v{t3}", 3, f"v{l}"))
    A(valu("v_lshl_add_u32", f"v{V_W}", f"v{t3}", 3, f"v{V_W}"))
    A(valu("v_add_u32", f"v{V_W}", OBASE, f"v{V_W}"))
    A(valu("v_and_b32", f"v{t1}", 19, f"v{l}"))
    A(valu("v_and_b32", f"v{t2}", 4, f"v{l}"))
    A(valu("v_lshl_or_b32", f"v{t1}", f"v{t2}", 1, f"v{t1}"))
    A(valu("v_and_b32", f"v{t2}", 8, f"v{l}"))
    A(valu("v_lshrrev_b32", f"v{t2}", 1, f"v{t2}"))
    A(valu("v_or_b32", f"v{t1}", f"v{t1}", f"v{t2}"))
    A(valu("v_bfe_u32", f"v{t2}", f"v{t1}", 1, 2))
    A(valu("v_lshrrev_b32", f"v{t3}", 4, f"v{t1}"))
    A(valu("v_lshl_or_b32", f"v{t2}", f"v{t3}", 2, f"v{t2}"))
    A(valu("v_xor_b32", f"v{t2}", f"v{t2}", f"v{h}"))
    A(valu("v_lshrrev_b32", f"v{t3}", 3, f"v{t1}"))
    A(valu("v_lshlrev_b32", f"v{t3}", 11, f"v{t3}"))
    A(valu("v_and_b32", f"v{t1}", 7, f"v{t1}"))
    A(valu("v_lshl_add_u32", f"v{t3}", f"v{t1}", 7, f"v{t3}"))
    A(valu("v_add_u32", f"v{t3}", KBASE, f"v{t3}"))
    for sq in range(4):
        A(valu("v_xor_b32", f"v{t1}", 2 * sq, f"v{t2}"))
        A(valu("v_lshl_add_u32", f"v{V_K[sq]}", f"v{t1}", 4, f"v{t3}"))
    A(valu("v_and_b32", f"v{t1}", 31, f"v{l}"))
    A(valu("v_min_u32", f"v{t1}", 27, f"v{t1}"))
    A(salu("s_mul_i32", "s35", f"s{S_W}", 28))
    A(valu("v_add_u32", f"v{t1}", "s35", f"v{t1}"))
    A(valu("v_bfe_u32", f"v{t2}", f"v{t1}", 2, 2))
    A(valu("v_xor_b32", f"v{t2}", f"v{t2}", f"v{h}"))
    A(valu("v_lshlrev_b32", f"v{t3}", 6, f"v{t1}"))
    A(valu("v_add_u32", f"v{t3}", XBASE, f"v{t3}"))
    A(valu("v_lshl_add_u32", f"v{V_X[0]}", f"v{t2}", 4, f"v{t3}"))
    A(valu("v_xor_b32", f"v{V_X[1]}", 32, f"v{V_X[0]}"))
    return L

def prologue_role(P, role):
    A = P.emit
    l, t1, t2, t3 = 17, 19, 20, 21
    A(valu("v_lshrrev_b32", f"v{t1}", 3, f"v{l}"))
    A(valu("v_and_b32", f"v{t2}", 7, f"v{l}"))
    if role == "KV":
        A(salu("s_lshl_b32", "s35", "s34", 5))
        A(salu("s_lshl_b32", "s36", "s33", 2))
        A(salu("s_add_u32", "s35", "s35", "s36"))
        A(salu("s_lshl_b32", "s36", "s35", 17))
        A(salu("s_lshr_b32", "s37", "s35", 15))
        for srd, p in ((S_SRD0, 6), (S_SRD1, 8)):
            A(salu("s_add_u32", f"s{srd}", f"s{p}", "s36"))
            A(salu("s_addc_u32", f"s{srd+1}", f"s{p+1}", "s37"))
            A(salu("s_mov_b32", f"s{srd+2}", 524288))
            A(salu("s_mov_b32", f"s{srd+3}", "0x00020000"))
        A(valu("v_bfe_u32", f"v{t3}", f"v{t1}", 1, 2))
        A(salu("s_lshl_b32", "s35", f"s{S_WL}", 2))
        A(valu("v_or_b32", f"v{t3}", "s35", f"v{t3}"))
        A(valu("v_xor_b32", f"v{t3}", f"v{t3}", f"v{t2}"))
        A(valu("v_lshlrev_b32", f"v{t3}", 4, f"v{t3}"))
        A(valu("v_lshl_add_u32", f"v{V_D[0]}", f"v{t1}", 8, f"v{t3}"))
        A(valu("v_add_u32", f"v{V_D[1]}", 128, f"v{V_D[0]}"))
        A(valu("v_bfe_u32", f"v{t3}", f"v{t1}", 1, 1))
        A(valu("v_lshlrev_b32", f"v{t3}", 2, f"v{t3}"))
        A(valu("v_xor_b32", f"v{t3}", f"v{t3}", f"v{t2}"))
        A(valu("v_lshlrev_b32", f"v{t3}", 4, f"v{t3}"))
        A(valu("v_lshl_add_u32", f"v{V_D[2]}", f"v{t1}", 8, f"v{t3}"))
        A(valu("v_add_u32", f"v{V_D[3]}", 128, f"v{V_D[2]}"))
        A(salu("s_mov_b32", f"s{S_A}", f"s{S_WL4096}"))
        A(salu("s_mov_b32", f"s{S_B2}", f"s{S_WL4096}"))
        A(dma_K(0, ("K", 0))); A(dma_K(1, ("K", 1))); A(dma_K(2, ("K", 2)))
        A(dma_V(0, ("V", 0))); A(dma_K(3, ("K", 3))); A(dma_V(1, ("V", 1))); A(dma_V(2, ("V", 2)))
    else:
        A(salu("s_lshl_b32", "s35", "s33", 10))
        A(salu("s_add_u32", f"s{S_SRD0}", "s10", "s35"))
        A(salu("s_addc_u32", f"s{S_SRD0+1}", "s11", 0))
        A(salu("s_sub_u32", f"s{S_SRD0+2}", 576 * 8192, "s35"))
        A(salu("s_mov_b32", f"s{S_SRD0+3}", "0x00020000"))
        A(salu("s_mul_i32", "s35", "s34", 129024))
        A(salu("s_add_u32", f"s{S_SRD1}", "s4", "s35"))
        A(salu("s_addc_u32", f"s{S_SRD1+1}", "s5", 0))
        A(salu("s_mov_b32", f"s{S_SRD1+2}", 129024))
        A(salu("s_mov_b32", f"s{S_SRD1+3}", "0x00020000"))
        A(salu("s_mul_i32", "s35", "s33", 512 * 1152))
        A(salu("s_add_u32", f"s{S_SRD2}", "s12", "s35"))
        A(salu("s_addc_u32", f"s{S_SRD2+1}", "s13", 0))
        A(salu("s_mov_b32", f"s{S_SRD2+2}", 512 * 1152))
        A(salu("s_mov_b32", f"s{S_SRD2+3}", "0x00020000"))
        A(valu("v_bfe_u32", f"v{t3}", f"v{t1}", 1, 1))
        A(valu("v_lshlrev_b32", f"v{t3}", 2, f"v{t3}"))
        A(valu("v_xor_b32", f"v{t3}", f"v{t3}", f"v{t2}"))
        A(valu("v_lshlrev_b32", f"v{t3}", 4, f"v{t3}"))
        A(valu("v_lshl_add_u32", f"v{V_D[0]}", f"v{t1}", 13, f"v{t3}"))
        A(valu("v_add_u32", f"v{V_D[1]}", 128, f"v{V_D[0]}"))
        A(valu("v_lshrrev_b32", f"v{t1}", 2, f"v{l}"))
        A(salu("s_movk_i32", "s35", 1152))
        A(valu("v_mul_lo_u32", f"v{t1}", "s35", f"v{t1}"))
        A(valu("v_and_b32", f"v{t2}", 3, f"v{l}"))
        A(valu("v_lshl_add_u32", f"v{V_D[3]}", f"v{t2}", 4, f"v{t1}"))
        A(valu("v_bfe_u32", f"v{t3}", f"v{l}", 4, 2))
        A(valu("v_xor_b32", f"v{t3}", f"v{t3}", f"v{t2}"))
        A(valu("v_lshl_add_u32", f"v{V_D[2]}", f"v{t3}", 4, f"v{t1}"))
        A(salu("s_lshl_b32", f"s{S_A}", f"s{S_WL}", 17))
        A(salu("s_add_u32", f"s{S_B2}", f"s{S_A}", 63488))
        A(salu("s_mul_i32", "s35", f"s{S_WL}", 3 * 18432))
        for k in range(4):
            A(salu("s_add_u32", f"s{S_X[k]}", "s35", k * (18432 - 1024)))
        A(salu("s_mul_i32", f"s{S_C2}", f"s{S_WL}", 3 * 1024))
        A(salu("s_lshl_b32", f"s{S_OM0}", f"s{S_WL}", 12))
        A(salu("s_lshl_b32", f"s{S_C}", f"s{S_WL}", 8))
        A(dma_Q(0, ("Q", 0))); A(dma_Q(1, ("Q", 1))); A(dma_Q(2, ("Q", 2)))
    for r in range(256):
        A(valu("v_accvgpr_write_b32", f"a{r}", 0))
    for r in range(32):
        A(valu("v_mov_b32", f"v{V_OUTX + r}", 0))

def build_role(role, ctx):
    P = Prog(role)
    segs = {}
    def cut(name):
        segs.setdefault(name, []).append(P.out); P.out = []
    prologue_role(P, role); cut("pro")
    for r in range(4):
        phase_Q(P, role, True); cut("Q")
        if r == 0:
            phase_A(P, ctx, role, False, f"{role}A"); cut("A")
        else:
            phase_A(P, ctx, role, True, f"{role}B"); cut("AO")
    phase_O(P, role); cut("O")
    return segs

def merge_instances(insts, name):
    base = insts[0]
    for other in insts[1:]:
        assert len(other) == len(base), (name, len(other), len(base))
        for a, b in zip(base, other):
            if a.text != b.text:
                assert a.kind == "wait" and b.kind == "wait", (name, a.text, b.text)
                import re
                def parse(t):
                    vm = re.search(r"vmcnt\((\d+)\)", t); lg = re.search(r"lgkmcnt\((\d+)\)", t)
                    return (int(vm.group(1)) if vm else None, int(lg.group(1)) if lg else None)
                va, la = parse(a.text); vb, lb = parse(b.text)
                assert la == lb, (a.text, b.text)
                vm = min(x for x in (va, vb) if x is not None)
                a.text = wait(vm, la).text
    return base

import re as _re
fold_id = [0]
def norm(t):
    t = _re.sub(r"vmcnt\(\d+\) ?", "", t)
    return _re.sub(r"(L_slow_|L_back_|--- barrier )\w+", r"\1X", t)
def parse_wait(t):
    vm = _re.search(r"vmcnt\((\d+)\)", t); lg = _re.search(r"lgkmcnt\((\d+)\)", t)
    return (int(vm.group(1)) if vm else None, int(lg.group(1)) if lg else None)
def fold(seq, p=4):
    chunks = [[]]
    for ins in seq:
        if ins.kind == "comment" and ins.text.startswith("; --- barrier"):
            chunks.append([])
        chunks[-1].append(ins)
    keys = ["\n".join(norm(i.text) for i in c) for c in chunks]
    best = (0, 0)
    n = len(chunks)
    for a in range(n):
        k = 1
        while a + (k + 1) * p <= n and all(keys[a + k * p + r] == keys[a + r] for r in range(p)):
            k += 1
        if k >= 2 and k > best[1]: best = (a, k)
    a, k = best
    if k < 2: return seq
    out = []
    for c in chunks[:a]: out += c
    for r in range(p):
        for it in range(1, k):
            for x, y in zip(chunks[a + r], chunks[a + it * p + r]):
                if x.kind == "wait" and x.text != y.text:
                    va, la = parse_wait(x.text); vb, lb = parse_wait(y.text)
                    vs = [q for q in (va, vb) if q is not None]
                    x.text = wait(min(vs) if vs else None, la).text
    fold_id[0] += 1
    lab = f"L_loop{fold_id[0]}"
    out.append(salu("s_mov_b32", f"s{S_LOOP}", k))
    out.append(label(lab))
    for c in chunks[a:a + p]: out += c
    out.append(salu("s_sub_u32", f"s{S_LOOP}", f"s{S_LOOP}", 1))
    out.append(salu("s_cmp_lg_u32", None, f"s{S_LOOP}", 0))
    out.append(raw(f"s_cbranch_scc1 {lab}", "branch"))
    rest = []
    for c in chunks[a + k * p:]: rest += c
    out += rest
    print(f"fold: {n} chunks -> loop start {a} x{k}")
    return out

def reduce_kernel():
    L = []
    A = L.append
    A("s_cmp_ge_u32 s2, 1152")
    A("s_cbranch_scc1 L_rend")
    A("s_load_dwordx2 s[4:5], s[0:1], 96")
    A("s_load_dwordx2 s[6:7], s[0:1], 80")
    A("s_mul_hi_u32 s8, s2, 0x71c71c8")
    A("s_mul_i32 s9, s8, 36")
    A("s_sub_u32 s9, s2, s9")
    A("s_lshr_b32 s10, s8, 4")
    A("s_and_b32 s11, s8, 15")
    A("s_lshl_b32 s12, s9, 8")
    A("v_add_u32 v1, s12, v0")
    A("v_lshlrev_b32 v2, 4, v1")
    A("v_and_b32 v3, 63, v1")
    A("v_and_b32 v4, 31, v3")
    A("v_lshrrev_b32 v5, 5, v3")
    A("v_lshrrev_b32 v6, 6, v1")
    A("s_nop 1")
    A("v_readfirstlane_b32 s13, v6")
    A("s_waitcnt lgkmcnt(0)")
    A("s_mov_b32 s16, s4"); A("s_mov_b32 s17, s5"); A(f"s_mov_b32 s18, {256*147456}"); A("s_mov_b32 s19, 0x00020000")
    A("s_mov_b32 s20, s6"); A("s_mov_b32 s21, s7"); A(f"s_mov_b32 s22, {16*112*1152*2}"); A("s_mov_b32 s23, 0x00020000")
    A("s_mul_hi_u32 s14, s13, 0x71c71c8")
    A("s_mul_i32 s15, s14, 36")
    A("s_sub_u32 s15, s13, s15")
    A("v_cmp_gt_u32 vcc, 28, v4")
    A("s_and_saveexec_b64 s[30:31], vcc")
    A("s_cbranch_execz L_rend")
    for j in range(8):
        A(f"s_lshl_b32 s24, s11, 4")
        A(f"s_lshl_b32 s25, s10, 2")
        A(f"s_add_u32 s24, s24, s25")
        A(f"s_add_u32 s24, s24, {((j & 1) << 3) | (j >> 1)}")
        A(f"s_mul_i32 s24, s24, 147456")
        A(f"buffer_load_dwordx4 v[{8+4*j}:{11+4*j}], v2, s[16:19], s24 offen")
    A("s_mul_i32 s24, s11, 112")
    A("s_mul_i32 s25, s14, 28")
    A("s_add_u32 s24, s24, s25")
    A("v_add_u32 v4, s24, v4")
    A("s_movk_i32 s25, 2304")
    A("v_mul_lo_u32 v4, s25, v4")
    A("s_mul_i32 s24, s10, 1152")
    A("s_lshl_b32 s25, s15, 5")
    A("s_add_u32 s24, s24, s25")
    A("v_lshl_add_u32 v4, v5, 3, v4")
    A("v_add_u32 v4, s24, v4")
    for k in range(8):
        A(f"v_mov_b32 v{48+k}, 0")
    for j in range(8):
        A(f"s_waitcnt vmcnt({7-j})")
        for d in range(4):
            r = 8 + 4 * j + d
            A(f"v_lshlrev_b32 v40, 16, v{r}")
            A(f"v_and_b32 v41, 0xffff0000, v{r}")
            A(f"v_add_f32 v{48+2*d}, v{48+2*d}, v40")
            A(f"v_add_f32 v{48+2*d+1}, v{48+2*d+1}, v41")
    for d in range(4):
        A(f"v_cvt_pk_bf16_f32 v{56+d}, v{48+2*d}, v{48+2*d+1}")
    A("buffer_store_dwordx2 v[56:57], v4, s[20:23], 0 offen")
    A("buffer_store_dwordx2 v[58:59], v4, s[20:23], 0 offen offset:16")
    A("L_rend:")
    A("s_endpgm")
    return "\n".join(L) + "\n"

def dbg_dump(base, n):
    L = []
    L.append(raw("s_waitcnt vmcnt(0) lgkmcnt(0)", "wait"))
    L.append(nop(15))
    L.append(salu("s_lshl_b32", "s80", "s2", 2))
    L.append(salu("s_add_u32", "s80", "s80", f"s{S_W}"))
    L.append(salu("s_lshl_b32", "s80", "s80", 14))
    L.append(salu("s_add_u32", "s80", "s80", 64 << 20))
    L.append(salu("s_mov_b32", "s84", "s24")); L.append(salu("s_mov_b32", "s85", "s25"))
    L.append(salu("s_mov_b32", "s86", 128 << 20)); L.append(salu("s_mov_b32", "s87", "0x00020000"))
    L.append(valu("v_and_b32", "v17", 63, "v0"))
    L.append(valu("v_lshlrev_b32", "v17", 2, "v17"))
    for r in range(n):
        if r and r % 16 == 0: L.append(salu("s_add_u32", "s80", "s80", 4096))
        L.append(bstore(1, f"v{base + r}", "v17", "s[84:87]", "s80", (r % 16) * 256))
    L.append(raw("s_waitcnt vmcnt(0)", "wait"))
    L.append(raw("s_endpgm", "end"))
    return L

DEBUG = ""
def main(outpath):
    ctx = Ctx()
    txt = header([(MAIN, (256, 1, 1), (256, 1, 1), LDS_TOTAL), (RED, (1152, 1, 1), (256, 1, 1), 0)])
    txt += kstart(MAIN)
    body = []
    pro = prologue_common()
    body += pro
    body.append(raw(f"s_cmp_ge_u32 s{S_W}, 2", "salu"))
    body.append(raw("s_cbranch_scc1 L_role_W", "branch"))
    allprobs = []
    for role in ("KV", "W"):
        segs = build_role(role, ctx)
        Q = merge_instances(segs["Q"], "Q")
        AO = merge_instances(segs["AO"], "AO")
        seq = []
        if role == "W": seq.append(label("L_role_W"))
        seq += segs["pro"][0]
        seq.append(label(f"L_head_{role}"))
        seq += fold(Q)
        if DEBUG == "Q": seq += dbg_dump(V_QF, 32)
        seq.append(raw(f"s_cmp_lg_u32 s{S_R}, 0", "salu"))
        seq.append(raw(f"s_cbranch_scc1 L_AO_{role}", "branch"))
        seq += fold(segs["A"][0])
        if DEBUG == "O": seq += dbg_dump(V_OF, 32)
        seq.append(raw(f"s_mov_b32 s{S_R}, 1", "salu"))
        seq.append(raw(f"s_branch L_head_{role}", "branch"))
        seq.append(label(f"L_AO_{role}"))
        seq += fold(AO)
        seq.append(raw(f"s_add_u32 s{S_R}, s{S_R}, 1", "salu"))
        seq.append(raw(f"s_cmp_lt_u32 s{S_R}, 4", "salu"))
        seq.append(raw(f"s_cbranch_scc1 L_head_{role}", "branch"))
        seq += fold(segs["O"][0])
        seq.append(raw("s_endpgm", "end"))
        lin = pro + segs["pro"][0] + Q + segs["A"][0] + Q + AO + Q + AO + segs["O"][0]
        allprobs += check_hazards(lin, role)
        body += seq
    used = set(_re.findall(r"s_cbranch_scc1 L_slow_(\w+)", "\n".join(i.text for i in body)))
    for uid, B in ctx.slow.items():
        if uid not in used: continue
        allprobs += check_hazards(B, uid)
        body += B
    body.append(label("L_end"))
    body.append(raw("s_endpgm", "end"))
    txt += "\n".join(i.text for i in body) + "\n"
    txt += kstart(RED) + reduce_kernel()
    txt += kdesc(MAIN, 512, sgpr=96, accum=256)
    txt += kdesc(RED, 64, sgpr=40)
    open(outpath, "w").write(txt)
    for p in allprobs[:40]: print("HAZARD", p)
    print("instructions:", sum(1 for i in body if i.kind not in ("label", "comment")), "bytes of text", len(txt))

if __name__ == "__main__":
    if len(sys.argv) > 2: DEBUG = sys.argv[2]
    main(sys.argv[1] if len(sys.argv) > 1 else "k1.s")
```

```python
import re

class I:
    __slots__ = ("text", "kind", "rd", "wr", "cost", "tag", "comment")
    def __init__(self, text, kind, rd=(), wr=(), cost=4, tag=None):
        self.text = text; self.kind = kind
        self.rd = frozenset(rd); self.wr = frozenset(wr)
        self.cost = cost; self.tag = tag
    def __repr__(self): return self.text

def R(p, lo, n=1):
    return [(p, lo + i) for i in range(n)]

def rs(p, lo, n):
    if n == 1: return f"{p}{lo}"
    return f"{p}[{lo}:{lo+n-1}]"

def parse_regs(op):
    op = op.strip()
    neg = op.lstrip("-")
    if neg.startswith("abs(") and neg.endswith(")"): neg = neg[4:-1]
    m = re.fullmatch(r"([vas])(\d+)", neg)
    if m: return [(m.group(1), int(m.group(2)))]
    m = re.fullmatch(r"([vas])\[(\d+):(\d+)\]", neg)
    if m: return [(m.group(1), i) for i in range(int(m.group(2)), int(m.group(3)) + 1)]
    if neg == "vcc": return [("s", 106), ("s", 107)]
    if neg == "m0": return [("s", 124)]
    if neg == "exec": return [("s", 126), ("s", 127)]
    if neg == "scc": return [("scc", 0)]
    return []

TRANS = ("v_exp_f32", "v_log_f32", "v_rcp_f32", "v_rsq_f32", "v_sqrt_f32")

def valu(op, dst, *srcs, extra=""):
    rd = []
    for s in srcs: rd += parse_regs(str(s))
    wr = parse_regs(dst)
    kind = "trans" if op in TRANS else "valu"
    if op.startswith("v_permlane"):
        kind = "permlane"; rd += wr; wr = wr + parse_regs(srcs[0])
    if op in ("v_fmac_f32",): rd += wr
    if op.startswith("v_cmp"): kind = "valu"
    if op == "v_readfirstlane_b32": kind = "readlane"
    text = f"{op} {dst}, " + ", ".join(str(s) for s in srcs) + (" " + extra if extra else "")
    return I(text, kind, rd, wr, cost=8 if kind == "trans" else 4)

def salu(op, dst, *srcs):
    rd = []
    for s in srcs: rd += parse_regs(str(s))
    wr = parse_regs(dst) if dst is not None else []
    if op.startswith("s_cmp") or op in ("s_add_u32", "s_sub_u32", "s_addc_u32", "s_lshl_b32", "s_lshr_b32", "s_and_b32", "s_or_b32", "s_and_b64", "s_or_b64", "s_xor_b32", "s_bitcmp1_b32"):
        wr = wr + [("scc", 0)]
    if op in ("s_cselect_b32", "s_addc_u32", "s_cselect_b64"): rd.append(("scc", 0))
    ops = ([dst] if dst is not None else []) + [str(s) for s in srcs]
    return I(f"{op} " + ", ".join(ops), "salu", rd, wr)

def mfma(d, a, b, c):
    cs = str(c)
    rd = parse_regs(a) + parse_regs(b) + parse_regs(cs)
    i = I(f"v_mfma_f32_32x32x16_bf16 {d}, {a}, {b}, {cs}", "mfma", rd, parse_regs(d), cost=8)
    i.tag = (tuple(parse_regs(a)), tuple(parse_regs(b)), tuple(parse_regs(cs)), tuple(parse_regs(d)))
    return i

def mfma16(d, a, b, c):
    cs = str(c)
    rd = parse_regs(a) + parse_regs(b) + parse_regs(cs)
    i = I(f"v_mfma_f32_16x16x32_bf16 {d}, {a}, {b}, {cs}", "mfma", rd, parse_regs(d), cost=8)
    i.tag = (tuple(parse_regs(a)), tuple(parse_regs(b)), tuple(parse_regs(cs)), tuple(parse_regs(d)))
    return i

def ds_read(kind, dst, addr, off):
    op = {"b128": "ds_read_b128", "tr": "ds_read_b64_tr_b16", "b32": "ds_read_b32", "b64": "ds_read_b64"}[kind]
    assert 0 <= off < 65536, off
    return I(f"{op} {dst}, {addr} offset:{off}", "lds", parse_regs(addr), parse_regs(dst))

def ds_write(kind, addr, src, off):
    op = {"b128": "ds_write_b128", "b32": "ds_write_b32", "b64": "ds_write_b64"}[kind]
    return I(f"{op} {addr}, {src} offset:{off}", "lds", parse_regs(addr) + parse_regs(src), [])

def dma(voff, srd, soff, imm, nt=False):
    assert 0 <= imm < 4096
    return I(f"buffer_load_dwordx4 {voff}, {srd}, {soff} offen offset:{imm}{' nt' if nt else ''} lds", "vmem",
             parse_regs(voff) + parse_regs(srd) + parse_regs(str(soff)) + [("s", 124)], [])

def bload(n, dst, voff, srd, soff, imm, flags=""):
    op = {1: "buffer_load_dword", 2: "buffer_load_dwordx2", 4: "buffer_load_dwordx4"}[n]
    return I(f"{op} {dst}, {voff}, {srd}, {soff} offen offset:{imm}{flags}", "vmem",
             parse_regs(voff) + parse_regs(srd) + parse_regs(str(soff)), parse_regs(dst))

def bstore(n, src, voff, srd, soff, imm, flags=""):
    op = {1: "buffer_store_dword", 2: "buffer_store_dwordx2", 4: "buffer_store_dwordx4"}[n]
    i = I(f"{op} {src}, {voff}, {srd}, {soff} offen offset:{imm}{flags}", "vstore",
          parse_regs(src) + parse_regs(voff) + parse_regs(srd) + parse_regs(str(soff)), [])
    i.tag = tuple(parse_regs(src))
    return i

def wait(vm=None, lgkm=None):
    p = []
    if vm is not None:
        assert 0 <= vm <= 63, vm
        p.append(f"vmcnt({vm})")
    if lgkm is not None:
        assert 0 <= lgkm <= 15, lgkm
        p.append(f"lgkmcnt({lgkm})")
    return I("s_waitcnt " + " ".join(p), "wait")

def nop(n):
    i = I(f"s_nop {n}", "nop"); i.cost = 4 * (n + 1); i.tag = n + 1
    return i
def barrier(): return I("s_barrier", "barrier")
def raw(text, kind="raw", rd=(), wr=()): return I(text, kind, rd, wr)
def label(name): return I(f"{name}:", "label", cost=0)
def comment(t): return I(f"; {t}", "comment", cost=0)

def check_hazards(seq, name=""):
    probs = []
    pos = 0
    last_valu_w = {}
    last_trans_w = {}
    last_mfma_w = {}
    last_mfma_c = {}
    last_valu_sw = {}
    last_salu_m0 = -100
    last_store = {}
    for ins in seq:
        k = ins.kind
        if k in ("label", "comment"): continue
        def need(dist, have, what):
            if have < dist:
                probs.append(f"{name}: {what}: need {dist} have {have}: {ins.text}")
        isvalu = k in ("valu", "trans", "permlane", "readlane")
        if k == "mfma":
            a, b, c, d = ins.tag
            for r in a + b + c:
                pass
        if k == "mfma":
            a, b, c, d = ins.tag
            for r in a + b + c:
                if r in last_valu_w: need(2, pos - last_valu_w[r] - 1, f"VALU->MFMA src {r}")
            for r in a + b:
                if r in last_mfma_w: need(12 if len(last_mfma_w[r][1]) == 16 else 8, pos - last_mfma_w[r][0] - 1, f"MFMA D->MFMA A/B {r}")
            for r in c:
                if r in last_mfma_w:
                    p, D = last_mfma_w[r]
                    if D != c: need(10 if len(D) == 16 else 6, pos - p - 1, f"MFMA D->C overlap {r}")
            for r in d:
                if r not in c and r in last_mfma_w:
                    need(10 if len(last_mfma_w[r][1]) == 16 else 6, pos - last_mfma_w[r][0] - 1, f"MFMA WAW {r}")
        else:
            for r in list(ins.rd) + list(ins.wr):
                if r in last_mfma_w and (isvalu or k in ("lds", "vmem", "vstore")):
                    need(12 if len(last_mfma_w[r][1]) == 16 else 8, pos - last_mfma_w[r][0] - 1, f"MFMA D->{k} {r}")
            if isvalu:
                for r in ins.wr:
                    if r in last_mfma_c: need(last_mfma_c[r][1], pos - last_mfma_c[r][0] - 1, f"MFMA C WAR {r}")
                    if r in last_store: need(2, pos - last_store[r] - 1, f"store data WAR {r}")
                for r in ins.rd:
                    if r in last_trans_w and k != "trans": need(1, pos - last_trans_w[r] - 1, f"trans->valu {r}")
                    if r[0] == "s" and r in last_valu_sw: need(2, pos - last_valu_sw[r] - 1, f"VALU sgpr->VALU read {r}")
            if k == "permlane":
                for r in ins.rd:
                    if r in last_valu_w: need(2, pos - last_valu_w[r] - 1, f"VALU->permlane {r}")
            if k == "readlane":
                for r in ins.rd:
                    if r in last_valu_w: need(1, pos - last_valu_w[r] - 1, f"VALU->readlane {r}")
            if k in ("vmem", "vstore"):
                for r in ins.rd:
                    if r[0] == "s" and r in last_valu_sw: need(5, pos - last_valu_sw[r] - 1, f"VALU sgpr->VMEM {r}")
                if k == "vmem" and "lds" in ins.text.split()[-1:]:
                    need(1, pos - last_salu_m0 - 1, "m0->DMA")
            if k == "lds":
                for r in ins.rd:
                    if r in last_trans_w: need(1, pos - last_trans_w[r] - 1, f"trans->lds {r}")
        if k == "mfma":
            a, b, c, d = ins.tag
            for r in d: last_mfma_w[r] = (pos, d); last_valu_w.pop(r, None); last_trans_w.pop(r, None)
            for r in c: last_mfma_c[r] = (pos, 7 if len(c) == 16 else 3)
        elif isvalu:
            for r in ins.wr:
                if r[0] == "s": last_valu_sw[r] = pos
                else:
                    last_valu_w[r] = pos; last_mfma_w.pop(r, None)
                    if k == "trans": last_trans_w[r] = pos
                    else: last_trans_w.pop(r, None)
        elif k == "salu":
            for r in ins.wr:
                if r == ("s", 124): last_salu_m0 = pos
                last_valu_sw.pop(r, None)
        elif k in ("lds", "vmem"):
            for r in ins.wr:
                last_valu_w.pop(r, None); last_mfma_w.pop(r, None); last_trans_w.pop(r, None)
        elif k == "vstore":
            if len(ins.tag) >= 3:
                for r in ins.tag: last_store[r] = pos
        pos += ins.tag if k == "nop" else 1
    return probs
```

```python
import sys, math, struct, re
from asmlib import *
sys.path.insert(0, "work")
from gcommon import header, kstart, kdesc

OPT = {"bar_delay": 2, "budget": 4, "barcost": 1, "postq": 4, "catchq": 4, "capf": 2, "pf": 1, "NB": 7, "wcap": 2}
DEBUG = ""
MAIN = "fa_main_kernel"
RED = "fa_reduce_kernel"

NKV = 4
TSLOT = 8256
VBASE = 0
KBASE = NKV * TSLOT
WBASE = 2 * NKV * TSLOT
XSLOT = 16 * 1088
XREG = 0
QREG = 3 * XSLOT
LDS_TOTAL = WBASE + QREG + 4 * TSLOT
PSZ = 7 * 18 * 1024
OGRP = 4352
def wqslot(s): return QREG + ((s + 2) % 4) * TSLOT
def xslot(p): return XREG + (p % 3) * XSLOT
def oslot(z): return [XREG, XREG + XSLOT, QREG, XREG + 2 * XSLOT][z % 4]

V_T = [1, 2]
V_K = 3
V_X = 4
V_W = [5, 6]
V_D = [7, 8, 9, 10]
V_L = [11, 12]
V_TS = [13, 14]
V_TMP = [15, 16, 17, 18, 19]
V_NEGM = 20
V_P = 28
V_S = [36, 52]
V_OACC = 68
V_OUTX = 132
V_QF = 164
V_OF = 196
V_AF = 228
VW_Q = [148, 149, 150, 151]
VW_X = [152, 153, 154, 155]
VW_K = [156, 157]
VW_V = [158, 159, 160, 161]
V_Q = [52, 53]
V_DK, V_DV, V_PFO, V_QL = 7, 8, 9, 10
V_DO = 4
V_DQ = 54
V_DX = [55, 56, 57, 58]

S_SRD0, S_SRD1, S_SRD2, S_SRDP = 40, 44, 48, 52
S_W, S_R = 56, 58
S_A, S_B2, S_C = 60, 61, 62
S_TMP = 63
S_KM = [64, 65, 66]
S_VM = [67, 68, 69]
S_G = [76, 77, 78]
S_CMP = 70
S_THR = 73
S_CSC = 72
S_CSC2 = 26
S_T = 74
S_PFQO, S_PFOO = 79, 89
S_PFQ, S_PFO = 48, 80
S_RET = 90
S_KP2, S_VP2, S_A2 = 66, 67, 68
S_MK, S_MV, S_MX, S_MO = 69, 76, 77, 78
S_LOOP = 39
S_SRDQ = 28
S_QFO = 38
QOFF = 48 << 20
S_SRDK, S_SRDV = 80, 92
S_KP, S_VP = 64, 65

SCALE = 1.4426950408889634 / math.sqrt(128.0)
def f32bits(x): return struct.unpack("<I", struct.pack("<f", x))[0]
def tagged(ins, tag):
    ins.tag = tag
    return ins

def outacc(nt, qt, nq):
    idx = nt * nq + qt
    if nq == 1: return rs("a", 4 * idx, 4)
    if idx < 64: return rs("a", 4 * idx, 4)
    return rs("v", V_OUTX + 4 * (idx - 64), 4)
def oacc(s, t, qt): return V_OACC + ((s * 2 + t) * 2 + qt) * 4

class Job:
    def __init__(self, epoch, mk, reads, fixed=()):
        self.epoch = epoch; self.mk = mk; self.reads = reads; self.fixed = fixed
        self.ops = []; self.buf = None; self.pre = []
class Epoch:
    def __init__(self, name, needs):
        self.name = name; self.needs = needs; self.fill = []; self.first = None; self.done_bar = False
class FillQ:
    def __init__(self, items, start, end, isdma=False):
        self.items = list(items); self.start = start; self.end = end; self.isdma = isdma
        self.maxper = OPT.get("dmaper", 2) if isdma else None

class Prog:
    def __init__(self, role):
        self.role = role
        self.nq = 2 if role == "C" else 1
        self.out = []; self.vq = []; self.lq = []; self.nop_id = 0; self.issued = set()
        self.ptr = {}
    def emit(self, ins):
        if isinstance(ins, list):
            for i in ins: self.emit(i)
            return
        if ins.kind == "vmem" and (OPT.get("nodma") or (OPT.get("nokv") and self.role == "C") or (OPT.get("now") and self.role == "W")):
            self.vq.append(ins.tag); self.issued.add(ins.tag)
            return
        if ins.kind == "vmem" and ins.text.endswith("lds") and self.out and ("s", 124) in self.out[-1].wr:
            self.out.append(nop(0))
        self.out.append(ins)
        if ins.kind in ("vmem", "vstore"):
            self.vq.append(ins.tag if ins.kind == "vmem" else "store")
            self.issued.add(ins.tag)
        if ins.kind == "lds":
            self.nop_id += 1
            self.lq.append(self.nop_id)
            return self.nop_id
    def vm_wait_for(self, tags):
        last = -1
        for i, t in enumerate(self.vq):
            if t in tags: last = i
        if last < 0: return None
        return len(self.vq) - 1 - last
    def do_wait(self, vm=None, lgkm=None):
        if vm is not None:
            vm = min(vm, 63)
            if vm == 0: self.vq = []
            elif vm < len(self.vq): self.vq = self.vq[len(self.vq) - vm:]
        if lgkm is not None:
            if lgkm == 0: self.lq = []
            elif lgkm < len(self.lq): self.lq = self.lq[len(self.lq) - lgkm:]
        self.emit(wait(vm, lgkm))
    def move_ptr(self, name, target, sregs=()):
        d = target - self.ptr[name]
        self.ptr[name] = target
        if d == 0: return []
        return [salu("s_add_u32", f"s{r}", f"s{r}", d & 0xffffffff) for r in sregs]

    def run_stream(self, jobs, NB=None, AFB=None, ahead=False):
        NB = NB or OPT["NB"]
        AFB = AFB or V_AF
        n = len(jobs)
        budget = OPT["budget"] if self.nq == 2 else OPT["budget"]
        if self.nq == 1: budget = 6
        for k, j in enumerate(jobs):
            if j.epoch.first is None: j.epoch.first = k
            j.epoch.last = k
        eps_list = []
        for j in jobs:
            if not eps_list or eps_list[-1] is not j.epoch: eps_list.append(j.epoch)
        for ei, e in enumerate(eps_list):
            e.idx = ei; e.vis = False
        free = list(range(NB))
        for k, j in enumerate(jobs): j.want = k % NB
        nextrd = 0
        fq = []
        state = {"lastrd": -10, "dq": None}
        def issue_reads(j):
            b = j.want; free.remove(b); j.buf = b
            base = AFB + 4 * b
            for kind, dst, addr, imm in j.fixed:
                j.ops.append(self.emit(ds_read(kind, dst, addr, imm)))
            sub = 0
            for kind, addr, imm in j.reads:
                w = 4 if kind == "b128" else 2
                j.ops.append(self.emit(ds_read(kind, rs("v", base + sub, w), addr, imm)))
                sub += w
            return len(j.fixed) + len(j.reads)
        def do_barrier(e, g):
            needs = list(e.needs)
            if ahead:
                nxt = eps_list[e.idx + 1] if e.idx + 1 < len(eps_list) else None
                needs = (list(e.needs) if e.idx == 0 else []) + (list(nxt.needs) if nxt else [])
                if nxt: nxt.vis = True
            e.vis = True
            for t in needs: assert t in self.issued, ("not issued", e.name, t)
            vm = self.vm_wait_for(set(needs)) if needs else None
            self.emit(comment(f"--- barrier {e.name}"))
            if ahead and e.idx > 0:
                if vm is not None: self.do_wait(vm=vm)
                self.emit(barrier())
                e.done_bar = True
                activate(e, g)
                return
            if DEBUG == "G":
                self.do_wait(lgkm=0); self.emit(stamp())
            self.do_wait(vm=vm, lgkm=0 if not OPT.get("nolg") else None) if (vm is not None or not OPT.get("nolg")) else None
            if DEBUG == "G": self.emit(stamp())
            if not OPT.get("nobar"): self.emit(barrier())
            if DEBUG == "F": self.emit(stamp())
            e.done_bar = True
            activate(e, g)
        def activate(e, g):
            for q in e.fill:
                if q.start < g: q.start = g
                if q.isdma and state["dq"] is not None:
                    if not state["dq"].items: state["dq"].start = q.start
                    state["dq"].items += q.items
                    state["dq"].end = max(state["dq"].end, q.end)
                elif q.isdma:
                    state["dq"] = q; fq.insert(0, q)
                else: fq.append(q)
        def wait_for(j):
            idx = -1
            for i, o in enumerate(self.lq):
                if o in j.ops: idx = i
            if idx >= 0:
                self.do_wait(lgkm=min(15, len(self.lq) - 1 - idx))
                return 1
            return 0
        def fillers(g, rem, force_ok):
            for q in fq:
                if not q.items or g < q.start: continue
                left_gaps = max(1, q.end - g + 1)
                cost = sum(i.cost for i in q.items) // 4
                must = cost - (left_gaps - 1) * (q.maxper if q.maxper else OPT["capf"])
                if g >= q.end: must = cost
                if not force_ok: must = 0
                lim = q.maxper if q.maxper else 99
                took = 0
                while q.items and (took < lim or took < must):
                    it = q.items[0]
                    c = max(1, it.cost // 4)
                    if isinstance(it.tag, tuple) and it.tag and it.tag[0] == "after" and g < it.tag[1]: break
                    if took >= must and c > rem: break
                    q.items.pop(0)
                    self.emit(it); took += c; rem -= c
            return rem
        def reads(g, quota):
            nonlocal nextrd
            nl = 0
            while nextrd < n:
                j = jobs[nextrd]; e = j.epoch
                if not e.vis: break
                cnt = len(j.fixed) + len(j.reads)
                if j.want in free and (nl + cnt <= quota or (nl == 0 and quota > 0)):
                    c = issue_reads(j); nl += c
                    nextrd += 1
                    state["lastrd"] = g
                else: break
            return nl
        def try_barrier(g):
            if ahead:
                if g + 1 < n:
                    e = jobs[g + 1].epoch
                    if not e.done_bar and e.first == g + 1:
                        do_barrier(e, g); return True
                return False
            if nextrd < n:
                j = jobs[nextrd]; e = j.epoch
                lead = nextrd - (g + 1)
                if not e.done_bar and (g == -1 or g >= state["lastrd"] + OPT["bar_delay"] or lead <= 2):
                    do_barrier(e, g); return True
            return False
        def windowA(g):
            cap = OPT["wcap"]
            lead = nextrd - (g + 1)
            used = reads(g, 2 if lead >= NB - 1 else OPT["catchq"])
            fillers(g, cap - used, False)
        def windowB(g, cap):
            nx = g + 1
            used = 0
            didbar = try_barrier(g)
            if didbar: used += 2 + OPT["barcost"]
            if (not didbar or (ahead and g >= 0)) and nx < n and jobs[nx].ops: used += wait_for(jobs[nx])
            lead = nextrd - (g + 1)
            if g == -1: used += reads(g, 99)
            elif self.nq == 1: used += reads(g, OPT["postq"] if didbar else (OPT["catchq"] if lead < NB - 1 else 2))
            elif didbar or lead < NB - 2: used += reads(g, 2)
            late_wait = nx < n and any(o in self.lq for o in jobs[nx].ops)
            if late_wait: used += 1
            fillers(g, cap - used, True)
            if late_wait: wait_for(jobs[nx])
        windowB(-1, 99)
        for k in range(n):
            j = jobs[k]
            for p in j.pre:
                if callable(p): p(self)
                else: self.emit(p)
            ms = j.mk(rs("v", AFB + 4 * j.buf, 4))
            if len(ms) == 2:
                self.emit(ms[0])
                windowA(k)
                self.emit(ms[1])
                free.append(j.buf)
                windowB(k, OPT["wcap"])
            else:
                self.emit(ms[0])
                free.append(j.buf)
                windowB(k, 6)
        for q in fq:
            while q.items: self.emit(q.items.pop(0))

def dma_KVs(P, kind, n, tag):
    K = kind == "K"
    b = (KBASE if K else VBASE) + ((n % 16) % NKV) * TSLOT
    p1, p2, srd, pat, M = (S_KP, S_KP2, S_SRDK, V_DK, S_MK) if K else (S_VP, S_VP2, S_SRDV, V_DV, S_MV)
    L = [salu("s_add_u32", "m0", f"s{M}", b)]
    L += P.move_ptr(kind + "3", n * 8192, sregs=(p1, p2))
    L.append(tagged(dma(f"v{pat}", rs("s", srd, 4), f"s{p1}", 0, nt=True), tag))
    L.append(tagged(dma(f"v{pat}", rs("s", srd, 4), f"s{p2}", 1024, nt=True), tag))
    return L
def o_tile_info(z):
    s = (z % 16) >> 2
    starts = [0, 2, 4, 6, 9]
    q = z & 3
    return s, starts[q], starts[q + 1]
def dma_O(P, z, tag):
    s, c0, c1 = o_tile_info(z)
    hd = z // 16
    b = WBASE + oslot(z)
    L = []
    for cg in range(c0, c1):
        L.append(salu("s_add_u32", "m0", f"s{S_MO}", b + (cg - c0) * OGRP))
        mv = P.move_ptr("O", (hd * 128 + 32 * s) * 1152 + cg * 128, sregs=(S_C,))
        L += mv
        L.append(tagged(dma(f"v{V_DO}", rs("s", S_SRD2, 4), f"s{S_C}", 0), tag))
    return L
def pf_wq():
    if not OPT["pf"]: return []
    return [tagged(bload(1, "v0", f"v{V_D[2]}", rs("s", S_PFQ, 4), f"s{S_PFQO}", 0), ("pf", 0)),
            salu("s_add_u32", f"s{S_PFQO}", f"s{S_PFQO}", 256)]
def pf_wo():
    if not OPT["pf"]: return []
    return [tagged(bload(1, "v0", f"v{V_PFO}", rs("s", S_SRD2, 4), f"s{S_PFOO}", 0), ("pf", 0)),
            salu("s_add_u32", f"s{S_PFOO}", f"s{S_PFOO}", 128 * 1152)]

def q4acc(h, s, t, qt, nq):
    return (h * 8 + s * 2 + t) * nq * 4 + qt * 4
def xslot4(p): return (p % 2) * XSLOT
def dma_WQ4(P, eps, tag):
    st, h = eps // 4, eps % 4
    b = (eps % 8) * TSLOT
    L = [salu("s_add_u32", "m0", f"s{S_MV}", b)]
    L += P.move_ptr("Q", h * 256 + st * 262144, sregs=(S_A, S_A2))
    L.append(tagged(dma(f"v{V_DQ}", rs("s", S_SRD0, 4), f"s{S_A}", 0), tag))
    L.append(tagged(dma(f"v{V_DQ}", rs("s", S_SRD0, 4), f"s{S_A2}", 1024), tag))
    return L
def dma_X4(P, p, tag):
    b = WBASE + xslot4(p)
    L = [salu("s_add_u32", "m0", f"s{S_MX}", b)]
    L += P.move_ptr("X", p * 128, sregs=(S_B2,))
    for k in range(4):
        L.append(tagged(dma(f"v{V_DX[k]}", rs("s", S_SRD1, 4), f"s{S_B2}", 1088 * k), tag))
    return L

def phase_Q4(P):
    role, nq = P.role, P.nq
    jobs = []
    for m in range(36):
        st = m // 2
        needs = [("Q", 2 * m), ("Q", 2 * m + 1)] + ([("X", st >> 1)] if m % 4 == 0 else [])
        e = Epoch(f"Q{m}", needs)
        xb = V_S[0] + 8 * (st & 1)
        for hh in range(2):
            eps = 2 * m + hh
            h = eps % 4
            first = (h == 0)
            for s in range(4):
                for t in range(2):
                    base = (eps % 8) * TSLOT + (s >> 1) * 1024 + 8 * t
                    addr = f"v{V_T[s & 1]}"
                    reads = [("tr", addr, base), ("tr", addr, base + 512)]
                    fixed = []
                    if first:
                        fixed = [("b128", rs("v", xb + 4 * qt, 4), f"v{V_X}", xslot4(st >> 1) + (st & 1) * 64 + qt * 2176) for qt in range(nq)]
                        first = False
                    def mk(a, s=s, t=t, h=h, xb=xb):
                        L = []
                        for qt in range(nq):
                            acc = rs("a", q4acc(h, s, t, qt, nq), 4)
                            L.append(mfma16(acc, a, rs("v", xb + 4 * qt, 4), acc))
                        return L
                    jobs.append(Job(e, mk, reads, fixed))
        f = 16 * m
        d = []
        if m >= 1:
            d += dma_WQ4(P, 2 * (m + 3), ("Q", 2 * (m + 3))) + dma_WQ4(P, 2 * (m + 3) + 1, ("Q", 2 * (m + 3) + 1))
        if m % 4 == 0 and m >= 4: d += dma_X4(P, m // 4 + 1, ("X", m // 4 + 1))
        if d: e.fill.append(FillQ(d, f - 1, f + 10, isdma=True))
    P.run_stream(jobs, NB=8, AFB=V_OACC, ahead=True)

def q4_finish(P):
    role, nq = P.role, P.nq
    P.do_wait(vm=0, lgkm=0)
    P.emit(barrier())
    for kind, n in (("K", 0), ("K", 1), ("V", 0), ("K", 2), ("V", 1), ("K", 3)):
        P.emit(dma_KVs(P, kind, n, (kind, n)))
    P.emit(valu("v_mov_b32", f"v{V_DO}", f"v{V_DX[0] + 8}"))
    for z in range(3): P.emit(dma_O(P, z, ("O", z)))
    P.emit(nop(7))
    T = V_OACC
    v = V_TMP[0]
    P.emit(valu("v_mbcnt_lo_u32_b32", f"v{v}", -1, 0))
    P.emit(valu("v_mbcnt_hi_u32_b32", f"v{v}", -1, f"v{v}"))
    for h in range(4):
        dstbase = V_QF if h == 0 else V_OF
        for s in range(4):
            for qt in range(nq):
                for t in range(2):
                    a = q4acc(h, s, t, qt, nq)
                    tb = T + ((s * 2 + qt) * 2 + t) * 4
                    for r in range(4): P.emit(valu("v_accvgpr_read_b32", f"v{tb + r}", f"a{a + r}"))
                    for r in range(4): P.emit(valu("v_accvgpr_write_b32", f"a{a + r}", 0))
                    for r in range(0, 4, 2):
                        P.emit(valu("v_pk_mul_f32", rs("v", tb + r, 2), rs("v", tb + r, 2), rs("s", S_CSC2, 2)))
                    for hh in range(2):
                        P.emit(valu("v_cvt_pk_bf16_f32", f"v{dstbase + (s * 2 + qt) * 4 + 2 * t + hh}", f"v{tb + 2 * hh}", f"v{tb + 2 * hh + 1}"))
        if h > 0:
            for s in range(4):
                for qt in range(nq):
                    fr = s * 2 + qt
                    P.emit(bstore(4, rs("v", V_OF + fr * 4, 4), f"v{V_QL}", rs("s", S_SRDQ, 4), f"s{S_QFO}", (fr % 4) * 1024) if fr < 4 else
                           bstore(4, rs("v", V_OF + fr * 4, 4), f"v{V_QL}", rs("s", S_SRDQ, 4), f"s{S_T}", (fr % 4) * 1024))
            P.emit(salu("s_add_u32", f"s{S_QFO}", f"s{S_QFO}", 8192))
            P.emit(salu("s_add_u32", f"s{S_T}", f"s{S_T}", 8192))
    if role == "W":
        for r in range(128, 144): P.emit(valu("v_accvgpr_write_b32", f"a{r}", 0))
    else:
        for r in range(32): P.emit(valu("v_mov_b32", f"v{V_OUTX + r}", 0))
    nst = 3 * 4 * nq
    P.do_wait(vm=0)
    for r in range(32): P.emit(valu("v_mov_b32", f"v{V_OF + r}", 0))
    P.emit(salu("s_mov_b32", f"s{S_QFO}", 0))
    P.emit(salu("s_movk_i32", f"s{S_T}", 4096))

def qf_reload(P):
    L = []
    for s in range(4):
        for qt in range(P.nq):
            fr = s * 2 + qt
            so = S_QFO if fr < 4 else S_T
            L.append(tagged(bload(4, rs("v", V_QF + fr * 4, 4), f"v{V_QL}", rs("s", S_SRDQ, 4), f"s{so}", (fr % 4) * 1024), ("QF", 1)))
    L.append(salu("s_add_u32", f"s{S_QFO}", f"s{S_QFO}", 8192))
    L.append(salu("s_add_u32", f"s{S_T}", f"s{S_T}", 8192))
    return L

class Ctx:
    def __init__(self): self.slow = {}

def xlane_reduce(op, reg, tmp):
    L = []
    L.append(valu("v_mov_b32", f"v{tmp}", f"v{reg}"))
    L.append(nop(1))
    L.append(valu("v_permlane32_swap_b32", f"v{reg}", f"v{tmp}"))
    L.append(valu(op, f"v{reg}", f"v{reg}", f"v{tmp}"))
    L.append(valu("v_mov_b32", f"v{tmp}", f"v{reg}"))
    L.append(nop(1))
    L.append(valu("v_permlane16_swap_b32", f"v{reg}", f"v{tmp}"))
    L.append(valu(op, f"v{reg}", f"v{reg}", f"v{tmp}"))
    return L

def max8(S, dst, T):
    return [valu("v_max3_f32", f"v{dst}", f"v{S}", f"v{S+1}", f"v{S+2}"),
            valu("v_max3_f32", f"v{T}", f"v{S+3}", f"v{S+4}", f"v{S+5}"),
            valu("v_max3_f32", f"v{dst}", f"v{dst}", f"v{S+6}", f"v{S+7}"),
            valu("v_max_f32", f"v{dst}", f"v{dst}", f"v{T}")]

def exp_items(S, nq, P_after):
    T = V_TMP
    L = []
    n = 0
    for qt in range(nq):
        for e in range(4):
            a = S + qt * 8 + 2 * e
            t0, t1 = T[1 + (2 * n) % 4], T[1 + (2 * n + 1) % 4]; n += 1
            L.append(valu("v_exp_f32", f"v{t0}", f"v{a}"))
            L.append(valu("v_exp_f32", f"v{t1}", f"v{a + 1}"))
            if e == 0: L.append(valu("v_mov_b32", f"v{V_TS[qt]}", f"v{t0}"))
            else: L.append(valu("v_add_f32", f"v{V_TS[qt]}", f"v{V_TS[qt]}", f"v{t0}"))
            L.append(valu("v_add_f32", f"v{V_TS[qt]}", f"v{V_TS[qt]}", f"v{t1}"))
            cv = valu("v_cvt_pk_bf16_f32", f"v{V_P + 4 * qt + e}", f"v{t0}", f"v{t1}")
            if P_after is not None: cv.tag = ("after", P_after)
            L.append(cv)
    return L

def first_tile_items(nq):
    S = V_S[0]; T = V_TMP
    L = []
    for qt in range(nq):
        L += max8(S + 8 * qt, T[0], T[1])
        L += xlane_reduce("v_max_f32", T[0], T[1])
        for r in range(4): L.append(valu("v_sub_f32", f"v{V_NEGM + 4 * qt + r}", 0, f"v{T[0]}"))
        for r in range(8): L.append(valu("v_sub_f32", f"v{S + 8 * qt + r}", f"v{S + 8 * qt + r}", f"v{T[0]}"))
        L.append(valu("v_mov_b32", f"v{V_L[qt]}", 0))
    return L

def make_check(ctx, i, name, nq):
    uid = f"{name}{i}"
    def f(P):
        if i > 0:
            if nq == 2:
                P.emit(valu("v_max_f32", f"v{V_TMP[0]}", f"v{V_TS[0]}", f"v{V_TS[1]}"))
                P.out.pop()
                P.emit(valu("v_add_f32", f"v{V_TMP[0]}", f"v{V_TS[0]}", f"v{V_TS[1]}"))
                src_ = V_TMP[0]
            else: src_ = V_TS[0]
            P.emit(valu("v_cmp_nle_f32", rs("s", S_CMP, 2), f"v{src_}", f"s{S_THR}"))
            P.emit(salu("s_cmp_lg_u64", None, rs("s", S_CMP, 2), 0))
            if not OPT.get("noslow"): P.emit(raw(f"s_cbranch_scc1 L_tr_{uid}", "branch"))
            P.emit(label(f"L_back_{uid}"))
        for qt in range(nq): P.emit(valu("v_add_f32", f"v{V_L[qt]}", f"v{V_L[qt]}", f"v{V_TS[qt]}"))
        if i == 0: P.emit(nop(0))
    if i > 0: ctx.slow[uid] = i & 1
    return f

def slow_routine(par, nq, lab):
    S = V_S[par]; S2 = V_S[1 - par]; T = V_TMP
    B = [label(lab), nop(7), nop(7)]
    for qt in range(nq):
        B += max8(S + 8 * qt, T[0], T[1])
        B += xlane_reduce("v_max_f32", T[0], T[1])
        B.append(valu("v_max_f32", f"v{T[0]}", 0, f"v{T[0]}"))
        B.append(valu("v_sub_f32", f"v{T[1]}", 0, f"v{T[0]}"))
        B.append(valu("v_exp_f32", f"v{T[1]}", f"v{T[1]}"))
        for r in range(4): B.append(valu("v_sub_f32", f"v{V_NEGM + 4 * qt + r}", f"v{V_NEGM + 4 * qt + r}", f"v{T[0]}"))
        B.append(valu("v_mul_f32", f"v{V_L[qt]}", f"v{V_L[qt]}", f"v{T[1]}"))
        for s in range(4):
            for t in range(2):
                for r in range(4):
                    a = oacc(s, t, qt) + r
                    B.append(valu("v_mul_f32", f"v{a}", f"v{a}", f"v{T[1]}"))
        for r in range(8):
            B.append(valu("v_sub_f32", f"v{S + 8 * qt + r}", f"v{S + 8 * qt + r}", f"v{T[0]}"))
            B.append(valu("v_sub_f32", f"v{S2 + 8 * qt + r}", f"v{S2 + 8 * qt + r}", f"v{T[0]}"))
    B += exp_items(S, nq, None)
    B.append(nop(1))
    B.append(raw(f"s_setpc_b64 s[{S_RET}:{S_RET+1}]", "branch"))
    return B
def trampoline(uid, slowlab):
    return [label(f"L_tr_{uid}"),
            raw(f"s_getpc_b64 s[{S_RET}:{S_RET+1}]", "salu"),
            label(f"L_pc_{uid}"),
            raw(f"s_add_u32 s{S_RET}, s{S_RET}, L_back_{uid}-L_pc_{uid}", "salu"),
            raw(f"s_addc_u32 s{S_RET+1}, s{S_RET+1}, -1", "salu"),
            raw(f"s_branch {slowlab}", "branch")]

def qk_jobs(e, i, nq):
    jobs = []
    S = V_S[i & 1]
    slot = i % NKV
    for kt in range(2):
        for s in range(4):
            def mk(a, kt=kt, s=s):
                L = []
                for qt in range(nq):
                    d = rs("v", S + qt * 8 + kt * 4, 4)
                    c = d if s > 0 else ("0" if i == 0 else rs("v", V_NEGM + 4 * qt, 4))
                    L.append(mfma16(d, a, rs("v", V_QF + (s * 2 + qt) * 4, 4), c))
                return L
            jobs.append(Job(e, mk, [("b128", f"v{V_K}", slot * TSLOT + (s >> 1) * 1024 + (s & 1) * 64 + kt * 512)]))
    return jobs
def pv_jobs(e, i, nq):
    jobs = []
    slot = i % NKV
    for s in range(4):
        for t in range(2):
            base = VBASE + slot * TSLOT + (s >> 1) * 1024 + 8 * t
            addr = f"v{V_T[s & 1]}"
            def mk(a, s=s, t=t):
                L = []
                for qt in range(nq):
                    acc = rs("v", oacc(s, t, qt), 4)
                    L.append(mfma16(acc, a, rs("v", V_P + 4 * qt, 4), "0" if i == 0 else acc))
                return L
            jobs.append(Job(e, mk, [("tr", addr, base), ("tr", addr, base + 512)]))
    return jobs
def o_jobs(e, z, nq):
    jobs = []
    s, c0, c1 = o_tile_info(z)
    for cg in range(c0, c1):
        for q4 in range(4):
            nt = 4 * cg + q4
            base = oslot(z) + (cg - c0) * OGRP + (q4 >> 1) * 64
            def mk(a, nt=nt):
                L = []
                for qt in range(nq):
                    acc = outacc(nt, qt, nq)
                    L.append(mfma16(acc, a, rs("v", V_OF + (s * 2 + qt) * 4, 4), acc))
                return L
            jobs.append(Job(e, mk, [("tr", f"v{V_W[q4 & 1]}", base), ("tr", f"v{V_W[q4 & 1]}", base + 512)]))
    return jobs

def phase_A(P, ctx, name):
    role, nq = P.role, P.nq
    jobs = []; eps = []
    e = Epoch(f"{name}pre", [("K", 0), ("QF", 0)]); eps.append(e)
    jobs += qk_jobs(e, 0, nq)
    starts = {}; qkfirst = {}
    for i in range(17):
        needs = []
        if i >= 1: needs.append(("V", i - 1))
        if i + 1 <= 15: needs.append(("K", i + 1))
        if i <= 15: needs.append(("O", i))
        e = Epoch(f"{name}{i}", needs); eps.append(e)
        starts[i] = len(jobs)
        if i >= 1:
            pj = pv_jobs(e, i - 1, nq)
            pj[0].pre.append(make_check(ctx, i - 1, name, nq))
            jobs += pj
        if i <= 15: jobs += o_jobs(e, i, nq)
        if i + 1 <= 15:
            qkfirst[i + 1] = len(jobs)
            jobs += qk_jobs(e, i + 1, nq)
    starts[17] = len(jobs)
    for i in range(17):
        e = eps[i + 1]; f = starts[i]
        if i <= 15:
            if i == 0:
                e.fill.append(FillQ(first_tile_items(nq), f + 1, qkfirst[1] - 2))
                st = qkfirst[1] - 1
            else: st = f + 1
            pa = f + 7 if i >= 1 else None
            e.fill.append(FillQ(exp_items(V_S[i & 1], nq, pa), st, starts[i + 1] - 1))
        d = []
        if i <= 15:
            d += dma_O(P, i + 3, ("O", i + 3))
            d += dma_KVs(P, "K", i + 4, ("K", i + 4))
            d += dma_KVs(P, "V", i + 2, ("V", i + 2))
        if i == 1: d += pf_wo()
        if i == 15: d += qf_reload(P)
        if d:
            late = OPT.get("late", 1)
            endg = starts[i + 1] - 9
            st0 = max(f - 8, endg - OPT.get("dmawin", 8)) if late else f - 8
            e.fill.insert(0, FillQ(d, st0, endg, isdma=True))
    P.run_stream(jobs, ahead=bool(OPT.get("aheadA", 0)))
    def rb(t):
        if isinstance(t, tuple) and t[0] in ("K", "V", "O") and t[1] >= 16: return (t[0], t[1] - 16)
        if isinstance(t, tuple) and t[0] == "QF" and t[1] == 1: return ("QF", 0)
        return ("old", 0)
    P.vq = [rb(t) for t in P.vq]
    P.issued = set(rb(t) for t in P.issued)
    P.ptr["K3"] -= 16 * 8192; P.ptr["V3"] -= 16 * 8192
    P.ptr["O"] -= 128 * 1152
    T = V_TMP
    P.emit(nop(3))
    for qt in range(nq):
        P.emit(xlane_reduce("v_add_f32", V_L[qt], T[0]))
        P.emit(valu("v_rcp_f32", f"v{T[1 + qt]}", f"v{V_L[qt]}"))
    P.emit(nop(3))
    for s in range(4):
        for qt in range(nq):
            for t in range(2):
                a = oacc(s, t, qt)
                for r in range(4):
                    P.emit(valu("v_mul_f32", f"v{a + r}", f"v{a + r}", f"v{T[1 + qt]}"))
                for h in range(2):
                    P.emit(valu("v_cvt_pk_bf16_f32", f"v{V_OF + (s * 2 + qt) * 4 + 2 * t + h}", f"v{a + 2 * h}", f"v{a + 2 * h + 1}"))
    P.emit(nop(1))

def _olast():
    s, c0, c1 = o_tile_info(15)
    return (32 * s) * 1152 + (c1 - 1) * 128
O_LAST = _olast()
def _o2():
    s, c0, c1 = o_tile_info(2)
    return (32 * s) * 1152 + (c1 - 1) * 128
O2_LAST = _o2()

def phase_O(P):
    role, nq = P.role, P.nq
    jobs = []
    for z in range(16):
        e = Epoch(f"O{z}", [("O", z)])
        f = len(jobs)
        jobs += o_jobs(e, z, nq)
        if z + 3 <= 15:
            e.fill.append(FillQ(dma_O(P, z + 3, ("O", z + 3)), f - 8, f + 2, isdma=True))
    P.run_stream(jobs)
    P.emit(nop(7))
    T = V_S[0]
    v = V_TMP[0]
    P.emit(valu("v_mbcnt_lo_u32_b32", f"v{v}", -1, 0))
    P.emit(valu("v_mbcnt_hi_u32_b32", f"v{v}", -1, f"v{v}"))
    P.emit(valu("v_lshlrev_b32", f"v{v}", 4, f"v{v}"))
    P.emit(salu("s_mul_i32", f"s{S_T}", f"s{S_W}", 2 * 18 * 1024))
    stf = {0: "", 1: " nt", 2: " sc1", 3: " sc0 sc1", 4: " sc0 sc1 nt"}[OPT.get("stnt", 0)]
    cnt = 0
    for qt in range(nq):
        for ntp in range(18):
            tb = T + 16 * (cnt % 2)
            srcs = []
            for h in range(2):
                a = outacc(2 * ntp + h, qt, nq)
                regs = parse_regs(a)
                if regs[0][0] == "a":
                    for r in range(4):
                        P.emit(valu("v_accvgpr_read_b32", f"v{tb + 4 * h + r}", f"a{regs[r][1]}"))
                    srcs.append(tb + 4 * h)
                else: srcs.append(regs[0][1])
            for h in range(2):
                for d in range(2):
                    P.emit(valu("v_cvt_pk_bf16_f32", f"v{tb + 8 + 2 * h + d}", f"v{srcs[h] + 2 * d}", f"v{srcs[h] + 2 * d + 1}"))
            off = cnt * 1024
            if off % 4096 == 0 and off > 0: P.emit(salu("s_add_u32", f"s{S_T}", f"s{S_T}", 4096))
            if not OPT.get("nost"): P.emit(bstore(4, rs("v", tb + 8, 4), f"v{v}", rs("s", S_SRDP, 4), f"s{S_T}", off % 4096, flags=stf))
            cnt += 1

def prologue_common():
    L = []
    A = L.append
    A(raw("s_cmp_ge_u32 s2, 256", "salu", wr=[("scc",0)]))
    A(raw("s_cbranch_scc1 L_end", "branch"))
    A(raw("s_load_dwordx16 s[4:19], s[0:1], 0", "smem"))
    A(raw("s_load_dwordx4 s[20:23], s[0:1], 64", "smem"))
    A(raw("s_load_dwordx2 s[24:25], s[0:1], 96", "smem"))
    A(valu("v_lshrrev_b32", "v1", 6, "v0"))
    A(valu("v_and_b32", f"v{V_TMP[0]}", 63, "v0"))
    A(valu("v_readfirstlane_b32", f"s{S_W}", "v1"))
    A(salu("s_and_b32", "s30", "s2", 7))
    A(salu("s_lshr_b32", "s31", "s2", 3))
    A(salu("s_lshr_b32", "s32", "s30", 2))
    A(salu("s_and_b32", "s33", "s30", 3))
    A(salu("s_lshl_b32", "s33", "s33", 1))
    A(salu("s_and_b32", "s34", "s31", 1))
    A(salu("s_add_u32", "s33", "s33", "s34"))
    A(salu("s_lshr_b32", "s34", "s31", 1))
    A(salu("s_mov_b32", f"s{S_R}", 0))
    A(raw("s_waitcnt lgkmcnt(0)", "wait"))
    A(salu("s_cmp_eq_u32", None, "s32", 0))
    for d, a, b in ((4, 4, 14), (6, 6, 16), (8, 8, 18), (10, 10, 20), (12, 12, 22)):
        A(salu("s_cselect_b32", f"s{d}", f"s{a}", f"s{b}"))
        A(salu("s_cselect_b32", f"s{d+1}", f"s{a+1}", f"s{b+1}"))
    return L

def patterns_common():
    L = []
    A = L.append
    A(salu("s_mov_b32", f"s{S_CSC}", hex(f32bits(SCALE))))
    A(salu("s_mov_b32", f"s{S_THR}", hex(f32bits(4096.0))))
    A(salu("s_mul_i32", "s35", "s2", PSZ))
    A(salu("s_add_u32", f"s{S_SRDP}", "s24", "s35"))
    A(salu("s_addc_u32", f"s{S_SRDP+1}", "s25", 0))
    A(salu("s_mov_b32", f"s{S_SRDP+2}", PSZ))
    A(salu("s_mov_b32", f"s{S_SRDP+3}", "0x00020000"))
    A(salu("s_mov_b32", f"s{S_CSC2}", hex(f32bits(SCALE))))
    A(salu("s_mov_b32", f"s{S_CSC2+1}", hex(f32bits(SCALE))))
    A(salu("s_lshl_b32", "s35", "s2", 2))
    A(salu("s_add_u32", "s35", "s35", f"s{S_W}"))
    A(salu("s_mul_i32", "s35", "s35", 3 * 8192))
    A(salu("s_add_u32", "s35", "s35", QOFF))
    A(salu("s_add_u32", f"s{S_SRDQ}", "s24", "s35"))
    A(salu("s_addc_u32", f"s{S_SRDQ+1}", "s25", 0))
    A(salu("s_movk_i32", f"s{S_SRDQ+2}", 3 * 8192))
    A(salu("s_mov_b32", f"s{S_SRDQ+3}", "0x00020000"))
    A(salu("s_mov_b32", f"s{S_QFO}", 0))
    A(salu("s_movk_i32", f"s{S_T}", 4096))
    l, g, t1, t2, t3 = V_TMP
    A(valu("v_lshrrev_b32", f"v{g}", 4, f"v{l}"))
    A(valu("v_bfe_u32", f"v{t1}", f"v{l}", 2, 2))
    A(valu("v_and_b32", f"v{t2}", 3, f"v{l}"))
    A(salu("s_movk_i32", "s35", 2056))
    A(valu("v_mul_lo_u32", f"v{V_T[0]}", "s35", f"v{g}"))
    A(valu("v_lshl_add_u32", f"v{V_T[0]}", f"v{t1}", 7, f"v{V_T[0]}"))
    A(valu("v_lshrrev_b32", f"v{t3}", 1, f"v{t1}"))
    A(valu("v_lshl_add_u32", f"v{V_T[0]}", f"v{t3}", 6, f"v{V_T[0]}"))
    A(valu("v_lshl_add_u32", f"v{V_T[0]}", f"v{t2}", 4, f"v{V_T[0]}"))
    A(valu("v_xor_b32", f"v{t3}", 1, f"v{t3}"))
    A(valu("v_mul_lo_u32", f"v{V_T[1]}", "s35", f"v{g}"))
    A(valu("v_lshl_add_u32", f"v{V_T[1]}", f"v{t1}", 7, f"v{V_T[1]}"))
    A(valu("v_lshl_add_u32", f"v{V_T[1]}", f"v{t3}", 6, f"v{V_T[1]}"))
    A(valu("v_lshl_add_u32", f"v{V_T[1]}", f"v{t2}", 4, f"v{V_T[1]}"))
    A(salu("s_movk_i32", "s35", 1088))
    A(valu("v_mul_lo_u32", f"v{V_W[0]}", "s35", f"v{g}"))
    A(valu("v_lshl_add_u32", f"v{V_W[0]}", f"v{t1}", 7, f"v{V_W[0]}"))
    A(valu("v_lshrrev_b32", f"v{t3}", 1, f"v{t1}"))
    A(valu("v_lshl_add_u32", f"v{V_W[0]}", f"v{t3}", 5, f"v{V_W[0]}"))
    A(valu("v_lshl_add_u32", f"v{V_W[0]}", f"v{t2}", 3, f"v{V_W[0]}"))
    A(valu("v_add_u32", f"v{V_W[0]}", WBASE, f"v{V_W[0]}"))
    A(valu("v_xor_b32", f"v{V_W[1]}", 32, f"v{V_W[0]}"))
    A(valu("v_lshlrev_b32", f"v{V_K}", 11, f"v{t1}"))
    A(valu("v_lshrrev_b32", f"v{t3}", 1, f"v{t1}"))
    A(valu("v_lshl_add_u32", f"v{V_K}", f"v{t3}", 6, f"v{V_K}"))
    A(valu("v_lshl_add_u32", f"v{V_K}", f"v{t2}", 7, f"v{V_K}"))
    A(valu("v_and_b32", f"v{t3}", 2, f"v{t2}"))
    A(valu("v_xor_b32", f"v{t3}", f"v{t3}", f"v{g}"))
    A(valu("v_lshl_add_u32", f"v{V_K}", f"v{t3}", 4, f"v{V_K}"))
    A(valu("v_add_u32", f"v{V_K}", KBASE, f"v{V_K}"))
    A(valu("v_and_b32", f"v{t2}", 15, f"v{l}"))
    A(valu("v_lshrrev_b32", f"v{t1}", 3, f"v{t2}"))
    A(salu("s_lshl_b32", "s36", f"s{S_W}", 2))
    A(valu("v_add_u32", f"v{t1}", "s36", f"v{t1}"))
    A(valu("v_mul_lo_u32", f"v{V_X}", "s35", f"v{t1}"))
    A(valu("v_and_b32", f"v{t3}", 7, f"v{t2}"))
    A(valu("v_lshl_add_u32", f"v{V_X}", f"v{t3}", 7, f"v{V_X}"))
    A(valu("v_and_b32", f"v{t3}", 2, f"v{t2}"))
    A(valu("v_xor_b32", f"v{t3}", f"v{t3}", f"v{g}"))
    A(valu("v_lshl_add_u32", f"v{V_X}", f"v{t3}", 4, f"v{V_X}"))
    A(valu("v_add_u32", f"v{V_X}", WBASE + XREG, f"v{V_X}"))
    return L

BIAS = 4096
def prologue_role(P):
    role = P.role
    A = P.emit
    l, g, t1, t2, t3 = V_TMP
    A(valu("v_lshrrev_b32", f"v{t1}", 3, f"v{l}"))
    A(valu("v_and_b32", f"v{t2}", 7, f"v{l}"))
    A(salu("s_lshl_b32", "s35", "s33", 10))
    A(salu("s_add_u32", f"s{S_SRD0}", "s10", "s35"))
    A(salu("s_addc_u32", f"s{S_SRD0+1}", "s11", 0))
    A(salu("s_sub_u32", f"s{S_SRD0}", f"s{S_SRD0}", BIAS))
    A(salu("s_subb_u32", f"s{S_SRD0+1}", f"s{S_SRD0+1}", 0))
    A(salu("s_sub_u32", f"s{S_SRD0+2}", 576 * 8192 + BIAS, "s35"))
    A(salu("s_mov_b32", f"s{S_SRD0+3}", "0x00020000"))
    A(salu("s_mul_i32", "s35", "s34", 129024))
    A(salu("s_add_u32", f"s{S_SRD1}", "s4", "s35"))
    A(salu("s_addc_u32", f"s{S_SRD1+1}", "s5", 0))
    A(salu("s_mov_b32", f"s{S_SRD1+2}", 129024))
    A(salu("s_mov_b32", f"s{S_SRD1+3}", "0x00020000"))
    A(valu("v_bfe_u32", f"v{t3}", f"v{t1}", 1, 1))
    A(valu("v_lshlrev_b32", f"v{g}", 2, f"v{t3}"))
    A(valu("v_xor_b32", f"v{g}", f"v{g}", f"v{t2}"))
    A(valu("v_lshlrev_b32", f"v{g}", 4, f"v{g}"))
    A(valu("v_lshlrev_b32", f"v{t3}", 1, f"v{t3}"))
    A(valu("v_xor_b32", f"v{t3}", f"v{t3}", f"v{t2}"))
    A(valu("v_lshlrev_b32", f"v{t3}", 4, f"v{t3}"))
    A(valu("v_lshl_add_u32", f"v{V_DQ}", f"v{t1}", 13, f"v{g}"))
    A(salu("s_lshl_b32", "s35", f"s{S_W}", 16))
    A(valu("v_add_u32", f"v{V_DQ}", "s35", f"v{V_DQ}"))
    A(salu("s_lshl_b32", "s35", f"s{S_W}", 11))
    A(valu("v_lshl_add_u32", f"v{V_DV}", f"v{t1}", 8, f"v{g}"))
    A(valu("v_add_u32", f"v{V_DV}", "s35", f"v{V_DV}"))
    A(valu("v_lshl_add_u32", f"v{V_DK}", f"v{t1}", 8, f"v{t3}"))
    A(valu("v_add_u32", f"v{V_DK}", "s35", f"v{V_DK}"))
    A(salu("s_movk_i32", "s35", 1152))
    A(valu("v_mul_lo_u32", f"v{g}", "s35", f"v{t1}"))
    A(valu("v_add_u32", f"v{g}", f"v{g}", f"v{t3}"))
    A(salu("s_mul_i32", "s35", f"s{S_W}", 36864))
    for k in range(4):
        A(salu("s_add_u32", "s36", "s35", k * (9216 - 1088)))
        A(valu("v_add_u32", f"v{V_DX[k]}", "s36", f"v{g}"))
    A(salu("s_mul_i32", "s35", f"s{S_W}", 9216))
    A(valu("v_add_u32", f"v{V_DX[0] + 8}", "s35", f"v{g}"))
    A(salu("s_mul_i32", f"s{S_MV}", f"s{S_W}", 2056))
    A(salu("s_lshl_b32", f"s{S_MK}", f"s{S_W}", 11))
    A(salu("s_lshr_b32", "s35", f"s{S_W}", 1))
    A(salu("s_lshl_b32", "s35", "s35", 6))
    A(salu("s_add_u32", f"s{S_MK}", f"s{S_MK}", "s35"))
    A(salu("s_mul_i32", f"s{S_MX}", f"s{S_W}", 4352))
    A(salu("s_mul_i32", f"s{S_MO}", f"s{S_W}", 1088))
    A(salu("s_movk_i32", f"s{S_A}", BIAS))
    A(salu("s_movk_i32", f"s{S_A2}", BIAS - 896))
    A(salu("s_mov_b32", f"s{S_B2}", 0))
    P.ptr["Q"] = 0; P.ptr["X"] = 0
    A(dma_X4(P, 0, ("X", 0)))
    for n_ in range(8): A(dma_WQ4(P, n_, ("Q", n_)))
    A(dma_X4(P, 1, ("X", 1)))
    if OPT["pf"]:
        A(salu("s_mul_i32", "s35", "s34", 288))
        A(salu("s_mul_i32", "s36", f"s{S_W}", 72))
        A(salu("s_add_u32", "s35", "s35", "s36"))
        for k in range(2):
            A(valu("v_min_u32", f"v{t3}", 63 if k == 0 else 7, f"v{l}"))
            A(valu("v_add_u32", f"v{t3}", "s35", f"v{t3}"))
            A(valu("v_lshrrev_b32", f"v{g}", 3, f"v{t3}"))
            A(valu("v_lshlrev_b32", f"v{g}", 13, f"v{g}"))
            A(valu("v_and_b32", f"v{t3}", 7, f"v{t3}"))
            A(valu("v_lshl_add_u32", f"v{g}", f"v{t3}", 7, f"v{g}"))
            A(valu("v_add_u32", f"v{g}", BIAS, f"v{g}"))
            A(tagged(bload(1, "v0", f"v{g}", rs("s", S_SRD0, 4), 0, 0), ("pf", 0)))
            A(salu("s_add_u32", "s35", "s35", 64))
        A(salu("s_and_b32", "s35", "s33", 1))
        A(salu("s_lshl_b32", "s35", "s35", 2))
        A(salu("s_add_u32", "s35", "s35", f"s{S_W}"))
        A(salu("s_mul_i32", "s35", "s35", 126 * 128))
        A(valu("v_lshlrev_b32", f"v{g}", 7, f"v{l}"))
        for k in range(2):
            A(tagged(bload(1, "v0", f"v{g}", rs("s", S_SRD1, 4), "s35", 0), ("pf", 1)))
            A(salu("s_add_u32", "s35", "s35", 62 * 128))
    A(salu("s_lshl_b32", "s35", "s34", 5))
    A(salu("s_lshl_b32", "s36", "s33", 2))
    A(salu("s_add_u32", "s35", "s35", "s36"))
    A(salu("s_lshl_b32", "s36", "s35", 17))
    A(salu("s_lshr_b32", "s37", "s35", 15))
    for srd, p in ((S_SRDK, 6), (S_SRDV, 8)):
        A(salu("s_add_u32", f"s{srd}", f"s{p}", "s36"))
        A(salu("s_addc_u32", f"s{srd+1}", f"s{p+1}", "s37"))
        A(salu("s_sub_u32", f"s{srd}", f"s{srd}", BIAS))
        A(salu("s_subb_u32", f"s{srd+1}", f"s{srd+1}", 0))
        A(salu("s_mov_b32", f"s{srd+2}", 524288 + BIAS))
        A(salu("s_mov_b32", f"s{srd+3}", "0x00020000"))
    A(salu("s_movk_i32", f"s{S_KP}", BIAS)); A(salu("s_movk_i32", f"s{S_KP2}", BIAS - 896))
    A(salu("s_movk_i32", f"s{S_VP}", BIAS)); A(salu("s_movk_i32", f"s{S_VP2}", BIAS - 896))
    P.ptr["K3"] = 0; P.ptr["V3"] = 0
    A(salu("s_mul_i32", "s35", "s33", 512 * 1152))
    A(salu("s_add_u32", f"s{S_SRD2}", "s12", "s35"))
    A(salu("s_addc_u32", f"s{S_SRD2+1}", "s13", 0))
    A(salu("s_mov_b32", f"s{S_SRD2+2}", 512 * 1152))
    A(salu("s_mov_b32", f"s{S_SRD2+3}", "0x00020000"))
    A(salu("s_mul_i32", "s35", "s34", 72))
    A(salu("s_mul_i32", "s36", f"s{S_W}", 18))
    A(salu("s_add_u32", "s35", "s35", "s36"))
    A(valu("v_min_u32", f"v{t3}", 17, f"v{l}"))
    A(valu("v_add_u32", f"v{t3}", "s35", f"v{t3}"))
    A(valu("v_lshlrev_b32", f"v{V_PFO}", 7, f"v{t3}"))
    A(salu("s_mov_b32", f"s{S_PFOO}", 0))
    A(salu("s_mov_b32", f"s{S_C}", (-147456) & 0xffffffff))
    P.ptr["O"] = 0
    A(valu("v_lshlrev_b32", f"v{V_QL}", 4, f"v{l}"))
    A(patterns_common())
    nacc = 256 if role == "C" else 128
    for r in range(nacc): A(valu("v_accvgpr_write_b32", f"a{r}", 0))

def build_role(role, ctx):
    P = Prog(role)
    segs = {}
    def cut(name):
        segs.setdefault(name, []).append(P.out); P.out = []
    prologue_role(P); cut("pro")
    phase_Q4(P); cut("Q")
    q4_finish(P)
    for t in [("QF", 0)]: P.issued.add(t)
    cut("F")
    for r in range(4):
        phase_A(P, ctx, f"{role}B"); cut("AO")
    phase_O(P); cut("O")
    return segs

fold_id = [0]
def norm(t):
    t = re.sub(r"vmcnt\(\d+\) ?", "", t)
    return re.sub(r"(--- barrier )\w+", r"\1X", t)
def fold(seq, p):
    chunks = [[]]
    for ins in seq:
        if ins.kind == "comment" and ins.text.startswith("; --- barrier"): chunks.append([])
        chunks[-1].append(ins)
    keys = ["\n".join(norm(i.text) for i in c) for c in chunks]
    best = (0, 0); n = len(chunks)
    for a in range(n):
        k = 1
        while a + (k + 1) * p <= n and all(keys[a + k * p + r] == keys[a + r] for r in range(p)): k += 1
        if k >= 2 and k > best[1]: best = (a, k)
    a, k = best
    if k < 2:
        print("fold failed"); return seq
    out = []
    for c in chunks[:a]: out += c
    for r in range(p):
        for it in range(1, k):
            for x, y in zip(chunks[a + r], chunks[a + it * p + r]):
                if x.kind == "wait" and x.text != y.text:
                    va, la = parse_wait(x.text); vb, lb = parse_wait(y.text)
                    vs = [q for q in (va, vb) if q is not None]
                    x.text = wait(min(vs) if vs else None, la).text
    fold_id[0] += 1
    lab = f"L_loop{fold_id[0]}"
    out.append(salu("s_mov_b32", f"s{S_LOOP}", k))
    out.append(label(lab))
    for c in chunks[a:a + p]: out += c
    out.append(salu("s_sub_u32", f"s{S_LOOP}", f"s{S_LOOP}", 1))
    out.append(salu("s_cmp_lg_u32", None, f"s{S_LOOP}", 0))
    out.append(raw(f"s_cbranch_scc1 {lab}", "branch"))
    for c in chunks[a + k * p:]: out += c
    print(f"fold: {n} chunks -> loop start {a} x{k} (period {p})")
    return out

def parse_wait(t):
    vm = re.search(r"vmcnt\((\d+)\)", t); lg = re.search(r"lgkmcnt\((\d+)\)", t)
    return (int(vm.group(1)) if vm else None, int(lg.group(1)) if lg else None)
def merge_instances(insts, name):
    base = insts[0]
    for other in insts[1:]:
        assert len(other) == len(base), (name, len(other), len(base))
        for a, b in zip(base, other):
            if a.text != b.text:
                assert a.kind == "wait" and b.kind == "wait", (name, a.text, b.text)
                va, la = parse_wait(a.text); vb, lb = parse_wait(b.text)
                assert la == lb, (a.text, b.text)
                vs = [x for x in (va, vb) if x is not None]
                a.text = wait(min(vs), la).text
    return base

NRED = 32 * 7 * 18 * 64 // 256
def reduce_kernel():
    L = []
    A = L.append
    ldf = {0: "", 1: " nt", 2: " sc1", 3: " sc0 sc1"}[OPT.get("rdnt", 0)]
    A(f"s_cmp_ge_u32 s2, {NRED}")
    A("s_cbranch_scc1 L_rend")
    A("s_load_dwordx2 s[4:5], s[0:1], 96")
    A("s_load_dwordx2 s[6:7], s[0:1], 80")
    A("v_lshrrev_b32 v1, 6, v0")
    A("v_and_b32 v3, 63, v0")
    A("v_readfirstlane_b32 s12, v1")
    A("s_lshl_b32 s13, s2, 2")
    A("s_add_u32 s13, s13, s12")
    A(f"s_mul_hi_u32 s8, s13, {(2**32 + 125) // 126}")
    A("s_mul_i32 s9, s8, 126")
    A("s_sub_u32 s9, s13, s9")
    A("s_lshr_b32 s10, s8, 4")
    A("s_and_b32 s11, s8, 15")
    A(f"s_mul_hi_u32 s14, s9, {(2**32 + 17) // 18}")
    A("s_mul_i32 s15, s14, 18")
    A("s_sub_u32 s15, s9, s15")
    A("v_lshlrev_b32 v2, 4, v3")
    A("s_lshl_b32 s27, s9, 10")
    A("v_add_u32 v2, s27, v2")
    A("v_and_b32 v4, 15, v3")
    A("v_lshrrev_b32 v5, 4, v3")
    A("s_waitcnt lgkmcnt(0)")
    A("s_mov_b32 s16, s4"); A("s_mov_b32 s17, s5"); A(f"s_mov_b32 s18, {256*PSZ}"); A("s_mov_b32 s19, 0x00020000")
    A("s_mov_b32 s20, s6"); A("s_mov_b32 s21, s7"); A(f"s_mov_b32 s22, {16*112*1152*2}"); A("s_mov_b32 s23, 0x00020000")
    A("s_lshl_b32 s26, s11, 4")
    A("s_lshl_b32 s25, s10, 2")
    A("s_add_u32 s26, s26, s25")
    for j in range(8):
        A(f"s_add_u32 s24, s26, {((j & 1) << 3) | (j >> 1)}")
        A(f"s_mul_i32 s24, s24, {PSZ}")
        A(f"buffer_load_dwordx4 v[{8+4*j}:{11+4*j}], v2, s[16:19], s24 offen{ldf}")
    A("s_mul_i32 s24, s11, 112")
    A("s_lshl_b32 s25, s14, 4")
    A("s_add_u32 s24, s24, s25")
    A("v_add_u32 v4, s24, v4")
    A("s_movk_i32 s25, 2304")
    A("v_mul_lo_u32 v4, s25, v4")
    A("s_mul_i32 s24, s10, 1152")
    A("s_lshl_b32 s25, s15, 6")
    A("s_add_u32 s24, s24, s25")
    A("v_lshl_add_u32 v4, v5, 3, v4")
    A("v_add_u32 v4, s24, v4")
    for j in range(8):
        A(f"s_waitcnt vmcnt({7-j})")
        for d in range(4):
            r = 8 + 4 * j + d
            if j == 0:
                A(f"v_lshlrev_b32 v{48+2*d}, 16, v{r}")
                A(f"v_and_b32 v{48+2*d+1}, 0xffff0000, v{r}")
            else:
                A(f"v_lshlrev_b32 v40, 16, v{r}")
                A(f"v_and_b32 v41, 0xffff0000, v{r}")
                A(f"v_add_f32 v{48+2*d}, v{48+2*d}, v40")
                A(f"v_add_f32 v{48+2*d+1}, v{48+2*d+1}, v41")
    for d in range(4):
        A(f"v_cvt_pk_bf16_f32 v{56+d}, v{48+2*d}, v{48+2*d+1}")
    A("buffer_store_dwordx2 v[56:57], v4, s[20:23], 0 offen")
    A("buffer_store_dwordx2 v[58:59], v4, s[20:23], 0 offen offset:32")
    A("L_rend:")
    A("s_endpgm")
    return "\n".join(L) + "\n"

def dbg_dump(base, n):
    L = []
    L.append(raw("s_waitcnt vmcnt(0) lgkmcnt(0)", "wait"))
    L.append(nop(15))
    L.append(salu("s_lshl_b32", "s88", "s2", 2))
    L.append(salu("s_add_u32", "s88", "s88", f"s{S_W}"))
    L.append(salu("s_lshl_b32", "s88", "s88", 14))
    L.append(salu("s_add_u32", "s88", "s88", 64 << 20))
    L.append(salu("s_mov_b32", "s84", "s24")); L.append(salu("s_mov_b32", "s85", "s25"))
    L.append(salu("s_mov_b32", "s86", 128 << 20)); L.append(salu("s_mov_b32", "s87", "0x00020000"))
    L.append(valu("v_mbcnt_lo_u32_b32", "v15", -1, 0))
    L.append(valu("v_mbcnt_hi_u32_b32", "v15", -1, "v15"))
    L.append(valu("v_lshlrev_b32", "v15", 2, "v15"))
    for r in range(n):
        if r and r % 16 == 0: L.append(salu("s_add_u32", "s88", "s88", 4096))
        L.append(bstore(1, f"v{base + r}", "v15", "s[84:87]", "s88", (r % 16) * 256))
    L.append(raw("s_waitcnt vmcnt(0)", "wait"))
    L.append(raw("s_endpgm", "end"))
    return L

def stamp_init():
    L = []
    L.append(salu("s_lshl_b32", "s88", "s2", 2))
    L.append(salu("s_add_u32", "s88", "s88", f"s{S_W}"))
    L.append(salu("s_lshl_b32", "s88", "s88", 11 if DEBUG == "G" else (10 if DEBUG == "F" else 8)))
    L.append(salu("s_add_u32", "s88", "s88", 100 << 20))
    L.append(salu("s_mov_b32", "s84", "s24")); L.append(salu("s_mov_b32", "s85", "s25"))
    L.append(salu("s_mov_b32", "s86", 128 << 20)); L.append(salu("s_mov_b32", "s87", "0x00020000"))
    return L
def pstamp(real=False):
    return [] if DEBUG == "G" else stamp(real)
def stamp(real=False):
    if DEBUG not in ("T", "F", "G"): return []
    L = []
    L.append(raw("s_memrealtime s[96:97]" if real else "s_memtime s[96:97]", "smem"))
    L.append(raw("s_waitcnt lgkmcnt(0)", "wait"))
    L.append(valu("v_mov_b32", "v18", "s96"))
    L.append(valu("v_mov_b32", "v19", 0))
    L.append(bstore(1, "v18", "v19", "s[84:87]", "s88", 0))
    L.append(salu("s_add_u32", "s88", "s88", 4))
    return L

def main(outpath):
    ctx = Ctx()
    txt = header([(MAIN, (256, 1, 1), (256, 1, 1), LDS_TOTAL), (RED, (NRED, 1, 1), (256, 1, 1), 0)])
    txt += kstart(MAIN)
    body = []
    pro = prologue_common()
    body += pro
    body.append(raw(f"s_cmp_ge_u32 s{S_W}, 3", "salu"))
    body.append(raw("s_cbranch_scc1 L_role_W_far", "branch"))
    allprobs = []
    for role in ("C", "W"):
        segs = build_role(role, ctx)
        nq = 2 if role == "C" else 1
        Q = segs["Q"][0]
        AO = merge_instances(segs["AO"], "AO")
        seq = []
        if role == "W": seq.append(label("L_role_W"))
        if DEBUG in ("T", "F", "G"): seq += stamp_init() + pstamp(True) + pstamp()
        seq += segs["pro"][0]
        seq += pstamp()
        seq += fold(Q, OPT.get("qper", 8)) if DEBUG not in ("F", "G") else Q
        seq += pstamp()
        seq += segs["F"][0]
        seq += pstamp()
        if DEBUG == "Q": seq += dbg_dump(V_QF, 32)
        seq.append(label(f"L_head_{role}"))
        seq += AO
        seq += pstamp()
        if DEBUG == "O": seq += dbg_dump(V_OF, 32)
        seq.append(raw(f"s_add_u32 s{S_R}, s{S_R}, 1", "salu"))
        seq.append(raw(f"s_cmp_lt_u32 s{S_R}, 4", "salu"))
        seq.append(raw(f"s_cbranch_scc1 L_head_{role}", "branch"))
        seq += segs["O"][0]
        seq += pstamp()
        seq.append(raw("s_waitcnt vmcnt(0)", "wait"))
        seq += pstamp() + pstamp(True)
        seq.append(raw("s_endpgm", "end"))
        for uid, par in ctx.slow.items():
            if uid.startswith(role) and not OPT.get("noslow"): seq += trampoline(uid, f"L_slow_{role}{par}")
        for par in (0, 1):
            B = slow_routine(par, nq, f"L_slow_{role}{par}")
            allprobs += check_hazards(B, f"slow{role}{par}")
            seq += B
        lin = pro + segs["pro"][0] + Q + segs["F"][0] + AO + AO + segs["O"][0]
        allprobs += check_hazards(lin, role)
        if role == "C":
            body.append(raw("s_branch L_role_C", "branch"))
            body.append(label("L_role_W_far"))
            body.append(raw("s_getpc_b64 s[30:31]", "salu"))
            body.append(label("L_pcw"))
            body.append(raw("s_add_u32 s30, s30, L_role_W-L_pcw", "salu"))
            body.append(raw("s_addc_u32 s31, s31, 0", "salu"))
            body.append(raw("s_setpc_b64 s[30:31]", "branch"))
            body.append(label("L_end"))
            body.append(raw("s_endpgm", "end"))
            body.append(label("L_role_C"))
        body += seq
    txt += "\n".join(i.text for i in body) + "\n"
    txt += kstart(RED) + reduce_kernel()
    txt += kdesc(MAIN, 512, sgpr=100, accum=256)
    txt += kdesc(RED, 64, sgpr=40)
    open(outpath, "w").write(txt)
    for p in allprobs[:40]: print("HAZARD", p)
    print("instructions:", sum(1 for i in body if i.kind not in ("label", "comment")), "bytes of text", len(txt))

if __name__ == "__main__":
    if len(sys.argv) > 2: DEBUG = sys.argv[2]
    for a in sys.argv[3:]:
        k, v = a.split("="); OPT[k] = int(v)
    main(sys.argv[1] if len(sys.argv) > 1 else "k7.s")
```

```python
import sys, math, struct, re
from asmlib import *
sys.path.insert(0, "work")
from gcommon import header, kstart, kdesc

OPT = {"bar_delay": 2, "budget": 4, "barcost": 1, "postq": 4, "catchq": 4, "capf": 2, "pf": 1, "NB": 7, "wcap": 2}
DEBUG = ""
MAIN = "fa_main_kernel"
RED = "fa_reduce_kernel"

NKV = 4
TSLOT = 8256
VBASE = 0
KBASE = NKV * TSLOT
WBASE = 2 * NKV * TSLOT
XSLOT = 16 * 1088
XREG = 0
QREG = 3 * XSLOT
LDS_TOTAL = WBASE + QREG + 4 * TSLOT
PSZ = 7 * 18 * 1024
OGRP = 4352
def wqslot(s): return QREG + ((s + 2) % 4) * TSLOT
def xslot(p): return XREG + (p % 3) * XSLOT
def oslot(z): return [XREG, XREG + XSLOT, QREG, XREG + 2 * XSLOT][z % 4]

V_T = [1, 2]
V_K = 3
V_X = 4
V_W = [5, 6]
V_D = [7, 8, 9, 10]
V_L = [11, 12]
V_TS = [13, 14]
V_TMP = [15, 16, 17, 18, 19]
V_NEGM = 20
V_P = 28
V_S = [36, 52]
V_OACC = 68
V_OUTX = 132
V_QF = 164
V_OF = 196
V_AF = 228
VW_Q = [148, 149, 150, 151]
VW_X = [152, 153, 154, 155]
VW_K = [156, 157]
VW_V = [158, 159, 160, 161]
V_Q = [52, 53]
V_DK, V_DV, V_PFO, V_QL = 7, 8, 9, 10
V_DO = 4
V_DQ = 54
V_DX = [55, 56, 57, 58]

S_SRD0, S_SRD1, S_SRD2, S_SRDP = 40, 44, 48, 52
S_W, S_R = 56, 58
S_A, S_B2, S_C = 60, 61, 62
S_TMP = 63
S_KM = [64, 65, 66]
S_VM = [67, 68, 69]
S_G = [76, 77, 78]
S_CMP = 70
S_THR = 73
S_CSC = 72
S_CSC2 = 26
S_T = 74
S_PFQO, S_PFOO = 79, 89
S_PFQ, S_PFO = 48, 80
S_RET = 90
S_KP2, S_VP2, S_A2 = 66, 67, 68
S_MK, S_MV, S_MX, S_MO = 69, 76, 77, 78
S_LOOP = 39
S_SRDQ = 28
S_QFO = 38
QOFF = 48 << 20
S_SRDK, S_SRDV = 80, 92
S_KP, S_VP = 64, 65

SCALE = 1.4426950408889634 / math.sqrt(128.0)
def f32bits(x): return struct.unpack("<I", struct.pack("<f", x))[0]
def tagged(ins, tag):
    ins.tag = tag
    return ins

def outacc(nt, qt, nq):
    idx = nt * nq + qt
    if nq == 1: return rs("a", 4 * idx, 4)
    if idx < 64: return rs("a", 4 * idx, 4)
    return rs("v", V_OUTX + 4 * (idx - 64), 4)
def oacc(s, t, qt): return V_OACC + ((s * 2 + t) * 2 + qt) * 4

class Job:
    def __init__(self, epoch, mk, reads, fixed=()):
        self.epoch = epoch; self.mk = mk; self.reads = reads; self.fixed = fixed
        self.ops = []; self.buf = None; self.pre = []
class Epoch:
    def __init__(self, name, needs):
        self.name = name; self.needs = needs; self.fill = []; self.first = None; self.done_bar = False
class FillQ:
    def __init__(self, items, start, end, isdma=False):
        self.items = list(items); self.start = start; self.end = end; self.isdma = isdma
        self.maxper = OPT.get("dmaper", 2) if isdma else None

class Prog:
    def __init__(self, role):
        self.role = role
        self.nq = 2 if role == "C" else 1
        self.out = []; self.vq = []; self.lq = []; self.nop_id = 0; self.issued = set()
        self.ptr = {}
    def emit(self, ins):
        if isinstance(ins, list):
            for i in ins: self.emit(i)
            return
        if ins.kind == "vmem" and isinstance(ins.tag, tuple) and ((OPT.get("noO") and ins.tag[0] == "O") or (OPT.get("noKV") and ins.tag[0] in ("K", "V")) or (OPT.get("noV") and ins.tag[0] == "V")):
            self.vq.append(ins.tag); self.issued.add(ins.tag)
            return
        if ins.kind == "vmem" and (OPT.get("nodma") or (OPT.get("nokv") and self.role == "C") or (OPT.get("now") and self.role == "W")):
            self.vq.append(ins.tag); self.issued.add(ins.tag)
            return
        if ins.kind == "vmem" and ins.text.endswith("lds") and self.out and ("s", 124) in self.out[-1].wr:
            self.out.append(nop(0))
        self.out.append(ins)
        if ins.kind in ("vmem", "vstore"):
            self.vq.append(ins.tag if ins.kind == "vmem" else "store")
            self.issued.add(ins.tag)
        if ins.kind == "lds":
            self.nop_id += 1
            self.lq.append(self.nop_id)
            return self.nop_id
    def vm_wait_for(self, tags):
        last = -1
        for i, t in enumerate(self.vq):
            if t in tags: last = i
        if last < 0: return None
        return len(self.vq) - 1 - last
    def do_wait(self, vm=None, lgkm=None):
        if vm is not None:
            vm = min(vm, 63)
            if vm == 0: self.vq = []
            elif vm < len(self.vq): self.vq = self.vq[len(self.vq) - vm:]
        if lgkm is not None:
            if lgkm == 0: self.lq = []
            elif lgkm < len(self.lq): self.lq = self.lq[len(self.lq) - lgkm:]
        self.emit(wait(vm, lgkm))
    def move_ptr(self, name, target, sregs=()):
        d = target - self.ptr[name]
        self.ptr[name] = target
        if d == 0: return []
        return [salu("s_add_u32", f"s{r}", f"s{r}", d & 0xffffffff) for r in sregs]

    def run_stream(self, jobs, NB=None, AFB=None, ahead=False):
        NB = NB or OPT["NB"]
        AFB = AFB or V_AF
        n = len(jobs)
        budget = OPT["budget"] if self.nq == 2 else OPT["budget"]
        if self.nq == 1: budget = 6
        for k, j in enumerate(jobs):
            if j.epoch.first is None: j.epoch.first = k
            j.epoch.last = k
        eps_list = []
        for j in jobs:
            if not eps_list or eps_list[-1] is not j.epoch: eps_list.append(j.epoch)
        for ei, e in enumerate(eps_list):
            e.idx = ei; e.vis = False
        free = list(range(NB))
        off = 0
        for e in eps_list:
            ne = e.last - e.first + 1
            for k in range(e.first, e.last + 1): jobs[k].want = (off + k - e.first) % NB
            skip = 0
            if NB == 7: skip = {24: 1, 28: 2, 8: 2}.get(ne, 0)
            off = (off + ne + skip) % NB
        nextrd = 0
        fq = []
        state = {"lastrd": -10, "dq": None}
        def issue_reads(j):
            b = j.want; free.remove(b); j.buf = b
            base = AFB + 4 * b
            for kind, dst, addr, imm in j.fixed:
                j.ops.append(self.emit(ds_read(kind, dst, addr, imm)))
            sub = 0
            for kind, addr, imm in j.reads:
                w = 4 if kind == "b128" else 2
                j.ops.append(self.emit(ds_read(kind, rs("v", base + sub, w), addr, imm)))
                sub += w
            return len(j.fixed) + len(j.reads)
        def do_barrier(e, g):
            needs = list(e.needs)
            if ahead:
                nxt = eps_list[e.idx + 1] if e.idx + 1 < len(eps_list) else None
                needs = (list(e.needs) if e.idx == 0 else []) + (list(nxt.needs) if nxt else [])
                if nxt: nxt.vis = True
            e.vis = True
            for t in needs: assert t in self.issued, ("not issued", e.name, t)
            vm = self.vm_wait_for(set(needs)) if needs else None
            self.emit(comment(f"--- barrier {e.name}"))
            if ahead and e.idx > 0:
                if vm is not None: self.do_wait(vm=vm)
                self.emit(barrier())
                e.done_bar = True
                activate(e, g)
                return
            if DEBUG == "G":
                self.do_wait(lgkm=0); self.emit(stamp())
            self.do_wait(vm=vm, lgkm=0 if not OPT.get("nolg") else None) if (vm is not None or not OPT.get("nolg")) else None
            if DEBUG == "G": self.emit(stamp())
            if not OPT.get("nobar"): self.emit(barrier())
            if DEBUG == "F": self.emit(stamp())
            e.done_bar = True
            activate(e, g)
        def activate(e, g):
            for q in e.fill:
                if q.start < g: q.start = g
                if q.isdma and state["dq"] is not None:
                    if not state["dq"].items: state["dq"].start = q.start
                    state["dq"].items += q.items
                    state["dq"].end = max(state["dq"].end, q.end)
                elif q.isdma:
                    state["dq"] = q; fq.insert(0, q)
                else: fq.append(q)
        def wait_for(j):
            idx = -1
            for i, o in enumerate(self.lq):
                if o in j.ops: idx = i
            if idx >= 0:
                self.do_wait(lgkm=min(15, len(self.lq) - 1 - idx))
                return 1
            return 0
        def fillers(g, rem, force_ok):
            for q in fq:
                if not q.items or g < q.start: continue
                left_gaps = max(1, q.end - g + 1)
                cost = sum(i.cost for i in q.items) // 4
                must = cost - (left_gaps - 1) * (q.maxper if q.maxper else OPT["capf"])
                if g >= q.end: must = cost
                if not force_ok: must = 0
                lim = q.maxper if q.maxper else 99
                took = 0
                while q.items and (took < lim or took < must):
                    it = q.items[0]
                    c = max(1, it.cost // 4)
                    if isinstance(it.tag, tuple) and it.tag and it.tag[0] == "after" and g < it.tag[1]: break
                    if took >= must and c > rem: break
                    q.items.pop(0)
                    self.emit(it); took += c; rem -= c
            return rem
        def reads(g, quota):
            nonlocal nextrd
            nl = 0
            while nextrd < n:
                j = jobs[nextrd]; e = j.epoch
                if not e.vis: break
                cnt = len(j.fixed) + len(j.reads)
                if j.want in free and (nl + cnt <= quota or (nl == 0 and quota > 0)):
                    c = issue_reads(j); nl += c
                    nextrd += 1
                    state["lastrd"] = g
                else: break
            return nl
        def try_barrier(g):
            if ahead:
                if g + 1 < n:
                    e = jobs[g + 1].epoch
                    if not e.done_bar and e.first == g + 1:
                        do_barrier(e, g); return True
                return False
            if nextrd < n:
                j = jobs[nextrd]; e = j.epoch
                lead = nextrd - (g + 1)
                if not e.done_bar and (g == -1 or g >= state["lastrd"] + OPT["bar_delay"] or lead <= 2):
                    do_barrier(e, g); return True
            return False
        def windowA(g):
            cap = OPT["wcap"]
            lead = nextrd - (g + 1)
            used = reads(g, 2 if lead >= NB - 1 else OPT["catchq"])
            fillers(g, cap - used, False)
        def windowB(g, cap):
            nx = g + 1
            used = 0
            didbar = try_barrier(g)
            if didbar: used += 2 + OPT["barcost"]
            if (not didbar or (ahead and g >= 0)) and nx < n and jobs[nx].ops: used += wait_for(jobs[nx])
            lead = nextrd - (g + 1)
            if g == -1: used += reads(g, 99)
            elif self.nq == 1: used += reads(g, OPT["postq"] if didbar else (OPT["catchq"] if lead < NB - 1 else 2))
            elif didbar or lead < NB - 2: used += reads(g, 2)
            late_wait = nx < n and any(o in self.lq for o in jobs[nx].ops)
            if late_wait: used += 1
            fillers(g, cap - used, True)
            if late_wait: wait_for(jobs[nx])
        windowB(-1, 99)
        for k in range(n):
            j = jobs[k]
            for p in j.pre:
                if callable(p): p(self)
                else: self.emit(p)
            ms = j.mk(rs("v", AFB + 4 * j.buf, 4))
            if len(ms) == 2:
                self.emit(ms[0])
                windowA(k)
                self.emit(ms[1])
                free.append(j.buf)
                windowB(k, OPT["wcap"])
            else:
                self.emit(ms[0])
                free.append(j.buf)
                windowB(k, 6)
        for q in fq:
            while q.items: self.emit(q.items.pop(0))

def dma_KVs(P, kind, n, tag):
    K = kind == "K"
    b = (KBASE if K else VBASE) + ((n % 16) % NKV) * TSLOT
    p1, p2, srd, pat, M = (S_KP, S_KP2, S_SRDK, V_DK, S_MK) if K else (S_VP, S_VP2, S_SRDV, V_DV, S_MV)
    L = [salu("s_add_u32", "m0", f"s{M}", b)]
    L += P.move_ptr(kind + "3", n * 8192, sregs=(p1, p2))
    L.append(tagged(dma(f"v{pat}", rs("s", srd, 4), f"s{p1}", 0, nt=True), tag))
    L.append(tagged(dma(f"v{pat}", rs("s", srd, 4), f"s{p2}", 1024, nt=True), tag))
    return L
def o_tile_info(z):
    s = (z % 16) >> 2
    starts = [0, 2, 4, 6, 9]
    q = z & 3
    return s, starts[q], starts[q + 1]
def dma_O(P, z, tag):
    s, c0, c1 = o_tile_info(z)
    hd = z // 16
    b = WBASE + oslot(z)
    L = []
    for cg in range(c0, c1):
        L.append(salu("s_add_u32", "m0", f"s{S_MO}", b + (cg - c0) * OGRP))
        mv = P.move_ptr("O", (hd * 128 + 32 * s) * 1152 + cg * 128, sregs=(S_C,))
        L += mv
        L.append(tagged(dma(f"v{V_DO}", rs("s", S_SRD2, 4), f"s{S_C}", 0), tag))
    return L
def pf_wq():
    if not OPT["pf"]: return []
    return [tagged(bload(1, "v0", f"v{V_D[2]}", rs("s", S_PFQ, 4), f"s{S_PFQO}", 0), ("pf", 0)),
            salu("s_add_u32", f"s{S_PFQO}", f"s{S_PFQO}", 256)]
def pf_wo():
    if not OPT["pf"]: return []
    return [tagged(bload(1, "v0", f"v{V_PFO}", rs("s", S_SRD2, 4), f"s{S_PFOO}", 0), ("pf", 0)),
            salu("s_add_u32", f"s{S_PFOO}", f"s{S_PFOO}", 128 * 1152)]

def q4acc(h, s, t, qt, nq):
    return (h * 8 + s * 2 + t) * nq * 4 + qt * 4
def xslot4(p): return (p % 2) * XSLOT
def dma_WQ4(P, eps, tag):
    st, h = eps // 4, eps % 4
    b = (eps % 8) * TSLOT
    L = [salu("s_add_u32", "m0", f"s{S_MV}", b)]
    L += P.move_ptr("Q", h * 256 + st * 262144, sregs=(S_A, S_A2))
    L.append(tagged(dma(f"v{V_DQ}", rs("s", S_SRD0, 4), f"s{S_A}", 0), tag))
    L.append(tagged(dma(f"v{V_DQ}", rs("s", S_SRD0, 4), f"s{S_A2}", 1024), tag))
    return L
def dma_X4(P, p, tag):
    b = WBASE + xslot4(p)
    L = [salu("s_add_u32", "m0", f"s{S_MX}", b)]
    L += P.move_ptr("X", p * 128, sregs=(S_B2,))
    for k in range(4):
        L.append(tagged(dma(f"v{V_DX[k]}", rs("s", S_SRD1, 4), f"s{S_B2}", 1088 * k), tag))
    return L

def phase_Q4(P):
    role, nq = P.role, P.nq
    jobs = []
    for m in range(36):
        st = m // 2
        needs = [("Q", 2 * m), ("Q", 2 * m + 1)] + ([("X", st >> 1)] if m % 4 == 0 else [])
        e = Epoch(f"Q{m}", needs)
        xb = V_S[0] + 8 * (st & 1)
        for hh in range(2):
            eps = 2 * m + hh
            h = eps % 4
            first = (h == 0)
            for s in range(4):
                for t in range(2):
                    base = (eps % 8) * TSLOT + (s >> 1) * 1024 + 8 * t
                    addr = f"v{V_T[s & 1]}"
                    reads = [("tr", addr, base), ("tr", addr, base + 512)]
                    fixed = []
                    if first:
                        fixed = [("b128", rs("v", xb + 4 * qt, 4), f"v{V_X}", xslot4(st >> 1) + (st & 1) * 64 + qt * 2176) for qt in range(nq)]
                        first = False
                    def mk(a, s=s, t=t, h=h, xb=xb):
                        L = []
                        for qt in range(nq):
                            acc = rs("a", q4acc(h, s, t, qt, nq), 4)
                            L.append(mfma16(acc, a, rs("v", xb + 4 * qt, 4), acc))
                        return L
                    jobs.append(Job(e, mk, reads, fixed))
        f = 16 * m
        d = []
        if m >= 1:
            d += dma_WQ4(P, 2 * (m + 3), ("Q", 2 * (m + 3))) + dma_WQ4(P, 2 * (m + 3) + 1, ("Q", 2 * (m + 3) + 1))
        if m % 4 == 0 and m >= 4: d += dma_X4(P, m // 4 + 1, ("X", m // 4 + 1))
        if d: e.fill.append(FillQ(d, f - 1, f + 10, isdma=True))
    P.run_stream(jobs, NB=8, AFB=V_OACC, ahead=True)

def q4_finish(P):
    role, nq = P.role, P.nq
    P.do_wait(vm=0, lgkm=0)
    P.emit(barrier())
    for kind, n in (("K", 0), ("K", 1), ("V", 0), ("K", 2), ("V", 1), ("K", 3)):
        P.emit(dma_KVs(P, kind, n, (kind, n)))
    P.emit(valu("v_mov_b32", f"v{V_DO}", f"v{V_DX[0] + 8}"))
    for z in range(3): P.emit(dma_O(P, z, ("O", z)))
    P.emit(nop(7))
    T = V_OACC
    v = V_TMP[0]
    P.emit(valu("v_mbcnt_lo_u32_b32", f"v{v}", -1, 0))
    P.emit(valu("v_mbcnt_hi_u32_b32", f"v{v}", -1, f"v{v}"))
    for h in range(4):
        dstbase = V_QF if h == 0 else V_OF
        for s in range(4):
            for qt in range(nq):
                for t in range(2):
                    a = q4acc(h, s, t, qt, nq)
                    tb = T + ((s * 2 + qt) * 2 + t) * 4
                    for r in range(4): P.emit(valu("v_accvgpr_read_b32", f"v{tb + r}", f"a{a + r}"))
                    for r in range(4): P.emit(valu("v_accvgpr_write_b32", f"a{a + r}", 0))
                    for r in range(0, 4, 2):
                        P.emit(valu("v_pk_mul_f32", rs("v", tb + r, 2), rs("v", tb + r, 2), rs("s", S_CSC2, 2)))
                    for hh in range(2):
                        P.emit(valu("v_cvt_pk_bf16_f32", f"v{dstbase + (s * 2 + qt) * 4 + 2 * t + hh}", f"v{tb + 2 * hh}", f"v{tb + 2 * hh + 1}"))
        if h > 0:
            for s in range(4):
                for qt in range(nq):
                    fr = s * 2 + qt
                    P.emit(bstore(4, rs("v", V_OF + fr * 4, 4), f"v{V_QL}", rs("s", S_SRDQ, 4), f"s{S_QFO}", (fr % 4) * 1024) if fr < 4 else
                           bstore(4, rs("v", V_OF + fr * 4, 4), f"v{V_QL}", rs("s", S_SRDQ, 4), f"s{S_T}", (fr % 4) * 1024))
            P.emit(salu("s_add_u32", f"s{S_QFO}", f"s{S_QFO}", 8192))
            P.emit(salu("s_add_u32", f"s{S_T}", f"s{S_T}", 8192))
    if role == "W":
        for r in range(128, 144): P.emit(valu("v_accvgpr_write_b32", f"a{r}", 0))
    else:
        for r in range(32): P.emit(valu("v_mov_b32", f"v{V_OUTX + r}", 0))
    nst = 3 * 4 * nq
    P.do_wait(vm=0)
    for r in range(32): P.emit(valu("v_mov_b32", f"v{V_OF + r}", 0))
    P.emit(salu("s_mov_b32", f"s{S_QFO}", 0))
    P.emit(salu("s_movk_i32", f"s{S_T}", 4096))

def qf_reload(P):
    L = []
    for s in range(4):
        for qt in range(P.nq):
            fr = s * 2 + qt
            so = S_QFO if fr < 4 else S_T
            L.append(tagged(bload(4, rs("v", V_QF + fr * 4, 4), f"v{V_QL}", rs("s", S_SRDQ, 4), f"s{so}", (fr % 4) * 1024), ("QF", 1)))
    L.append(salu("s_add_u32", f"s{S_QFO}", f"s{S_QFO}", 8192))
    L.append(salu("s_add_u32", f"s{S_T}", f"s{S_T}", 8192))
    return L

class Ctx:
    def __init__(self): self.slow = {}

def xlane_reduce(op, reg, tmp):
    L = []
    L.append(valu("v_mov_b32", f"v{tmp}", f"v{reg}"))
    L.append(nop(1))
    L.append(valu("v_permlane32_swap_b32", f"v{reg}", f"v{tmp}"))
    L.append(valu(op, f"v{reg}", f"v{reg}", f"v{tmp}"))
    L.append(valu("v_mov_b32", f"v{tmp}", f"v{reg}"))
    L.append(nop(1))
    L.append(valu("v_permlane16_swap_b32", f"v{reg}", f"v{tmp}"))
    L.append(valu(op, f"v{reg}", f"v{reg}", f"v{tmp}"))
    return L

def max8(S, dst, T):
    return [valu("v_max3_f32", f"v{dst}", f"v{S}", f"v{S+1}", f"v{S+2}"),
            valu("v_max3_f32", f"v{T}", f"v{S+3}", f"v{S+4}", f"v{S+5}"),
            valu("v_max3_f32", f"v{dst}", f"v{dst}", f"v{S+6}", f"v{S+7}"),
            valu("v_max_f32", f"v{dst}", f"v{dst}", f"v{T}")]

def exp_items(S, nq, P_after):
    T = V_TMP
    L = []
    n = 0
    for qt in range(nq):
        for e in range(4):
            a = S + qt * 8 + 2 * e
            t0, t1 = T[1 + (2 * n) % 4], T[1 + (2 * n + 1) % 4]; n += 1
            L.append(valu("v_exp_f32", f"v{t0}", f"v{a}"))
            L.append(valu("v_exp_f32", f"v{t1}", f"v{a + 1}"))
            if e == 0: L.append(valu("v_mov_b32", f"v{V_TS[qt]}", f"v{t0}"))
            else: L.append(valu("v_add_f32", f"v{V_TS[qt]}", f"v{V_TS[qt]}", f"v{t0}"))
            L.append(valu("v_add_f32", f"v{V_TS[qt]}", f"v{V_TS[qt]}", f"v{t1}"))
            cv = valu("v_cvt_pk_bf16_f32", f"v{V_P + 4 * qt + e}", f"v{t0}", f"v{t1}")
            if P_after is not None: cv.tag = ("after", P_after)
            L.append(cv)
    return L

def first_tile_items(nq):
    S = V_S[0]; T = V_TMP
    L = []
    for qt in range(nq):
        L += max8(S + 8 * qt, T[0], T[1])
        L += xlane_reduce("v_max_f32", T[0], T[1])
        for r in range(4): L.append(valu("v_sub_f32", f"v{V_NEGM + 4 * qt + r}", 0, f"v{T[0]}"))
        for r in range(8): L.append(valu("v_sub_f32", f"v{S + 8 * qt + r}", f"v{S + 8 * qt + r}", f"v{T[0]}"))
        L.append(valu("v_mov_b32", f"v{V_L[qt]}", 0))
    return L

def make_check(ctx, i, name, nq):
    uid = f"{name}{i}"
    def f(P):
        if i > 0:
            if nq == 2:
                P.emit(valu("v_max_f32", f"v{V_TMP[0]}", f"v{V_TS[0]}", f"v{V_TS[1]}"))
                P.out.pop()
                P.emit(valu("v_add_f32", f"v{V_TMP[0]}", f"v{V_TS[0]}", f"v{V_TS[1]}"))
                src_ = V_TMP[0]
            else: src_ = V_TS[0]
            P.emit(valu("v_cmp_nle_f32", rs("s", S_CMP, 2), f"v{src_}", f"s{S_THR}"))
            P.emit(salu("s_cmp_lg_u64", None, rs("s", S_CMP, 2), 0))
            if not OPT.get("noslow"): P.emit(raw(f"s_cbranch_scc1 L_tr_{uid}", "branch"))
            P.emit(label(f"L_back_{uid}"))
        for qt in range(nq): P.emit(valu("v_add_f32", f"v{V_L[qt]}", f"v{V_L[qt]}", f"v{V_TS[qt]}"))
        if i == 0: P.emit(nop(0))
    if i > 0: ctx.slow[uid] = i & 1
    return f

def slow_routine(par, nq, lab):
    S = V_S[par]; S2 = V_S[1 - par]; T = V_TMP
    B = [label(lab), nop(7), nop(7)]
    for qt in range(nq):
        B += max8(S + 8 * qt, T[0], T[1])
        B += xlane_reduce("v_max_f32", T[0], T[1])
        B.append(valu("v_max_f32", f"v{T[0]}", 0, f"v{T[0]}"))
        B.append(valu("v_sub_f32", f"v{T[1]}", 0, f"v{T[0]}"))
        B.append(valu("v_exp_f32", f"v{T[1]}", f"v{T[1]}"))
        for r in range(4): B.append(valu("v_sub_f32", f"v{V_NEGM + 4 * qt + r}", f"v{V_NEGM + 4 * qt + r}", f"v{T[0]}"))
        B.append(valu("v_mul_f32", f"v{V_L[qt]}", f"v{V_L[qt]}", f"v{T[1]}"))
        for s in range(4):
            for t in range(2):
                for r in range(4):
                    a = oacc(s, t, qt) + r
                    B.append(valu("v_mul_f32", f"v{a}", f"v{a}", f"v{T[1]}"))
        for r in range(8):
            B.append(valu("v_sub_f32", f"v{S + 8 * qt + r}", f"v{S + 8 * qt + r}", f"v{T[0]}"))
            B.append(valu("v_sub_f32", f"v{S2 + 8 * qt + r}", f"v{S2 + 8 * qt + r}", f"v{T[0]}"))
    B += exp_items(S, nq, None)
    B.append(nop(1))
    B.append(raw(f"s_setpc_b64 s[{S_RET}:{S_RET+1}]", "branch"))
    return B
def trampoline(uid, slowlab):
    return [label(f"L_tr_{uid}"),
            raw(f"s_getpc_b64 s[{S_RET}:{S_RET+1}]", "salu"),
            label(f"L_pc_{uid}"),
            raw(f"s_add_u32 s{S_RET}, s{S_RET}, L_back_{uid}-L_pc_{uid}", "salu"),
            raw(f"s_addc_u32 s{S_RET+1}, s{S_RET+1}, -1", "salu"),
            raw(f"s_branch {slowlab}", "branch")]

def qk_jobs(e, i, nq):
    jobs = []
    S = V_S[i & 1]
    slot = i % NKV
    for kt in range(2):
        for s in range(4):
            def mk(a, kt=kt, s=s):
                L = []
                for qt in range(nq):
                    d = rs("v", S + qt * 8 + kt * 4, 4)
                    c = d if s > 0 else ("0" if i == 0 else rs("v", V_NEGM + 4 * qt, 4))
                    L.append(mfma16(d, a, rs("v", V_QF + (s * 2 + qt) * 4, 4), c))
                return L
            jobs.append(Job(e, mk, [("b128", f"v{V_K}", slot * TSLOT + (s >> 1) * 1024 + (s & 1) * 64 + kt * 512)]))
    return jobs
def pv_jobs(e, i, nq):
    jobs = []
    slot = i % NKV
    for s in range(4):
        for t in range(2):
            base = VBASE + slot * TSLOT + (s >> 1) * 1024 + 8 * t
            addr = f"v{V_T[s & 1]}"
            def mk(a, s=s, t=t):
                L = []
                for qt in range(nq):
                    acc = rs("v", oacc(s, t, qt), 4)
                    L.append(mfma16(acc, a, rs("v", V_P + 4 * qt, 4), "0" if i == 0 else acc))
                return L
            jobs.append(Job(e, mk, [("tr", addr, base), ("tr", addr, base + 512)]))
    return jobs
def of_set(z, mode):
    if mode == "AO":
        if z <= 1: return 0
        if z >= 14: return 0
        return 0 if ((z - 2) % 4) < 2 else 1
    else:
        return 0
def o_jobs(e, z, nq, mode="AO"):
    jobs = []
    s, c0, c1 = o_tile_info(z)
    s = of_set(z, mode)
    for cg in range(c0, c1):
        for q4 in range(4):
            nt = 4 * cg + q4
            base = oslot(z) + (cg - c0) * OGRP + (q4 >> 1) * 64
            def mk(a, nt=nt):
                L = []
                for qt in range(nq):
                    acc = outacc(nt, qt, nq)
                    L.append(mfma16(acc, a, rs("v", V_OF + (s * 2 + qt) * 4, 4), acc))
                return L
            jobs.append(Job(e, mk, [("tr", f"v{V_W[q4 & 1]}", base), ("tr", f"v{V_W[q4 & 1]}", base + 512)]))
    return jobs

def phase_A(P, ctx, name):
    role, nq = P.role, P.nq
    jobs = []; eps = []
    e = Epoch(f"{name}pre", [("K", 0), ("QF", 0)]); eps.append(e)
    jobs += qk_jobs(e, 0, nq)
    starts = {}; qkfirst = {}; olast = {}
    for i in range(17):
        needs = []
        if i >= 1: needs.append(("V", i - 1))
        if i + 1 <= 15: needs.append(("K", i + 1))
        if i <= 15: needs.append(("O", i))
        e = Epoch(f"{name}{i}", needs); eps.append(e)
        starts[i] = len(jobs)
        if i >= 1:
            pj = pv_jobs(e, i - 1, nq)
            pj[0].pre.append(make_check(ctx, i - 1, name, nq))
            jobs += pj
        if i <= 15:
            jobs += o_jobs(e, i, nq)
            olast[i] = len(jobs) - 1
        if i + 1 <= 15:
            qkfirst[i + 1] = len(jobs)
            jobs += qk_jobs(e, i + 1, nq)
    starts[17] = len(jobs)
    for i in range(17):
        e = eps[i + 1]; f = starts[i]
        if i <= 15:
            if i == 0:
                e.fill.append(FillQ(first_tile_items(nq), f + 1, qkfirst[1] - 2))
                st = qkfirst[1] - 1
            else: st = f + 1
            pa = f + 7 if i >= 1 else None
            e.fill.append(FillQ(exp_items(V_S[i & 1], nq, pa), st, starts[i + 1] - 1))
        if i in (3, 7, 11):
            mv = [valu("v_mov_b32", f"v{V_OF + r}", f"v{V_OF + 8 + r}") for r in range(4 * nq if nq == 1 else 8)]
            e.fill.append(FillQ(mv, olast[i] + 1, starts[i + 1] + 6))
        if i in (5, 9, 13):
            mv = [valu("v_mov_b32", f"v{V_OF + 8 + r}", f"v{V_OF + 16 + r}") for r in range(4 * nq if nq == 1 else 8)]
            mv += [valu("v_mov_b32", f"v{V_OF + 16 + r}", f"v{V_OF + 24 + r}") for r in range(4 * nq if nq == 1 else 8)]
            e.fill.append(FillQ(mv, olast[i] + 1, starts[i + 1] + 6))
        d = []
        if i <= 15:
            d += dma_O(P, i + 3, ("O", i + 3))
            d += dma_KVs(P, "K", i + 4, ("K", i + 4))
            d += dma_KVs(P, "V", i + 2, ("V", i + 2))
        if i == 1: d += pf_wo()
        if i == 15: d += qf_reload(P)
        if d:
            late = OPT.get("late", 1)
            endg = starts[i + 1] - 9
            st0 = max(f - 8, endg - OPT.get("dmawin", 8)) if late else f - 8
            e.fill.insert(0, FillQ(d, st0, endg, isdma=True))
    P.run_stream(jobs, ahead=bool(OPT.get("aheadA", 0)))
    def rb(t):
        if isinstance(t, tuple) and t[0] in ("K", "V", "O") and t[1] >= 16: return (t[0], t[1] - 16)
        if isinstance(t, tuple) and t[0] == "QF" and t[1] == 1: return ("QF", 0)
        return ("old", 0)
    P.vq = [rb(t) for t in P.vq]
    P.issued = set(rb(t) for t in P.issued)
    P.ptr["K3"] -= 16 * 8192; P.ptr["V3"] -= 16 * 8192
    P.ptr["O"] -= 128 * 1152
    T = V_TMP
    P.emit(nop(3))
    for qt in range(nq):
        P.emit(xlane_reduce("v_add_f32", V_L[qt], T[0]))
        P.emit(valu("v_rcp_f32", f"v{T[1 + qt]}", f"v{V_L[qt]}"))
    P.emit(nop(3))
    for s in range(4):
        for qt in range(nq):
            for t in range(2):
                a = oacc(s, t, qt)
                for r in range(4):
                    P.emit(valu("v_mul_f32", f"v{a + r}", f"v{a + r}", f"v{T[1 + qt]}"))
                for h in range(2):
                    P.emit(valu("v_cvt_pk_bf16_f32", f"v{V_OF + (s * 2 + qt) * 4 + 2 * t + h}", f"v{a + 2 * h}", f"v{a + 2 * h + 1}"))
    P.emit(nop(1))

def _olast():
    s, c0, c1 = o_tile_info(15)
    return (32 * s) * 1152 + (c1 - 1) * 128
O_LAST = _olast()
def _o2():
    s, c0, c1 = o_tile_info(2)
    return (32 * s) * 1152 + (c1 - 1) * 128
O2_LAST = _o2()

def phase_O(P):
    role, nq = P.role, P.nq
    jobs = []
    for z in range(16):
        e = Epoch(f"O{z}", [("O", z)])
        f = len(jobs)
        jobs += o_jobs(e, z, nq, "O")
        if z % 4 == 0 and z > 0:
            mv = [valu("v_mov_b32", f"v{V_OF + r}", f"v{V_OF + 8 + r}") for r in range(24)]
            jobs[f].pre += mv + [nop(1)]
        e.fill.append(FillQ(dma_O(P, z + 3, ("O", z + 3)), f - 8, f + 2, isdma=True))
    P.run_stream(jobs)
    P.emit(nop(7))
    T = V_S[0]
    v = V_TMP[0]
    P.emit(valu("v_mbcnt_lo_u32_b32", f"v{v}", -1, 0))
    P.emit(valu("v_mbcnt_hi_u32_b32", f"v{v}", -1, f"v{v}"))
    P.emit(valu("v_lshlrev_b32", f"v{v}", 4, f"v{v}"))
    P.emit(salu("s_mul_i32", f"s{S_T}", f"s{S_W}", 2 * 18 * 1024))
    stf = {0: "", 1: " nt", 2: " sc1", 3: " sc0 sc1", 4: " sc0 sc1 nt"}[OPT.get("stnt", 2 if OPT.get("fuse", 1) else 0)]
    cnt = 0
    for qt in range(nq):
        for ntp in range(18):
            tb = T + 16 * (cnt % 2)
            srcs = []
            for h in range(2):
                a = outacc(2 * ntp + h, qt, nq)
                regs = parse_regs(a)
                if regs[0][0] == "a":
                    for r in range(4):
                        P.emit(valu("v_accvgpr_read_b32", f"v{tb + 4 * h + r}", f"a{regs[r][1]}"))
                    srcs.append(tb + 4 * h)
                else: srcs.append(regs[0][1])
            for h in range(2):
                for d in range(2):
                    P.emit(valu("v_cvt_pk_bf16_f32", f"v{tb + 8 + 2 * h + d}", f"v{srcs[h] + 2 * d}", f"v{srcs[h] + 2 * d + 1}"))
            off = cnt * 1024
            if off % 4096 == 0 and off > 0: P.emit(salu("s_add_u32", f"s{S_T}", f"s{S_T}", 4096))
            if not OPT.get("nost"): P.emit(bstore(4, rs("v", tb + 8, 4), f"v{v}", rs("s", S_SRDP, 4), f"s{S_T}", off % 4096, flags=stf))
            cnt += 1

def prologue_common():
    L = []
    A = L.append
    A(raw("s_cmp_ge_u32 s2, 256", "salu", wr=[("scc",0)]))
    A(raw("s_cbranch_scc1 L_end", "branch"))
    A(raw("s_load_dwordx16 s[4:19], s[0:1], 0", "smem"))
    A(raw("s_load_dwordx4 s[20:23], s[0:1], 64", "smem"))
    A(raw("s_load_dwordx2 s[24:25], s[0:1], 96", "smem"))
    A(valu("v_lshrrev_b32", "v1", 6, "v0"))
    A(valu("v_and_b32", f"v{V_TMP[0]}", 63, "v0"))
    A(valu("v_readfirstlane_b32", f"s{S_W}", "v1"))
    A(salu("s_and_b32", "s30", "s2", 7))
    A(salu("s_lshr_b32", "s31", "s2", 3))
    A(salu("s_lshr_b32", "s32", "s30", 2))
    A(salu("s_and_b32", "s33", "s30", 3))
    A(salu("s_lshl_b32", "s33", "s33", 1))
    A(salu("s_and_b32", "s34", "s31", 1))
    A(salu("s_add_u32", "s33", "s33", "s34"))
    A(salu("s_lshr_b32", "s34", "s31", 1))
    A(salu("s_mov_b32", f"s{S_R}", 0))
    A(raw("s_waitcnt lgkmcnt(0)", "wait"))
    A(salu("s_cmp_eq_u32", None, "s32", 0))
    for d, a, b in ((4, 4, 14), (6, 6, 16), (8, 8, 18), (10, 10, 20), (12, 12, 22)):
        A(salu("s_cselect_b32", f"s{d}", f"s{a}", f"s{b}"))
        A(salu("s_cselect_b32", f"s{d+1}", f"s{a+1}", f"s{b+1}"))
    return L

def patterns_common():
    L = []
    A = L.append
    A(salu("s_mov_b32", f"s{S_CSC}", hex(f32bits(SCALE))))
    A(salu("s_mov_b32", f"s{S_THR}", hex(f32bits(4096.0))))
    A(salu("s_mul_i32", "s35", "s2", PSZ))
    A(salu("s_add_u32", f"s{S_SRDP}", "s24", "s35"))
    A(salu("s_addc_u32", f"s{S_SRDP+1}", "s25", 0))
    A(salu("s_mov_b32", f"s{S_SRDP+2}", PSZ))
    A(salu("s_mov_b32", f"s{S_SRDP+3}", "0x00020000"))
    A(salu("s_mov_b32", f"s{S_CSC2}", hex(f32bits(SCALE))))
    A(salu("s_mov_b32", f"s{S_CSC2+1}", hex(f32bits(SCALE))))
    A(salu("s_lshl_b32", "s35", "s2", 2))
    A(salu("s_add_u32", "s35", "s35", f"s{S_W}"))
    A(salu("s_mul_i32", "s35", "s35", 3 * 8192))
    A(salu("s_add_u32", "s35", "s35", QOFF))
    A(salu("s_add_u32", f"s{S_SRDQ}", "s24", "s35"))
    A(salu("s_addc_u32", f"s{S_SRDQ+1}", "s25", 0))
    A(salu("s_movk_i32", f"s{S_SRDQ+2}", 3 * 8192))
    A(salu("s_mov_b32", f"s{S_SRDQ+3}", "0x00020000"))
    A(salu("s_mov_b32", f"s{S_QFO}", 0))
    A(salu("s_movk_i32", f"s{S_T}", 4096))
    l, g, t1, t2, t3 = V_TMP
    A(valu("v_lshrrev_b32", f"v{g}", 4, f"v{l}"))
    A(valu("v_bfe_u32", f"v{t1}", f"v{l}", 2, 2))
    A(valu("v_and_b32", f"v{t2}", 3, f"v{l}"))
    A(salu("s_movk_i32", "s35", 2056))
    A(valu("v_mul_lo_u32", f"v{V_T[0]}", "s35", f"v{g}"))
    A(valu("v_lshl_add_u32", f"v{V_T[0]}", f"v{t1}", 7, f"v{V_T[0]}"))
    A(valu("v_lshrrev_b32", f"v{t3}", 1, f"v{t1}"))
    A(valu("v_lshl_add_u32", f"v{V_T[0]}", f"v{t3}", 6, f"v{V_T[0]}"))
    A(valu("v_lshl_add_u32", f"v{V_T[0]}", f"v{t2}", 4, f"v{V_T[0]}"))
    A(valu("v_xor_b32", f"v{t3}", 1, f"v{t3}"))
    A(valu("v_mul_lo_u32", f"v{V_T[1]}", "s35", f"v{g}"))
    A(valu("v_lshl_add_u32", f"v{V_T[1]}", f"v{t1}", 7, f"v{V_T[1]}"))
    A(valu("v_lshl_add_u32", f"v{V_T[1]}", f"v{t3}", 6, f"v{V_T[1]}"))
    A(valu("v_lshl_add_u32", f"v{V_T[1]}", f"v{t2}", 4, f"v{V_T[1]}"))
    A(salu("s_movk_i32", "s35", 1088))
    A(valu("v_mul_lo_u32", f"v{V_W[0]}", "s35", f"v{g}"))
    A(valu("v_lshl_add_u32", f"v{V_W[0]}", f"v{t1}", 7, f"v{V_W[0]}"))
    A(valu("v_lshrrev_b32", f"v{t3}", 1, f"v{t1}"))
    A(valu("v_lshl_add_u32", f"v{V_W[0]}", f"v{t3}", 5, f"v{V_W[0]}"))
    A(valu("v_lshl_add_u32", f"v{V_W[0]}", f"v{t2}", 3, f"v{V_W[0]}"))
    A(valu("v_add_u32", f"v{V_W[0]}", WBASE, f"v{V_W[0]}"))
    A(valu("v_xor_b32", f"v{V_W[1]}", 32, f"v{V_W[0]}"))
    A(valu("v_lshlrev_b32", f"v{V_K}", 11, f"v{t1}"))
    A(valu("v_lshrrev_b32", f"v{t3}", 1, f"v{t1}"))
    A(valu("v_lshl_add_u32", f"v{V_K}", f"v{t3}", 6, f"v{V_K}"))
    A(valu("v_lshl_add_u32", f"v{V_K}", f"v{t2}", 7, f"v{V_K}"))
    A(valu("v_and_b32", f"v{t3}", 2, f"v{t2}"))
    A(valu("v_xor_b32", f"v{t3}", f"v{t3}", f"v{g}"))
    A(valu("v_lshl_add_u32", f"v{V_K}", f"v{t3}", 4, f"v{V_K}"))
    A(valu("v_add_u32", f"v{V_K}", KBASE, f"v{V_K}"))
    A(valu("v_and_b32", f"v{t2}", 15, f"v{l}"))
    A(valu("v_lshrrev_b32", f"v{t1}", 3, f"v{t2}"))
    A(salu("s_lshl_b32", "s36", f"s{S_W}", 2))
    A(valu("v_add_u32", f"v{t1}", "s36", f"v{t1}"))
    A(valu("v_mul_lo_u32", f"v{V_X}", "s35", f"v{t1}"))
    A(valu("v_and_b32", f"v{t3}", 7, f"v{t2}"))
    A(valu("v_lshl_add_u32", f"v{V_X}", f"v{t3}", 7, f"v{V_X}"))
    A(valu("v_and_b32", f"v{t3}", 2, f"v{t2}"))
    A(valu("v_xor_b32", f"v{t3}", f"v{t3}", f"v{g}"))
    A(valu("v_lshl_add_u32", f"v{V_X}", f"v{t3}", 4, f"v{V_X}"))
    A(valu("v_add_u32", f"v{V_X}", WBASE + XREG, f"v{V_X}"))
    return L

BIAS = 4096
def prologue_role(P):
    role = P.role
    A = P.emit
    l, g, t1, t2, t3 = V_TMP
    A(valu("v_lshrrev_b32", f"v{t1}", 3, f"v{l}"))
    A(valu("v_and_b32", f"v{t2}", 7, f"v{l}"))
    A(salu("s_lshl_b32", "s35", "s33", 10))
    A(salu("s_add_u32", f"s{S_SRD0}", "s10", "s35"))
    A(salu("s_addc_u32", f"s{S_SRD0+1}", "s11", 0))
    A(salu("s_sub_u32", f"s{S_SRD0}", f"s{S_SRD0}", BIAS))
    A(salu("s_subb_u32", f"s{S_SRD0+1}", f"s{S_SRD0+1}", 0))
    A(salu("s_sub_u32", f"s{S_SRD0+2}", 576 * 8192 + BIAS, "s35"))
    A(salu("s_mov_b32", f"s{S_SRD0+3}", "0x00020000"))
    A(salu("s_mul_i32", "s35", "s34", 129024))
    A(salu("s_add_u32", f"s{S_SRD1}", "s4", "s35"))
    A(salu("s_addc_u32", f"s{S_SRD1+1}", "s5", 0))
    A(salu("s_mov_b32", f"s{S_SRD1+2}", 129024))
    A(salu("s_mov_b32", f"s{S_SRD1+3}", "0x00020000"))
    A(valu("v_bfe_u32", f"v{t3}", f"v{t1}", 1, 1))
    A(valu("v_lshlrev_b32", f"v{g}", 2, f"v{t3}"))
    A(valu("v_xor_b32", f"v{g}", f"v{g}", f"v{t2}"))
    A(valu("v_lshlrev_b32", f"v{g}", 4, f"v{g}"))
    A(valu("v_lshlrev_b32", f"v{t3}", 1, f"v{t3}"))
    A(valu("v_xor_b32", f"v{t3}", f"v{t3}", f"v{t2}"))
    A(valu("v_lshlrev_b32", f"v{t3}", 4, f"v{t3}"))
    A(valu("v_lshl_add_u32", f"v{V_DQ}", f"v{t1}", 13, f"v{g}"))
    A(salu("s_lshl_b32", "s35", f"s{S_W}", 16))
    A(valu("v_add_u32", f"v{V_DQ}", "s35", f"v{V_DQ}"))
    A(salu("s_lshl_b32", "s35", f"s{S_W}", 11))
    A(valu("v_lshl_add_u32", f"v{V_DV}", f"v{t1}", 8, f"v{g}"))
    A(valu("v_add_u32", f"v{V_DV}", "s35", f"v{V_DV}"))
    A(valu("v_lshl_add_u32", f"v{V_DK}", f"v{t1}", 8, f"v{t3}"))
    A(valu("v_add_u32", f"v{V_DK}", "s35", f"v{V_DK}"))
    A(salu("s_movk_i32", "s35", 1152))
    A(valu("v_mul_lo_u32", f"v{g}", "s35", f"v{t1}"))
    A(valu("v_add_u32", f"v{g}", f"v{g}", f"v{t3}"))
    A(salu("s_mul_i32", "s35", f"s{S_W}", 36864))
    for k in range(4):
        A(salu("s_add_u32", "s36", "s35", k * (9216 - 1088)))
        A(valu("v_add_u32", f"v{V_DX[k]}", "s36", f"v{g}"))
    A(salu("s_mul_i32", "s35", f"s{S_W}", 9216))
    A(valu("v_add_u32", f"v{V_DX[0] + 8}", "s35", f"v{g}"))
    A(salu("s_mul_i32", f"s{S_MV}", f"s{S_W}", 2056))
    A(salu("s_lshl_b32", f"s{S_MK}", f"s{S_W}", 11))
    A(salu("s_lshr_b32", "s35", f"s{S_W}", 1))
    A(salu("s_lshl_b32", "s35", "s35", 6))
    A(salu("s_add_u32", f"s{S_MK}", f"s{S_MK}", "s35"))
    A(salu("s_mul_i32", f"s{S_MX}", f"s{S_W}", 4352))
    A(salu("s_mul_i32", f"s{S_MO}", f"s{S_W}", 1088))
    A(salu("s_movk_i32", f"s{S_A}", BIAS))
    A(salu("s_movk_i32", f"s{S_A2}", BIAS - 896))
    A(salu("s_mov_b32", f"s{S_B2}", 0))
    P.ptr["Q"] = 0; P.ptr["X"] = 0
    A(dma_X4(P, 0, ("X", 0)))
    for n_ in range(8): A(dma_WQ4(P, n_, ("Q", n_)))
    A(dma_X4(P, 1, ("X", 1)))
    if OPT["pf"]:
        A(salu("s_mul_i32", "s35", "s34", 288))
        A(salu("s_mul_i32", "s36", f"s{S_W}", 72))
        A(salu("s_add_u32", "s35", "s35", "s36"))
        for k in range(2):
            A(valu("v_min_u32", f"v{t3}", 63 if k == 0 else 7, f"v{l}"))
            A(valu("v_add_u32", f"v{t3}", "s35", f"v{t3}"))
            A(valu("v_lshrrev_b32", f"v{g}", 3, f"v{t3}"))
            A(valu("v_lshlrev_b32", f"v{g}", 13, f"v{g}"))
            A(valu("v_and_b32", f"v{t3}", 7, f"v{t3}"))
            A(valu("v_lshl_add_u32", f"v{g}", f"v{t3}", 7, f"v{g}"))
            A(valu("v_add_u32", f"v{g}", BIAS, f"v{g}"))
            A(tagged(bload(1, "v0", f"v{g}", rs("s", S_SRD0, 4), 0, 0), ("pf", 0)))
            A(salu("s_add_u32", "s35", "s35", 64))
        A(salu("s_and_b32", "s35", "s33", 1))
        A(salu("s_lshl_b32", "s35", "s35", 2))
        A(salu("s_add_u32", "s35", "s35", f"s{S_W}"))
        A(salu("s_mul_i32", "s35", "s35", 126 * 128))
        A(valu("v_lshlrev_b32", f"v{g}", 7, f"v{l}"))
        for k in range(2):
            A(tagged(bload(1, "v0", f"v{g}", rs("s", S_SRD1, 4), "s35", 0), ("pf", 1)))
            A(salu("s_add_u32", "s35", "s35", 62 * 128))
    if OPT.get("cpf", 1):
        P.cpf_id = getattr(P, "cpf_id", role)
        A(raw("s_getpc_b64 s[36:37]", "salu"))
        A(label(f"L_cpf_{role}"))
        A(raw(f"s_sub_u32 s36, s36, L_cpf_{role}-L_code_start", "salu"))
        A(raw("s_subb_u32 s37, s37, 0", "salu"))
        A(salu("s_lshr_b32", "s35", "s2", 3))
        A(salu("s_lshl_b32", "s35", "s35", 2))
        A(salu("s_add_u32", "s35", "s35", f"s{S_W}"))
        A(salu("s_and_b32", "s35", "s35", 15))
        A(salu("s_lshl_b32", "s35", "s35", 13))
        A(valu("v_lshlrev_b32", f"v{g}", 7, f"v{l}"))
        A(valu("v_add_u32", f"v{g}", "s35", f"v{g}"))
        A(raw(f"s_mov_b32 s35, L_code_end-L_code_start-4", "salu"))
        A(valu("v_min_u32", f"v{g}", "s35", f"v{g}"))
        A(tagged(I(f"global_load_dword v0, v{g}, s[36:37]", "vmem", [("v", g), ("s", 36), ("s", 37)], [("v", 0)]), ("pf", 2)))
    A(salu("s_lshl_b32", "s35", "s34", 5))
    A(salu("s_lshl_b32", "s36", "s33", 2))
    A(salu("s_add_u32", "s35", "s35", "s36"))
    A(salu("s_lshl_b32", "s36", "s35", 17))
    A(salu("s_lshr_b32", "s37", "s35", 15))
    for srd, p in ((S_SRDK, 6), (S_SRDV, 8)):
        A(salu("s_add_u32", f"s{srd}", f"s{p}", "s36"))
        A(salu("s_addc_u32", f"s{srd+1}", f"s{p+1}", "s37"))
        A(salu("s_sub_u32", f"s{srd}", f"s{srd}", BIAS))
        A(salu("s_subb_u32", f"s{srd+1}", f"s{srd+1}", 0))
        A(salu("s_mov_b32", f"s{srd+2}", 524288 + BIAS))
        A(salu("s_mov_b32", f"s{srd+3}", "0x00020000"))
    A(salu("s_movk_i32", f"s{S_KP}", BIAS)); A(salu("s_movk_i32", f"s{S_KP2}", BIAS - 896))
    A(salu("s_movk_i32", f"s{S_VP}", BIAS)); A(salu("s_movk_i32", f"s{S_VP2}", BIAS - 896))
    P.ptr["K3"] = 0; P.ptr["V3"] = 0
    A(salu("s_mul_i32", "s35", "s33", 512 * 1152))
    A(salu("s_add_u32", f"s{S_SRD2}", "s12", "s35"))
    A(salu("s_addc_u32", f"s{S_SRD2+1}", "s13", 0))
    A(salu("s_mov_b32", f"s{S_SRD2+2}", 512 * 1152))
    A(salu("s_mov_b32", f"s{S_SRD2+3}", "0x00020000"))
    A(salu("s_mul_i32", "s35", "s34", 72))
    A(salu("s_mul_i32", "s36", f"s{S_W}", 18))
    A(salu("s_add_u32", "s35", "s35", "s36"))
    A(valu("v_min_u32", f"v{t3}", 17, f"v{l}"))
    A(valu("v_add_u32", f"v{t3}", "s35", f"v{t3}"))
    A(valu("v_lshlrev_b32", f"v{V_PFO}", 7, f"v{t3}"))
    A(salu("s_mov_b32", f"s{S_PFOO}", 0))
    A(salu("s_mov_b32", f"s{S_C}", (-147456) & 0xffffffff))
    P.ptr["O"] = 0
    A(valu("v_lshlrev_b32", f"v{V_QL}", 4, f"v{l}"))
    A(patterns_common())
    nacc = 256 if role == "C" else 128
    for r in range(nacc): A(valu("v_accvgpr_write_b32", f"a{r}", 0))

def build_role(role, ctx):
    P = Prog(role)
    segs = {}
    def cut(name):
        segs.setdefault(name, []).append(P.out); P.out = []
    prologue_role(P); cut("pro")
    phase_Q4(P); cut("Q")
    q4_finish(P)
    for t in [("QF", 0)]: P.issued.add(t)
    cut("F")
    for r in range(4):
        phase_A(P, ctx, f"{role}B"); cut("AO")
    phase_O(P); cut("O")
    return segs

fold_id = [0]
def norm(t):
    t = re.sub(r"vmcnt\(\d+\) ?", "", t)
    t = re.sub(r"(L_tr_|L_back_)\w+", r"\1X", t)
    return re.sub(r"(--- barrier )\w+", r"\1X", t)
def fold(seq, p):
    chunks = [[]]
    for ins in seq:
        if ins.kind == "comment" and ins.text.startswith("; --- barrier"): chunks.append([])
        chunks[-1].append(ins)
    keys = ["\n".join(norm(i.text) for i in c) for c in chunks]
    best = (0, 0); n = len(chunks)
    for a in range(n):
        k = 1
        while a + (k + 1) * p <= n and all(keys[a + k * p + r] == keys[a + r] for r in range(p)): k += 1
        if k >= 2 and k > best[1]: best = (a, k)
    a, k = best
    if k < 2:
        print("fold failed"); return seq
    out = []
    for c in chunks[:a]: out += c
    for r in range(p):
        for it in range(1, k):
            for x, y in zip(chunks[a + r], chunks[a + it * p + r]):
                if x.kind == "wait" and x.text != y.text:
                    va, la = parse_wait(x.text); vb, lb = parse_wait(y.text)
                    vs = [q for q in (va, vb) if q is not None]
                    x.text = wait(min(vs) if vs else None, la).text
    fold_id[0] += 1
    lab = f"L_loop{fold_id[0]}"
    out.append(salu("s_mov_b32", f"s{S_LOOP}", k))
    out.append(label(lab))
    for c in chunks[a:a + p]: out += c
    out.append(salu("s_sub_u32", f"s{S_LOOP}", f"s{S_LOOP}", 1))
    out.append(salu("s_cmp_lg_u32", None, f"s{S_LOOP}", 0))
    out.append(raw(f"s_cbranch_scc1 {lab}", "branch"))
    for c in chunks[a + k * p:]: out += c
    print(f"fold: {n} chunks -> loop start {a} x{k} (period {p})")
    return out

def parse_wait(t):
    vm = re.search(r"vmcnt\((\d+)\)", t); lg = re.search(r"lgkmcnt\((\d+)\)", t)
    return (int(vm.group(1)) if vm else None, int(lg.group(1)) if lg else None)
def merge_instances(insts, name):
    base = insts[0]
    for other in insts[1:]:
        assert len(other) == len(base), (name, len(other), len(base))
        for a, b in zip(base, other):
            if a.text != b.text:
                assert a.kind == "wait" and b.kind == "wait", (name, a.text, b.text)
                va, la = parse_wait(a.text); vb, lb = parse_wait(b.text)
                assert la == lb, (a.text, b.text)
                vs = [x for x in (va, vb) if x is not None]
                a.text = wait(min(vs), la).text
    return base

NRED = 32 * 7 * 18 * 64 // 256
def reduce_kernel():
    L = []
    A = L.append
    ldf = {0: "", 1: " nt", 2: " sc1", 3: " sc0 sc1"}[OPT.get("rdnt", 0)]
    A(f"s_cmp_ge_u32 s2, {NRED}")
    A("s_cbranch_scc1 L_rend")
    A("s_load_dwordx2 s[4:5], s[0:1], 96")
    A("s_load_dwordx2 s[6:7], s[0:1], 80")
    A("v_lshrrev_b32 v1, 6, v0")
    A("v_and_b32 v3, 63, v0")
    A("v_readfirstlane_b32 s12, v1")
    A("s_lshl_b32 s13, s2, 2")
    A("s_add_u32 s13, s13, s12")
    A(f"s_mul_hi_u32 s8, s13, {(2**32 + 125) // 126}")
    A("s_mul_i32 s9, s8, 126")
    A("s_sub_u32 s9, s13, s9")
    A("s_lshr_b32 s10, s8, 4")
    A("s_and_b32 s11, s8, 15")
    A(f"s_mul_hi_u32 s14, s9, {(2**32 + 17) // 18}")
    A("s_mul_i32 s15, s14, 18")
    A("s_sub_u32 s15, s9, s15")
    A("v_lshlrev_b32 v2, 4, v3")
    A("s_lshl_b32 s27, s9, 10")
    A("v_add_u32 v2, s27, v2")
    A("v_and_b32 v4, 15, v3")
    A("v_lshrrev_b32 v5, 4, v3")
    A("s_waitcnt lgkmcnt(0)")
    A("s_mov_b32 s16, s4"); A("s_mov_b32 s17, s5"); A(f"s_mov_b32 s18, {256*PSZ}"); A("s_mov_b32 s19, 0x00020000")
    A("s_mov_b32 s20, s6"); A("s_mov_b32 s21, s7"); A(f"s_mov_b32 s22, {16*112*1152*2}"); A("s_mov_b32 s23, 0x00020000")
    A("s_lshl_b32 s26, s11, 4")
    A("s_lshl_b32 s25, s10, 2")
    A("s_add_u32 s26, s26, s25")
    for j in range(8):
        A(f"s_add_u32 s24, s26, {((j & 1) << 3) | (j >> 1)}")
        A(f"s_mul_i32 s24, s24, {PSZ}")
        A(f"buffer_load_dwordx4 v[{8+4*j}:{11+4*j}], v2, s[16:19], s24 offen{ldf}")
    A("s_mul_i32 s24, s11, 112")
    A("s_lshl_b32 s25, s14, 4")
    A("s_add_u32 s24, s24, s25")
    A("v_add_u32 v4, s24, v4")
    A("s_movk_i32 s25, 2304")
    A("v_mul_lo_u32 v4, s25, v4")
    A("s_mul_i32 s24, s10, 1152")
    A("s_lshl_b32 s25, s15, 6")
    A("s_add_u32 s24, s24, s25")
    A("v_lshl_add_u32 v4, v5, 3, v4")
    A("v_add_u32 v4, s24, v4")
    for j in range(8):
        A(f"s_waitcnt vmcnt({7-j})")
        for d in range(4):
            r = 8 + 4 * j + d
            if j == 0:
                A(f"v_lshlrev_b32 v{48+2*d}, 16, v{r}")
                A(f"v_and_b32 v{48+2*d+1}, 0xffff0000, v{r}")
            else:
                A(f"v_lshlrev_b32 v40, 16, v{r}")
                A(f"v_and_b32 v41, 0xffff0000, v{r}")
                A(f"v_add_f32 v{48+2*d}, v{48+2*d}, v40")
                A(f"v_add_f32 v{48+2*d+1}, v{48+2*d+1}, v41")
    for d in range(4):
        A(f"v_cvt_pk_bf16_f32 v{56+d}, v{48+2*d}, v{48+2*d+1}")
    A("buffer_store_dwordx2 v[56:57], v4, s[20:23], 0 offen")
    A("buffer_store_dwordx2 v[58:59], v4, s[20:23], 0 offen offset:32")
    A("L_rend:")
    A("s_endpgm")
    return "\n".join(L) + "\n"

def fused_tail():
    T = []
    A = lambda t: T.append(raw(t, "raw"))
    T.append(label("L_tail"))
    A("s_waitcnt vmcnt(0)")
    A("s_barrier")
    A("s_load_dwordx2 s[4:5], s[0:1], 88")
    A("s_load_dwordx2 s[6:7], s[0:1], 80")
    A("v_mbcnt_lo_u32_b32 v1, -1, 0")
    A("v_mbcnt_hi_u32_b32 v1, -1, v1")
    A("s_lshl_b32 s12, s32, 4")
    A("s_add_u32 s12, s12, s34")
    A("s_lshl_b32 s12, s12, 2")
    A("s_waitcnt lgkmcnt(0)")
    A("s_mov_b32 s8, s4"); A("s_mov_b32 s9, s5"); A("s_movk_i32 s10, 256"); A("s_mov_b32 s11, 0x00020000")
    A(f"s_cmp_lg_u32 s{S_W}, 0")
    A("s_cbranch_scc1 L_tail_wait")
    A("v_mov_b32 v2, 1")
    A("v_mov_b32 v3, 0")
    A("v_cmp_eq_u32 vcc, 0, v1")
    A("s_and_saveexec_b64 s[14:15], vcc")
    A("buffer_atomic_add v2, v3, s[8:11], s12 offen")
    A("s_mov_b64 exec, s[14:15]")
    A("s_waitcnt vmcnt(0)")
    A("s_mov_b32 s13, 0")
    T.append(label("L_poll"))
    A("buffer_load_dword v2, v3, s[8:11], s12 offen sc1")
    A("s_waitcnt vmcnt(0)")
    A("v_readfirstlane_b32 s16, v2")
    A("s_add_u32 s13, s13, 1")
    A("s_cmp_ge_u32 s16, 8")
    A("s_cbranch_scc1 L_tail_wait")
    A("s_sleep 1")
    A("s_cmp_lt_u32 s13, 0x400000")
    A("s_cbranch_scc1 L_poll")
    T.append(label("L_tail_wait"))
    A("s_barrier")
    T += pstamp(True)
    A("s_mov_b32 s16, s24"); A("s_mov_b32 s17, s25"); A(f"s_mov_b32 s18, {256*PSZ}"); A("s_mov_b32 s19, 0x00020000")
    A("s_mov_b32 s20, s6"); A("s_mov_b32 s21, s7"); A(f"s_mov_b32 s22, {16*112*1152*2}"); A("s_mov_b32 s23, 0x00020000")
    A("v_lshlrev_b32 v2, 4, v1")
    A("v_and_b32 v4, 15, v1")
    A("v_lshrrev_b32 v5, 4, v1")
    A("s_lshl_b32 s26, s33, 4")
    A(f"s_lshl_b32 s27, s{S_W}, 2")
    A("s_add_u32 s26, s26, s27")
    A("s_lshl_b32 s28, s34, 4")
    A("s_lshl_b32 s29, s32, 2")
    A("s_add_u32 s28, s28, s29")
    for k in range(4):
        for p in range(8):
            A(f"s_add_u32 s30, s28, {((p & 1) << 3) | (p >> 1)}")
            A(f"s_mul_i32 s30, s30, {PSZ}")
            A(f"s_add_u32 s31, s26, {k}")
            A("s_lshl_b32 s31, s31, 10")
            A("s_add_u32 s30, s30, s31")
            r = 16 + (k * 8 + p) * 4
            A(f"buffer_load_dwordx4 v[{r}:{r+3}], v2, s[16:19], s30 offen sc1")
    for k in range(4):
        A(f"s_add_u32 s31, s26, {k}")
        A(f"s_mul_hi_u32 s30, s31, {(2**32 + 17) // 18}")
        A("s_mul_i32 s29, s30, 18")
        A("s_sub_u32 s29, s31, s29")
        A("s_mul_i32 s27, s34, 112")
        A("s_lshl_b32 s30, s30, 4")
        A("s_add_u32 s27, s27, s30")
        A("v_add_u32 v6, s27, v4")
        A("s_movk_i32 s27, 2304")
        A("v_mul_lo_u32 v6, s27, v6")
        A("s_mul_i32 s27, s32, 1152")
        A("s_lshl_b32 s29, s29, 6")
        A("s_add_u32 s27, s27, s29")
        A("v_lshl_add_u32 v6, v5, 3, v6")
        A("v_add_u32 v6, s27, v6")
        for p in range(8):
            A(f"s_waitcnt vmcnt({min(63, (3 - k) * 8 + (7 - p) + 2 * 0)})" if False else f"s_waitcnt vmcnt({(3 - k) * 8 + (7 - p) + 2 * k})")
            for d in range(4):
                r = 16 + (k * 8 + p) * 4 + d
                if p == 0:
                    A(f"v_lshlrev_b32 v{8+2*d}, 16, v{r}")
                    A(f"v_and_b32 v{8+2*d+1}, 0xffff0000, v{r}")
                else:
                    A(f"v_lshlrev_b32 v3, 16, v{r}")
                    A(f"v_and_b32 v7, 0xffff0000, v{r}")
                    A(f"v_add_f32 v{8+2*d}, v{8+2*d}, v3")
                    A(f"v_add_f32 v{8+2*d+1}, v{8+2*d+1}, v7")
        for d in range(4):
            A(f"v_cvt_pk_bf16_f32 v{150+4*k+d}, v{8+2*d}, v{8+2*d+1}")
        A("s_cmp_ge_u32 s31, 126")
        A(f"s_cselect_b32 s27, 0x7f000000, 0")
        A(f"buffer_store_dwordx2 v[{150+4*k}:{151+4*k}], v6, s[20:23], s27 offen")
        A(f"buffer_store_dwordx2 v[{152+4*k}:{153+4*k}], v6, s[20:23], s27 offen offset:32")
    if DEBUG == "T":
        A("s_waitcnt vmcnt(0)")
        T += pstamp(True)
    A("s_endpgm")
    return T

def dbg_dump(base, n):
    L = []
    L.append(raw("s_waitcnt vmcnt(0) lgkmcnt(0)", "wait"))
    L.append(nop(15))
    L.append(salu("s_lshl_b32", "s88", "s2", 2))
    L.append(salu("s_add_u32", "s88", "s88", f"s{S_W}"))
    L.append(salu("s_lshl_b32", "s88", "s88", 14))
    L.append(salu("s_add_u32", "s88", "s88", 64 << 20))
    L.append(salu("s_mov_b32", "s84", "s24")); L.append(salu("s_mov_b32", "s85", "s25"))
    L.append(salu("s_mov_b32", "s86", 128 << 20)); L.append(salu("s_mov_b32", "s87", "0x00020000"))
    L.append(valu("v_mbcnt_lo_u32_b32", "v15", -1, 0))
    L.append(valu("v_mbcnt_hi_u32_b32", "v15", -1, "v15"))
    L.append(valu("v_lshlrev_b32", "v15", 2, "v15"))
    for r in range(n):
        if r and r % 16 == 0: L.append(salu("s_add_u32", "s88", "s88", 4096))
        L.append(bstore(1, f"v{base + r}", "v15", "s[84:87]", "s88", (r % 16) * 256))
    L.append(raw("s_waitcnt vmcnt(0)", "wait"))
    L.append(raw("s_endpgm", "end"))
    return L

def stamp_init():
    L = []
    L.append(salu("s_lshl_b32", "s88", "s2", 2))
    L.append(salu("s_add_u32", "s88", "s88", f"s{S_W}"))
    L.append(salu("s_lshl_b32", "s88", "s88", 11 if DEBUG == "G" else (10 if DEBUG == "F" else 8)))
    L.append(salu("s_add_u32", "s88", "s88", 100 << 20))
    L.append(salu("s_mov_b32", "s84", "s24")); L.append(salu("s_mov_b32", "s85", "s25"))
    L.append(salu("s_mov_b32", "s86", 128 << 20)); L.append(salu("s_mov_b32", "s87", "0x00020000"))
    return L
def pstamp(real=False):
    return [] if DEBUG == "G" else stamp(real)
def stamp(real=False):
    if DEBUG not in ("T", "F", "G"): return []
    L = []
    L.append(raw("s_memrealtime s[96:97]" if real else "s_memtime s[96:97]", "smem"))
    L.append(raw("s_waitcnt lgkmcnt(0)", "wait"))
    L.append(valu("v_mov_b32", "v18", "s96"))
    L.append(valu("v_mov_b32", "v19", 0))
    L.append(bstore(1, "v18", "v19", "s[84:87]", "s88", 0))
    L.append(salu("s_add_u32", "s88", "s88", 4))
    return L

def main(outpath):
    ctx = Ctx()
    FUSE = OPT.get("fuse", 1)
    from gcommon import KN
    name = KN if FUSE else MAIN
    if FUSE: txt = header([(KN, (256, 1, 1), (256, 1, 1), LDS_TOTAL)])
    else: txt = header([(MAIN, (256, 1, 1), (256, 1, 1), LDS_TOTAL), (RED, (NRED, 1, 1), (256, 1, 1), 0)])
    txt += kstart(name)
    body = [label("L_code_start")]
    pro = prologue_common()
    body += pro
    body.append(raw(f"s_cmp_ge_u32 s{S_W}, 3", "salu"))
    body.append(raw("s_cbranch_scc1 L_role_W_far", "branch"))
    allprobs = []
    for role in ("C", "W"):
        segs = build_role(role, ctx)
        nq = 2 if role == "C" else 1
        Q = segs["Q"][0]
        AO = merge_instances(segs["AO"], "AO")
        seq = []
        if role == "W": seq.append(label("L_role_W"))
        if DEBUG in ("T", "F", "G"): seq += stamp_init() + pstamp(True) + pstamp()
        seq += segs["pro"][0]
        seq += pstamp()
        seq += fold(Q, OPT.get("qper", 8)) if DEBUG not in ("F", "G") else Q
        seq += pstamp()
        seq += segs["F"][0]
        seq += pstamp()
        if DEBUG == "Q": seq += dbg_dump(V_QF, 32)
        seq.append(label(f"L_head_{role}"))
        seq += fold(AO, 4) if DEBUG not in ("F", "G") else AO
        seq += pstamp()
        if DEBUG == "O": seq += dbg_dump(V_OF, 32)
        seq.append(raw(f"s_add_u32 s{S_R}, s{S_R}, 1", "salu"))
        seq.append(raw(f"s_cmp_lt_u32 s{S_R}, 4", "salu"))
        seq.append(raw(f"s_cbranch_scc1 L_head_{role}", "branch"))
        seq += fold(segs["O"][0], 4) if DEBUG not in ("F", "G") else segs["O"][0]
        seq += pstamp()
        seq.append(raw("s_waitcnt vmcnt(0)", "wait"))
        seq += pstamp() + pstamp(True)
        if FUSE: seq.append(raw("s_branch L_tail", "branch"))
        else: seq.append(raw("s_endpgm", "end"))
        used = set(re.findall(r"s_cbranch_scc1 L_tr_(\w+)", "\n".join(i.text for i in seq)))
        for uid, par in ctx.slow.items():
            if uid in used: seq += trampoline(uid, f"L_slow_{role}{par}")
        for par in (0, 1):
            B = slow_routine(par, nq, f"L_slow_{role}{par}")
            allprobs += check_hazards(B, f"slow{role}{par}")
            seq += B
        lin = pro + segs["pro"][0] + Q + segs["F"][0] + AO + AO + segs["O"][0]
        allprobs += check_hazards(lin, role)
        if role == "C":
            body.append(raw("s_branch L_role_C", "branch"))
            body.append(label("L_role_W_far"))
            body.append(raw("s_getpc_b64 s[30:31]", "salu"))
            body.append(label("L_pcw"))
            body.append(raw("s_add_u32 s30, s30, L_role_W-L_pcw", "salu"))
            body.append(raw("s_addc_u32 s31, s31, 0", "salu"))
            body.append(raw("s_setpc_b64 s[30:31]", "branch"))
            body.append(label("L_end"))
            body.append(raw("s_endpgm", "end"))
            body.append(label("L_role_C"))
        body += seq
        if role == "C" and FUSE: body += fused_tail()
    body.append(label("L_code_end"))
    body.append(raw("s_endpgm", "end"))
    txt += "\n".join(i.text for i in body) + "\n"
    if not FUSE: txt += kstart(RED) + reduce_kernel()
    txt += kdesc(name, 512, sgpr=100, accum=256)
    if not FUSE: txt += kdesc(RED, 64, sgpr=40)
    open(outpath, "w").write(txt)
    for p in allprobs[:40]: print("HAZARD", p)
    print("instructions:", sum(1 for i in body if i.kind not in ("label", "comment")), "bytes of text", len(txt))

if __name__ == "__main__":
    if len(sys.argv) > 2: DEBUG = sys.argv[2]
    for a in sys.argv[3:]:
        k, v = a.split("="); OPT[k] = int(v)
    main(sys.argv[1] if len(sys.argv) > 1 else "k8.s")
```

```python
import sys, math, struct, re
from asmlib import *
sys.path.insert(0, "work")
from gcommon import header, kstart, kdesc

OPT = {"bar_delay": 2, "budget": 4, "barcost": 1, "postq": 4, "catchq": 4, "capf": 2, "pf": 1, "NB": 7, "wcap": 2}
DEBUG = ""
MAIN = "fa_main_kernel"
RED = "fa_reduce_kernel"

NKV = 4
TSLOT = 8256
VBASE = 0
KBASE = NKV * TSLOT
WBASE = 2 * NKV * TSLOT
XSLOT = 16 * 1088
XREG = 0
QREG = 3 * XSLOT
LDS_TOTAL = WBASE + QREG + 4 * TSLOT
PSZ = 7 * 18 * 1024
OGRP = 4352
def wqslot(s): return QREG + ((s + 2) % 4) * TSLOT
def xslot(p): return XREG + (p % 3) * XSLOT
def oslot(z): return [XREG, XREG + XSLOT, QREG, XREG + 2 * XSLOT][z % 4]

V_T = [1, 2]
V_K = 3
V_X = 4
V_W = [5, 6]
V_D = [7, 8, 9, 10]
V_L = [11, 12]
V_TS = [13, 14]
V_TMP = [15, 16, 17, 18, 19]
V_NEGM = 20
V_P = 28
V_S = [36, 52]
V_OACC = 68
V_OUTX = 132
V_QF = 164
V_OF = 196
V_AF = 228
VW_Q = [148, 149, 150, 151]
VW_X = [152, 153, 154, 155]
VW_K = [156, 157]
VW_V = [158, 159, 160, 161]
V_Q = [52, 53]
V_DK, V_DV, V_PFO, V_QL = 7, 8, 9, 10
V_DO = 4
V_DQ = 54
V_DX = [55, 56, 57, 58]

S_SRD0, S_SRD1, S_SRD2, S_SRDP = 40, 44, 48, 52
S_W, S_R = 56, 58
S_A, S_B2, S_C = 60, 61, 62
S_TMP = 63
S_KM = [64, 65, 66]
S_VM = [67, 68, 69]
S_G = [76, 77, 78]
S_CMP = 70
S_THR = 73
S_CSC = 72
S_CSC2 = 26
S_T = 74
S_PFQO, S_PFOO = 79, 89
S_PFQ, S_PFO = 48, 80
S_RET = 90
S_KT, S_KH, S_VT, S_VH = 4, 5, 6, 7
S_KP2, S_VP2, S_A2 = 66, 67, 68
S_MK, S_MV, S_MX, S_MO = 69, 76, 77, 78
S_LOOP = 39
S_SRDQ = 28
S_QFO = 38
QOFF = 48 << 20
S_SRDK, S_SRDV = 80, 92
S_KP, S_VP = 64, 65

SCALE = 1.4426950408889634 / math.sqrt(128.0)
def f32bits(x): return struct.unpack("<I", struct.pack("<f", x))[0]
def tagged(ins, tag):
    ins.tag = tag
    return ins

def outacc(nt, qt, nq):
    idx = nt * nq + qt
    if nq == 1: return rs("a", 4 * idx, 4)
    if idx < 64: return rs("a", 4 * idx, 4)
    return rs("v", V_OUTX + 4 * (idx - 64), 4)
def oacc(s, t, qt): return V_OACC + ((s * 2 + t) * 2 + qt) * 4

class Job:
    def __init__(self, epoch, mk, reads, fixed=()):
        self.epoch = epoch; self.mk = mk; self.reads = reads; self.fixed = fixed
        self.ops = []; self.buf = None; self.pre = []
class Epoch:
    def __init__(self, name, needs):
        self.name = name; self.needs = needs; self.fill = []; self.first = None; self.done_bar = False
class FillQ:
    def __init__(self, items, start, end, isdma=False):
        self.items = list(items); self.start = start; self.end = end; self.isdma = isdma
        self.maxper = OPT.get("dmaper", 2) if isdma else None

class Prog:
    def __init__(self, role):
        self.role = role
        self.nq = 2 if role == "C" else 1
        self.out = []; self.vq = []; self.lq = []; self.nop_id = 0; self.issued = set()
        self.ptr = {}
        self.first_tile = {}
    def emit(self, ins):
        if isinstance(ins, list):
            for i in ins: self.emit(i)
            return
        if ins.kind == "vmem" and isinstance(ins.tag, tuple) and ((OPT.get("noO") and ins.tag[0] == "O") or (OPT.get("noKV") and ins.tag[0] in ("K", "V")) or (OPT.get("noV") and ins.tag[0] == "V")):
            self.vq.append(ins.tag); self.issued.add(ins.tag)
            return
        if ins.kind == "vmem" and (OPT.get("nodma") or (OPT.get("nokv") and self.role == "C") or (OPT.get("now") and self.role == "W")):
            self.vq.append(ins.tag); self.issued.add(ins.tag)
            return
        if ins.kind == "vmem" and ins.text.endswith("lds") and self.out and ("s", 124) in self.out[-1].wr:
            self.out.append(nop(0))
        self.out.append(ins)
        if ins.kind in ("vmem", "vstore"):
            self.vq.append(ins.tag if ins.kind == "vmem" else "store")
            self.issued.add(ins.tag)
        if ins.kind == "lds":
            self.nop_id += 1
            self.lq.append(self.nop_id)
            return self.nop_id
    def vm_wait_for(self, tags):
        last = -1
        for i, t in enumerate(self.vq):
            if t in tags: last = i
        if last < 0: return None
        return len(self.vq) - 1 - last
    def do_wait(self, vm=None, lgkm=None):
        if vm is not None:
            vm = min(vm, 63)
            if vm == 0: self.vq = []
            elif vm < len(self.vq): self.vq = self.vq[len(self.vq) - vm:]
        if lgkm is not None:
            if lgkm == 0: self.lq = []
            elif lgkm < len(self.lq): self.lq = self.lq[len(self.lq) - lgkm:]
        self.emit(wait(vm, lgkm))
    def move_ptr(self, name, target, sregs=()):
        d = target - self.ptr[name]
        self.ptr[name] = target
        if d == 0: return []
        return [salu("s_add_u32", f"s{r}", f"s{r}", d & 0xffffffff) for r in sregs]

    def run_stream(self, jobs, NB=None, AFB=None, ahead=False):
        NB = NB or OPT["NB"]
        AFB = AFB or V_AF
        n = len(jobs)
        budget = OPT["budget"] if self.nq == 2 else OPT["budget"]
        if self.nq == 1: budget = 6
        for k, j in enumerate(jobs):
            if j.epoch.first is None: j.epoch.first = k
            j.epoch.last = k
        eps_list = []
        for j in jobs:
            if not eps_list or eps_list[-1] is not j.epoch: eps_list.append(j.epoch)
        for ei, e in enumerate(eps_list):
            e.idx = ei; e.vis = False
        free = list(range(NB))
        off = 0
        for e in eps_list:
            ne = e.last - e.first + 1
            for k in range(e.first, e.last + 1): jobs[k].want = (off + k - e.first) % NB
            skip = 0
            if NB == 7: skip = {24: 1, 28: 2, 8: 2}.get(ne, 0)
            off = (off + ne + skip) % NB
        nextrd = 0
        fq = []
        state = {"lastrd": -10, "dq": None}
        def issue_reads(j):
            b = j.want; free.remove(b); j.buf = b
            base = AFB + 4 * b
            for kind, dst, addr, imm in j.fixed:
                j.ops.append(self.emit(ds_read(kind, dst, addr, imm)))
            sub = 0
            for kind, addr, imm in j.reads:
                w = 4 if kind == "b128" else 2
                j.ops.append(self.emit(ds_read(kind, rs("v", base + sub, w), addr, imm)))
                sub += w
            return len(j.fixed) + len(j.reads)
        def do_barrier(e, g):
            needs = list(e.needs)
            if ahead:
                nxt = eps_list[e.idx + 1] if e.idx + 1 < len(eps_list) else None
                needs = (list(e.needs) if e.idx == 0 else []) + (list(nxt.needs) if nxt else [])
                if nxt: nxt.vis = True
            e.vis = True
            for t in needs: assert t in self.issued, ("not issued", e.name, t)
            vm = self.vm_wait_for(set(needs)) if needs else None
            self.emit(comment(f"--- barrier {e.name}"))
            if ahead and e.idx > 0:
                if vm is not None: self.do_wait(vm=vm)
                self.emit(barrier())
                e.done_bar = True
                activate(e, g)
                return
            if DEBUG == "G":
                self.do_wait(lgkm=0); self.emit(stamp())
            self.do_wait(vm=vm, lgkm=0 if not OPT.get("nolg") else None) if (vm is not None or not OPT.get("nolg")) else None
            if DEBUG == "G": self.emit(stamp())
            if not OPT.get("nobar"): self.emit(barrier())
            if DEBUG == "F": self.emit(stamp())
            e.done_bar = True
            activate(e, g)
        def activate(e, g):
            for q in e.fill:
                if q.start < g: q.start = g
                if q.isdma and state["dq"] is not None:
                    if not state["dq"].items: state["dq"].start = q.start
                    state["dq"].items += q.items
                    state["dq"].end = max(state["dq"].end, q.end)
                elif q.isdma:
                    state["dq"] = q; fq.insert(0, q)
                else: fq.append(q)
        def wait_for(j):
            idx = -1
            for i, o in enumerate(self.lq):
                if o in j.ops: idx = i
            if idx >= 0:
                self.do_wait(lgkm=min(15, len(self.lq) - 1 - idx))
                return 1
            return 0
        def fillers(g, rem, force_ok):
            for q in fq:
                if not q.items or g < q.start: continue
                left_gaps = max(1, q.end - g + 1)
                cost = sum(i.cost for i in q.items) // 4
                must = cost - (left_gaps - 1) * (q.maxper if q.maxper else OPT["capf"])
                if g >= q.end: must = cost
                if not force_ok: must = 0
                lim = q.maxper if q.maxper else 99
                took = 0
                while q.items and (took < lim or took < must):
                    it = q.items[0]
                    c = max(1, it.cost // 4)
                    if isinstance(it.tag, tuple) and it.tag and it.tag[0] == "after" and g < it.tag[1]: break
                    if took >= must and c > rem: break
                    q.items.pop(0)
                    self.emit(it); took += c; rem -= c
            return rem
        def reads(g, quota):
            nonlocal nextrd
            nl = 0
            while nextrd < n:
                j = jobs[nextrd]; e = j.epoch
                if not e.vis: break
                cnt = len(j.fixed) + len(j.reads)
                if j.want in free and (nl + cnt <= quota or (nl == 0 and quota > 0)):
                    c = issue_reads(j); nl += c
                    nextrd += 1
                    state["lastrd"] = g
                else: break
            return nl
        def try_barrier(g):
            if ahead:
                if g + 1 < n:
                    e = jobs[g + 1].epoch
                    if not e.done_bar and e.first == g + 1:
                        do_barrier(e, g); return True
                return False
            if nextrd < n:
                j = jobs[nextrd]; e = j.epoch
                lead = nextrd - (g + 1)
                if not e.done_bar and (g == -1 or g >= state["lastrd"] + OPT["bar_delay"] or lead <= 2):
                    do_barrier(e, g); return True
            return False
        def windowA(g):
            cap = OPT["wcap"]
            lead = nextrd - (g + 1)
            used = reads(g, 2 if lead >= NB - 1 else OPT["catchq"])
            fillers(g, cap - used, False)
        def windowB(g, cap):
            nx = g + 1
            used = 0
            didbar = try_barrier(g)
            if didbar: used += 2 + OPT["barcost"]
            if (not didbar or (ahead and g >= 0)) and nx < n and jobs[nx].ops: used += wait_for(jobs[nx])
            lead = nextrd - (g + 1)
            if g == -1: used += reads(g, 99)
            elif self.nq == 1: used += reads(g, OPT["postq"] if didbar else (OPT["catchq"] if lead < NB - 1 else 2))
            elif didbar or lead < NB - 2: used += reads(g, 2)
            late_wait = nx < n and any(o in self.lq for o in jobs[nx].ops)
            if late_wait: used += 1
            fillers(g, cap - used, True)
            if late_wait: wait_for(jobs[nx])
        windowB(-1, 99)
        for k in range(n):
            j = jobs[k]
            for p in j.pre:
                if callable(p): p(self)
                else: self.emit(p)
            ms = j.mk(rs("v", AFB + 4 * j.buf, 4))
            if len(ms) == 2:
                self.emit(ms[0])
                windowA(k)
                self.emit(ms[1])
                free.append(j.buf)
                windowB(k, OPT["wcap"])
            else:
                self.emit(ms[0])
                free.append(j.buf)
                windowB(k, 6)
        for q in fq:
            while q.items: self.emit(q.items.pop(0))

def dma_KVs(P, kind, n, tag):
    K = kind == "K"
    b = (KBASE if K else VBASE) + ((n % 16) % NKV) * TSLOT
    p1, p2, srd, pat, M = (S_KP, S_KP2, S_SRDK, V_DK, S_MK) if K else (S_VP, S_VP2, S_SRDV, V_DV, S_MV)
    L = [salu("s_add_u32", "m0", f"s{M}", b)]
    if OPT.get("rot", 1):
        rt, rh = (S_KT, S_KH) if K else (S_VT, S_VH)
        L.append(salu("s_add_u32", f"s{rt}", f"s{rt}", 8192))
        L.append(salu("s_and_b32", f"s{rt}", f"s{rt}", 0x1ffff))
        prev = P.ptr[kind + "3"] // 8192
        P.ptr[kind + "3"] = n * 8192
        assert n == prev + 1, (kind, n, prev)
        if n % 16 == 0 and not P.first_tile.get(kind, True): L.append(salu("s_add_u32", f"s{rh}", f"s{rh}", 131072))
        P.first_tile[kind] = False
        L.append(salu("s_add_u32", f"s{p1}", f"s{rt}", f"s{rh}"))
        L.append(salu("s_add_u32", f"s{p2}", f"s{p1}", (-896) & 0xffffffff))
    else:
        L += P.move_ptr(kind + "3", n * 8192, sregs=(p1, p2))
    L.append(tagged(dma(f"v{pat}", rs("s", srd, 4), f"s{p1}", 0, nt=True), tag))
    L.append(tagged(dma(f"v{pat}", rs("s", srd, 4), f"s{p2}", 1024, nt=True), tag))
    return L
def o_tile_info(z):
    s = (z % 16) >> 2
    starts = [0, 2, 4, 6, 9]
    q = z & 3
    return s, starts[q], starts[q + 1]
def dma_O(P, z, tag):
    s, c0, c1 = o_tile_info(z)
    hd = z // 16
    b = WBASE + oslot(z)
    L = []
    for cg in range(c0, c1):
        L.append(salu("s_add_u32", "m0", f"s{S_MO}", b + (cg - c0) * OGRP))
        mv = P.move_ptr("O", (hd * 128 + 32 * s) * 1152 + cg * 128, sregs=(S_C,))
        L += mv
        L.append(tagged(dma(f"v{V_DO}", rs("s", S_SRD2, 4), f"s{S_C}", 0), tag))
    return L
def pf_wq():
    if not OPT["pf"]: return []
    return [tagged(bload(1, "v0", f"v{V_D[2]}", rs("s", S_PFQ, 4), f"s{S_PFQO}", 0), ("pf", 0)),
            salu("s_add_u32", f"s{S_PFQO}", f"s{S_PFQO}", 256)]
def pf_wo():
    if not OPT["pf"]: return []
    return [tagged(bload(1, "v0", f"v{V_PFO}", rs("s", S_SRD2, 4), f"s{S_PFOO}", 0), ("pf", 0)),
            salu("s_add_u32", f"s{S_PFOO}", f"s{S_PFOO}", 128 * 1152)]

def q4acc(h, s, t, qt, nq):
    return (h * 8 + s * 2 + t) * nq * 4 + qt * 4
def xslot4(p): return (p % 2) * XSLOT
def dma_WQ4(P, eps, tag):
    st, h = eps // 4, eps % 4
    b = (eps % 8) * TSLOT
    L = [salu("s_add_u32", "m0", f"s{S_MV}", b)]
    L += P.move_ptr("Q", h * 256 + st * 262144, sregs=(S_A, S_A2))
    L.append(tagged(dma(f"v{V_DQ}", rs("s", S_SRD0, 4), f"s{S_A}", 0), tag))
    L.append(tagged(dma(f"v{V_DQ}", rs("s", S_SRD0, 4), f"s{S_A2}", 1024), tag))
    return L
def dma_X4(P, p, tag):
    b = WBASE + xslot4(p)
    L = [salu("s_add_u32", "m0", f"s{S_MX}", b)]
    L += P.move_ptr("X", p * 128, sregs=(S_B2,))
    for k in range(4):
        L.append(tagged(dma(f"v{V_DX[k]}", rs("s", S_SRD1, 4), f"s{S_B2}", 1088 * k), tag))
    return L

def phase_Q4(P):
    role, nq = P.role, P.nq
    jobs = []
    for m in range(36):
        st = m // 2
        needs = [("Q", 2 * m), ("Q", 2 * m + 1)] + ([("X", st >> 1)] if m % 4 == 0 else [])
        e = Epoch(f"Q{m}", needs)
        xb = V_S[0] + 8 * (st & 1)
        for hh in range(2):
            eps = 2 * m + hh
            h = eps % 4
            first = (h == 0)
            for s in range(4):
                for t in range(2):
                    base = (eps % 8) * TSLOT + (s >> 1) * 1024 + 8 * t
                    addr = f"v{V_T[s & 1]}"
                    reads = [("tr", addr, base), ("tr", addr, base + 512)]
                    fixed = []
                    if first:
                        fixed = [("b128", rs("v", xb + 4 * qt, 4), f"v{V_X}", xslot4(st >> 1) + (st & 1) * 64 + qt * 2176) for qt in range(nq)]
                        first = False
                    def mk(a, s=s, t=t, h=h, xb=xb):
                        L = []
                        for qt in range(nq):
                            acc = rs("a", q4acc(h, s, t, qt, nq), 4)
                            L.append(mfma16(acc, a, rs("v", xb + 4 * qt, 4), acc))
                        return L
                    jobs.append(Job(e, mk, reads, fixed))
        f = 16 * m
        d = []
        if m >= 1:
            d += dma_WQ4(P, 2 * (m + 3), ("Q", 2 * (m + 3))) + dma_WQ4(P, 2 * (m + 3) + 1, ("Q", 2 * (m + 3) + 1))
        if m % 4 == 0 and m >= 4: d += dma_X4(P, m // 4 + 1, ("X", m // 4 + 1))
        if d: e.fill.append(FillQ(d, f - 1, f + 10, isdma=True))
    P.run_stream(jobs, NB=8, AFB=V_OACC, ahead=True)

def q4_finish(P):
    role, nq = P.role, P.nq
    P.do_wait(vm=0, lgkm=0)
    P.emit(barrier())
    for kind, n in (("K", 0), ("K", 1), ("V", 0), ("K", 2), ("V", 1), ("K", 3)):
        P.emit(dma_KVs(P, kind, n, (kind, n)))
    P.emit(valu("v_mov_b32", f"v{V_DO}", f"v{V_DX[0] + 8}"))
    for z in range(3): P.emit(dma_O(P, z, ("O", z)))
    P.emit(nop(7))
    T = V_OACC
    v = V_TMP[0]
    P.emit(valu("v_mbcnt_lo_u32_b32", f"v{v}", -1, 0))
    P.emit(valu("v_mbcnt_hi_u32_b32", f"v{v}", -1, f"v{v}"))
    for h in range(4):
        dstbase = V_QF if h == 0 else V_OF
        for s in range(4):
            for qt in range(nq):
                for t in range(2):
                    a = q4acc(h, s, t, qt, nq)
                    tb = T + ((s * 2 + qt) * 2 + t) * 4
                    for r in range(4): P.emit(valu("v_accvgpr_read_b32", f"v{tb + r}", f"a{a + r}"))
                    for r in range(4): P.emit(valu("v_accvgpr_write_b32", f"a{a + r}", 0))
                    for r in range(0, 4, 2):
                        P.emit(valu("v_pk_mul_f32", rs("v", tb + r, 2), rs("v", tb + r, 2), rs("s", S_CSC2, 2)))
                    for hh in range(2):
                        P.emit(valu("v_cvt_pk_bf16_f32", f"v{dstbase + (s * 2 + qt) * 4 + 2 * t + hh}", f"v{tb + 2 * hh}", f"v{tb + 2 * hh + 1}"))
        if h > 0:
            for s in range(4):
                for qt in range(nq):
                    fr = s * 2 + qt
                    P.emit(bstore(4, rs("v", V_OF + fr * 4, 4), f"v{V_QL}", rs("s", S_SRDQ, 4), f"s{S_QFO}", (fr % 4) * 1024) if fr < 4 else
                           bstore(4, rs("v", V_OF + fr * 4, 4), f"v{V_QL}", rs("s", S_SRDQ, 4), f"s{S_T}", (fr % 4) * 1024))
            P.emit(salu("s_add_u32", f"s{S_QFO}", f"s{S_QFO}", 8192))
            P.emit(salu("s_add_u32", f"s{S_T}", f"s{S_T}", 8192))
    if role == "W":
        for r in range(128, 144): P.emit(valu("v_accvgpr_write_b32", f"a{r}", 0))
    else:
        for r in range(32): P.emit(valu("v_mov_b32", f"v{V_OUTX + r}", 0))
    nst = 3 * 4 * nq
    P.do_wait(vm=0)
    for r in range(32): P.emit(valu("v_mov_b32", f"v{V_OF + r}", 0))
    P.emit(salu("s_mov_b32", f"s{S_QFO}", 0))
    P.emit(salu("s_movk_i32", f"s{S_T}", 4096))

def qf_reload(P):
    L = []
    for s in range(4):
        for qt in range(P.nq):
            fr = s * 2 + qt
            so = S_QFO if fr < 4 else S_T
            L.append(tagged(bload(4, rs("v", V_QF + fr * 4, 4), f"v{V_QL}", rs("s", S_SRDQ, 4), f"s{so}", (fr % 4) * 1024), ("QF", 1)))
    L.append(salu("s_add_u32", f"s{S_QFO}", f"s{S_QFO}", 8192))
    L.append(salu("s_add_u32", f"s{S_T}", f"s{S_T}", 8192))
    return L

class Ctx:
    def __init__(self): self.slow = {}

def xlane_reduce(op, reg, tmp):
    L = []
    L.append(valu("v_mov_b32", f"v{tmp}", f"v{reg}"))
    L.append(nop(1))
    L.append(valu("v_permlane32_swap_b32", f"v{reg}", f"v{tmp}"))
    L.append(valu(op, f"v{reg}", f"v{reg}", f"v{tmp}"))
    L.append(valu("v_mov_b32", f"v{tmp}", f"v{reg}"))
    L.append(nop(1))
    L.append(valu("v_permlane16_swap_b32", f"v{reg}", f"v{tmp}"))
    L.append(valu(op, f"v{reg}", f"v{reg}", f"v{tmp}"))
    return L

def max8(S, dst, T):
    return [valu("v_max3_f32", f"v{dst}", f"v{S}", f"v{S+1}", f"v{S+2}"),
            valu("v_max3_f32", f"v{T}", f"v{S+3}", f"v{S+4}", f"v{S+5}"),
            valu("v_max3_f32", f"v{dst}", f"v{dst}", f"v{S+6}", f"v{S+7}"),
            valu("v_max_f32", f"v{dst}", f"v{dst}", f"v{T}")]

def exp_items(S, nq, P_after):
    T = V_TMP
    L = []
    n = 0
    for qt in range(nq):
        for e in range(4):
            a = S + qt * 8 + 2 * e
            t0, t1 = T[1 + (2 * n) % 4], T[1 + (2 * n + 1) % 4]; n += 1
            L.append(valu("v_exp_f32", f"v{t0}", f"v{a}"))
            L.append(valu("v_exp_f32", f"v{t1}", f"v{a + 1}"))
            if e == 0: L.append(valu("v_mov_b32", f"v{V_TS[qt]}", f"v{t0}"))
            else: L.append(valu("v_add_f32", f"v{V_TS[qt]}", f"v{V_TS[qt]}", f"v{t0}"))
            L.append(valu("v_add_f32", f"v{V_TS[qt]}", f"v{V_TS[qt]}", f"v{t1}"))
            cv = valu("v_cvt_pk_bf16_f32", f"v{V_P + 4 * qt + e}", f"v{t0}", f"v{t1}")
            if P_after is not None: cv.tag = ("after", P_after)
            L.append(cv)
    return L

def first_tile_items(nq):
    S = V_S[0]; T = V_TMP
    L = []
    for qt in range(nq):
        L += max8(S + 8 * qt, T[0], T[1])
        L += xlane_reduce("v_max_f32", T[0], T[1])
        for r in range(4): L.append(valu("v_sub_f32", f"v{V_NEGM + 4 * qt + r}", 0, f"v{T[0]}"))
        for r in range(8): L.append(valu("v_sub_f32", f"v{S + 8 * qt + r}", f"v{S + 8 * qt + r}", f"v{T[0]}"))
        L.append(valu("v_mov_b32", f"v{V_L[qt]}", 0))
    return L

def make_check(ctx, i, name, nq):
    uid = f"{name}{i}"
    def f(P):
        if i > 0:
            if nq == 2:
                P.emit(valu("v_max_f32", f"v{V_TMP[0]}", f"v{V_TS[0]}", f"v{V_TS[1]}"))
                P.out.pop()
                P.emit(valu("v_add_f32", f"v{V_TMP[0]}", f"v{V_TS[0]}", f"v{V_TS[1]}"))
                src_ = V_TMP[0]
            else: src_ = V_TS[0]
            P.emit(valu("v_cmp_nle_f32", rs("s", S_CMP, 2), f"v{src_}", f"s{S_THR}"))
            P.emit(salu("s_cmp_lg_u64", None, rs("s", S_CMP, 2), 0))
            if not OPT.get("noslow"): P.emit(raw(f"s_cbranch_scc1 L_tr_{uid}", "branch"))
            P.emit(label(f"L_back_{uid}"))
        for qt in range(nq): P.emit(valu("v_add_f32", f"v{V_L[qt]}", f"v{V_L[qt]}", f"v{V_TS[qt]}"))
        if i == 0: P.emit(nop(0))
    if i > 0: ctx.slow[uid] = i & 1
    return f

def slow_routine(par, nq, lab):
    S = V_S[par]; S2 = V_S[1 - par]; T = V_TMP
    B = [label(lab), nop(7), nop(7)]
    for qt in range(nq):
        B += max8(S + 8 * qt, T[0], T[1])
        B += xlane_reduce("v_max_f32", T[0], T[1])
        B.append(valu("v_max_f32", f"v{T[0]}", 0, f"v{T[0]}"))
        B.append(valu("v_sub_f32", f"v{T[1]}", 0, f"v{T[0]}"))
        B.append(valu("v_exp_f32", f"v{T[1]}", f"v{T[1]}"))
        for r in range(4): B.append(valu("v_sub_f32", f"v{V_NEGM + 4 * qt + r}", f"v{V_NEGM + 4 * qt + r}", f"v{T[0]}"))
        B.append(valu("v_mul_f32", f"v{V_L[qt]}", f"v{V_L[qt]}", f"v{T[1]}"))
        for s in range(4):
            for t in range(2):
                for r in range(4):
                    a = oacc(s, t, qt) + r
                    B.append(valu("v_mul_f32", f"v{a}", f"v{a}", f"v{T[1]}"))
        for r in range(8):
            B.append(valu("v_sub_f32", f"v{S + 8 * qt + r}", f"v{S + 8 * qt + r}", f"v{T[0]}"))
            B.append(valu("v_sub_f32", f"v{S2 + 8 * qt + r}", f"v{S2 + 8 * qt + r}", f"v{T[0]}"))
    B += exp_items(S, nq, None)
    B.append(nop(1))
    B.append(raw(f"s_setpc_b64 s[{S_RET}:{S_RET+1}]", "branch"))
    return B
def trampoline(uid, slowlab):
    return [label(f"L_tr_{uid}"),
            raw(f"s_getpc_b64 s[{S_RET}:{S_RET+1}]", "salu"),
            label(f"L_pc_{uid}"),
            raw(f"s_add_u32 s{S_RET}, s{S_RET}, L_back_{uid}-L_pc_{uid}", "salu"),
            raw(f"s_addc_u32 s{S_RET+1}, s{S_RET+1}, -1", "salu"),
            raw(f"s_branch {slowlab}", "branch")]

def qk_jobs(e, i, nq):
    jobs = []
    S = V_S[i & 1]
    slot = i % NKV
    for kt in range(2):
        for s in range(4):
            def mk(a, kt=kt, s=s):
                L = []
                for qt in range(nq):
                    d = rs("v", S + qt * 8 + kt * 4, 4)
                    c = d if s > 0 else ("0" if i == 0 else rs("v", V_NEGM + 4 * qt, 4))
                    L.append(mfma16(d, a, rs("v", V_QF + (s * 2 + qt) * 4, 4), c))
                return L
            jobs.append(Job(e, mk, [("b128", f"v{V_K}", slot * TSLOT + (s >> 1) * 1024 + (s & 1) * 64 + kt * 512)]))
    return jobs
def pv_jobs(e, i, nq):
    jobs = []
    slot = i % NKV
    for s in range(4):
        for t in range(2):
            base = VBASE + slot * TSLOT + (s >> 1) * 1024 + 8 * t
            addr = f"v{V_T[s & 1]}"
            def mk(a, s=s, t=t):
                L = []
                for qt in range(nq):
                    acc = rs("v", oacc(s, t, qt), 4)
                    L.append(mfma16(acc, a, rs("v", V_P + 4 * qt, 4), "0" if i == 0 else acc))
                return L
            jobs.append(Job(e, mk, [("tr", addr, base), ("tr", addr, base + 512)]))
    return jobs
def of_set(z, mode):
    if mode == "AO":
        if z <= 1: return 0
        if z >= 14: return 0
        return 0 if ((z - 2) % 4) < 2 else 1
    else:
        return 0
def o_jobs(e, z, nq, mode="AO"):
    jobs = []
    s, c0, c1 = o_tile_info(z)
    s = of_set(z, mode)
    for cg in range(c0, c1):
        for q4 in range(4):
            nt = 4 * cg + q4
            base = oslot(z) + (cg - c0) * OGRP + (q4 >> 1) * 64
            def mk(a, nt=nt):
                L = []
                for qt in range(nq):
                    acc = outacc(nt, qt, nq)
                    L.append(mfma16(acc, a, rs("v", V_OF + (s * 2 + qt) * 4, 4), acc))
                return L
            jobs.append(Job(e, mk, [("tr", f"v{V_W[q4 & 1]}", base), ("tr", f"v{V_W[q4 & 1]}", base + 512)]))
    return jobs

def phase_A(P, ctx, name):
    role, nq = P.role, P.nq
    jobs = []; eps = []
    e = Epoch(f"{name}pre", [("K", 0), ("QF", 0)]); eps.append(e)
    jobs += qk_jobs(e, 0, nq)
    starts = {}; qkfirst = {}; olast = {}
    for i in range(17):
        needs = []
        if i >= 1: needs.append(("V", i - 1))
        if i + 1 <= 15: needs.append(("K", i + 1))
        if i <= 15: needs.append(("O", i))
        e = Epoch(f"{name}{i}", needs); eps.append(e)
        starts[i] = len(jobs)
        if i >= 1:
            pj = pv_jobs(e, i - 1, nq)
            pj[0].pre.append(make_check(ctx, i - 1, name, nq))
            jobs += pj
        if i <= 15:
            jobs += o_jobs(e, i, nq)
            olast[i] = len(jobs) - 1
        if i + 1 <= 15:
            qkfirst[i + 1] = len(jobs)
            jobs += qk_jobs(e, i + 1, nq)
    starts[17] = len(jobs)
    for i in range(17):
        e = eps[i + 1]; f = starts[i]
        if i <= 15:
            if i == 0:
                e.fill.append(FillQ(first_tile_items(nq), f + 1, qkfirst[1] - 2))
                st = qkfirst[1] - 1
            else: st = f + 1
            pa = f + 7 if i >= 1 else None
            e.fill.append(FillQ(exp_items(V_S[i & 1], nq, pa), st, starts[i + 1] - 1))
        if i in (3, 7, 11):
            mv = [valu("v_mov_b32", f"v{V_OF + r}", f"v{V_OF + 8 + r}") for r in range(4 * nq if nq == 1 else 8)]
            e.fill.append(FillQ(mv, olast[i] + 1, starts[i + 1] + 6))
        if i in (5, 9, 13):
            mv = [valu("v_mov_b32", f"v{V_OF + 8 + r}", f"v{V_OF + 16 + r}") for r in range(4 * nq if nq == 1 else 8)]
            mv += [valu("v_mov_b32", f"v{V_OF + 16 + r}", f"v{V_OF + 24 + r}") for r in range(4 * nq if nq == 1 else 8)]
            e.fill.append(FillQ(mv, olast[i] + 1, starts[i + 1] + 6))
        d = []
        if i <= 15:
            d += dma_O(P, i + 3, ("O", i + 3))
            d += dma_KVs(P, "K", i + 4, ("K", i + 4))
            d += dma_KVs(P, "V", i + 2, ("V", i + 2))
        if i == 1: d += pf_wo()
        if i == 15: d += qf_reload(P)
        if d:
            late = OPT.get("late", 1)
            endg = starts[i + 1] - 9
            st0 = max(f - 8, endg - OPT.get("dmawin", 8)) if late else f - 8
            e.fill.insert(0, FillQ(d, st0, endg, isdma=True))
    P.run_stream(jobs, ahead=bool(OPT.get("aheadA", 0)))
    def rb(t):
        if isinstance(t, tuple) and t[0] in ("K", "V", "O") and t[1] >= 16: return (t[0], t[1] - 16)
        if isinstance(t, tuple) and t[0] == "QF" and t[1] == 1: return ("QF", 0)
        return ("old", 0)
    P.vq = [rb(t) for t in P.vq]
    P.issued = set(rb(t) for t in P.issued)
    P.ptr["K3"] -= 16 * 8192; P.ptr["V3"] -= 16 * 8192
    P.ptr["O"] -= 128 * 1152
    T = V_TMP
    P.emit(nop(3))
    for qt in range(nq):
        P.emit(xlane_reduce("v_add_f32", V_L[qt], T[0]))
        P.emit(valu("v_rcp_f32", f"v{T[1 + qt]}", f"v{V_L[qt]}"))
    P.emit(nop(3))
    for s in range(4):
        for qt in range(nq):
            for t in range(2):
                a = oacc(s, t, qt)
                for r in range(4):
                    P.emit(valu("v_mul_f32", f"v{a + r}", f"v{a + r}", f"v{T[1 + qt]}"))
                for h in range(2):
                    P.emit(valu("v_cvt_pk_bf16_f32", f"v{V_OF + (s * 2 + qt) * 4 + 2 * t + h}", f"v{a + 2 * h}", f"v{a + 2 * h + 1}"))
    P.emit(nop(1))

def _olast():
    s, c0, c1 = o_tile_info(15)
    return (32 * s) * 1152 + (c1 - 1) * 128
O_LAST = _olast()
def _o2():
    s, c0, c1 = o_tile_info(2)
    return (32 * s) * 1152 + (c1 - 1) * 128
O2_LAST = _o2()

def phase_O(P):
    role, nq = P.role, P.nq
    jobs = []
    for z in range(16):
        e = Epoch(f"O{z}", [("O", z)])
        f = len(jobs)
        jobs += o_jobs(e, z, nq, "O")
        if z % 4 == 0 and z > 0:
            mv = [valu("v_mov_b32", f"v{V_OF + r}", f"v{V_OF + 8 + r}") for r in range(24)]
            jobs[f].pre += mv + [nop(1)]
        e.fill.append(FillQ(dma_O(P, z + 3, ("O", z + 3)), f - 8, f + 2, isdma=True))
    P.run_stream(jobs)
    P.emit(nop(7))
    T = V_S[0]
    v = V_TMP[0]
    P.emit(valu("v_mbcnt_lo_u32_b32", f"v{v}", -1, 0))
    P.emit(valu("v_mbcnt_hi_u32_b32", f"v{v}", -1, f"v{v}"))
    P.emit(valu("v_lshlrev_b32", f"v{v}", 4, f"v{v}"))
    P.emit(salu("s_mul_i32", f"s{S_T}", f"s{S_W}", 2 * 18 * 1024))
    stf = {0: "", 1: " nt", 2: " sc1", 3: " sc0 sc1", 4: " sc0 sc1 nt"}[OPT.get("stnt", 2 if OPT.get("fuse", 1) else 0)]
    cnt = 0
    for qt in range(nq):
        for ntp in range(18):
            tb = T + 16 * (cnt % 2)
            srcs = []
            for h in range(2):
                a = outacc(2 * ntp + h, qt, nq)
                regs = parse_regs(a)
                if regs[0][0] == "a":
                    for r in range(4):
                        P.emit(valu("v_accvgpr_read_b32", f"v{tb + 4 * h + r}", f"a{regs[r][1]}"))
                    srcs.append(tb + 4 * h)
                else: srcs.append(regs[0][1])
            for h in range(2):
                for d in range(2):
                    P.emit(valu("v_cvt_pk_bf16_f32", f"v{tb + 8 + 2 * h + d}", f"v{srcs[h] + 2 * d}", f"v{srcs[h] + 2 * d + 1}"))
            off = cnt * 1024
            if off % 4096 == 0 and off > 0: P.emit(salu("s_add_u32", f"s{S_T}", f"s{S_T}", 4096))
            if not OPT.get("nost"): P.emit(bstore(4, rs("v", tb + 8, 4), f"v{v}", rs("s", S_SRDP, 4), f"s{S_T}", off % 4096, flags=stf))
            cnt += 1

def prologue_common():
    L = []
    A = L.append
    A(raw("s_cmp_ge_u32 s2, 256", "salu", wr=[("scc",0)]))
    A(raw("s_cbranch_scc1 L_end", "branch"))
    A(raw("s_load_dwordx16 s[4:19], s[0:1], 0", "smem"))
    A(raw("s_load_dwordx4 s[20:23], s[0:1], 64", "smem"))
    A(raw("s_load_dwordx2 s[24:25], s[0:1], 96", "smem"))
    A(valu("v_lshrrev_b32", "v1", 6, "v0"))
    A(valu("v_and_b32", f"v{V_TMP[0]}", 63, "v0"))
    A(valu("v_readfirstlane_b32", f"s{S_W}", "v1"))
    A(salu("s_and_b32", "s30", "s2", 7))
    A(salu("s_lshr_b32", "s31", "s2", 3))
    A(salu("s_lshr_b32", "s32", "s30", 2))
    A(salu("s_and_b32", "s33", "s30", 3))
    A(salu("s_lshl_b32", "s33", "s33", 1))
    A(salu("s_and_b32", "s34", "s31", 1))
    A(salu("s_add_u32", "s33", "s33", "s34"))
    A(salu("s_lshr_b32", "s34", "s31", 1))
    A(salu("s_mov_b32", f"s{S_R}", 0))
    A(raw("s_waitcnt lgkmcnt(0)", "wait"))
    A(salu("s_cmp_eq_u32", None, "s32", 0))
    for d, a, b in ((4, 4, 14), (6, 6, 16), (8, 8, 18), (10, 10, 20), (12, 12, 22)):
        A(salu("s_cselect_b32", f"s{d}", f"s{a}", f"s{b}"))
        A(salu("s_cselect_b32", f"s{d+1}", f"s{a+1}", f"s{b+1}"))
    return L

def patterns_common():
    L = []
    A = L.append
    A(salu("s_mov_b32", f"s{S_CSC}", hex(f32bits(SCALE))))
    A(salu("s_mov_b32", f"s{S_THR}", hex(f32bits(4096.0))))
    A(salu("s_mul_i32", "s35", "s2", PSZ))
    A(salu("s_add_u32", f"s{S_SRDP}", "s24", "s35"))
    A(salu("s_addc_u32", f"s{S_SRDP+1}", "s25", 0))
    A(salu("s_mov_b32", f"s{S_SRDP+2}", PSZ))
    A(salu("s_mov_b32", f"s{S_SRDP+3}", "0x00020000"))
    A(salu("s_mov_b32", f"s{S_CSC2}", hex(f32bits(SCALE))))
    A(salu("s_mov_b32", f"s{S_CSC2+1}", hex(f32bits(SCALE))))
    A(salu("s_lshl_b32", "s35", "s2", 2))
    A(salu("s_add_u32", "s35", "s35", f"s{S_W}"))
    A(salu("s_mul_i32", "s35", "s35", 3 * 8192))
    A(salu("s_add_u32", "s35", "s35", QOFF))
    A(salu("s_add_u32", f"s{S_SRDQ}", "s24", "s35"))
    A(salu("s_addc_u32", f"s{S_SRDQ+1}", "s25", 0))
    A(salu("s_movk_i32", f"s{S_SRDQ+2}", 3 * 8192))
    A(salu("s_mov_b32", f"s{S_SRDQ+3}", "0x00020000"))
    A(salu("s_mov_b32", f"s{S_QFO}", 0))
    A(salu("s_movk_i32", f"s{S_T}", 4096))
    l, g, t1, t2, t3 = V_TMP
    A(valu("v_lshrrev_b32", f"v{g}", 4, f"v{l}"))
    A(valu("v_bfe_u32", f"v{t1}", f"v{l}", 2, 2))
    A(valu("v_and_b32", f"v{t2}", 3, f"v{l}"))
    A(salu("s_movk_i32", "s35", 2056))
    A(valu("v_mul_lo_u32", f"v{V_T[0]}", "s35", f"v{g}"))
    A(valu("v_lshl_add_u32", f"v{V_T[0]}", f"v{t1}", 7, f"v{V_T[0]}"))
    A(valu("v_lshrrev_b32", f"v{t3}", 1, f"v{t1}"))
    A(valu("v_lshl_add_u32", f"v{V_T[0]}", f"v{t3}", 6, f"v{V_T[0]}"))
    A(valu("v_lshl_add_u32", f"v{V_T[0]}", f"v{t2}", 4, f"v{V_T[0]}"))
    A(valu("v_xor_b32", f"v{t3}", 1, f"v{t3}"))
    A(valu("v_mul_lo_u32", f"v{V_T[1]}", "s35", f"v{g}"))
    A(valu("v_lshl_add_u32", f"v{V_T[1]}", f"v{t1}", 7, f"v{V_T[1]}"))
    A(valu("v_lshl_add_u32", f"v{V_T[1]}", f"v{t3}", 6, f"v{V_T[1]}"))
    A(valu("v_lshl_add_u32", f"v{V_T[1]}", f"v{t2}", 4, f"v{V_T[1]}"))
    A(salu("s_movk_i32", "s35", 1088))
    A(valu("v_mul_lo_u32", f"v{V_W[0]}", "s35", f"v{g}"))
    A(valu("v_lshl_add_u32", f"v{V_W[0]}", f"v{t1}", 7, f"v{V_W[0]}"))
    A(valu("v_lshrrev_b32", f"v{t3}", 1, f"v{t1}"))
    A(valu("v_lshl_add_u32", f"v{V_W[0]}", f"v{t3}", 5, f"v{V_W[0]}"))
    A(valu("v_lshl_add_u32", f"v{V_W[0]}", f"v{t2}", 3, f"v{V_W[0]}"))
    A(valu("v_add_u32", f"v{V_W[0]}", WBASE, f"v{V_W[0]}"))
    A(valu("v_xor_b32", f"v{V_W[1]}", 32, f"v{V_W[0]}"))
    A(valu("v_lshlrev_b32", f"v{V_K}", 11, f"v{t1}"))
    A(valu("v_lshrrev_b32", f"v{t3}", 1, f"v{t1}"))
    A(valu("v_lshl_add_u32", f"v{V_K}", f"v{t3}", 6, f"v{V_K}"))
    A(valu("v_lshl_add_u32", f"v{V_K}", f"v{t2}", 7, f"v{V_K}"))
    A(valu("v_and_b32", f"v{t3}", 2, f"v{t2}"))
    A(valu("v_xor_b32", f"v{t3}", f"v{t3}", f"v{g}"))
    A(valu("v_lshl_add_u32", f"v{V_K}", f"v{t3}", 4, f"v{V_K}"))
    A(valu("v_add_u32", f"v{V_K}", KBASE, f"v{V_K}"))
    A(valu("v_and_b32", f"v{t2}", 15, f"v{l}"))
    A(valu("v_lshrrev_b32", f"v{t1}", 3, f"v{t2}"))
    A(salu("s_lshl_b32", "s36", f"s{S_W}", 2))
    A(valu("v_add_u32", f"v{t1}", "s36", f"v{t1}"))
    A(valu("v_mul_lo_u32", f"v{V_X}", "s35", f"v{t1}"))
    A(valu("v_and_b32", f"v{t3}", 7, f"v{t2}"))
    A(valu("v_lshl_add_u32", f"v{V_X}", f"v{t3}", 7, f"v{V_X}"))
    A(valu("v_and_b32", f"v{t3}", 2, f"v{t2}"))
    A(valu("v_xor_b32", f"v{t3}", f"v{t3}", f"v{g}"))
    A(valu("v_lshl_add_u32", f"v{V_X}", f"v{t3}", 4, f"v{V_X}"))
    A(valu("v_add_u32", f"v{V_X}", WBASE + XREG, f"v{V_X}"))
    return L

BIAS = 4096
def prologue_role(P):
    role = P.role
    A = P.emit
    l, g, t1, t2, t3 = V_TMP
    A(valu("v_lshrrev_b32", f"v{t1}", 3, f"v{l}"))
    A(valu("v_and_b32", f"v{t2}", 7, f"v{l}"))
    A(salu("s_lshl_b32", "s35", "s33", 10))
    A(salu("s_add_u32", f"s{S_SRD0}", "s10", "s35"))
    A(salu("s_addc_u32", f"s{S_SRD0+1}", "s11", 0))
    A(salu("s_sub_u32", f"s{S_SRD0}", f"s{S_SRD0}", BIAS))
    A(salu("s_subb_u32", f"s{S_SRD0+1}", f"s{S_SRD0+1}", 0))
    A(salu("s_sub_u32", f"s{S_SRD0+2}", 576 * 8192 + BIAS, "s35"))
    A(salu("s_mov_b32", f"s{S_SRD0+3}", "0x00020000"))
    A(salu("s_mul_i32", "s35", "s34", 129024))
    A(salu("s_add_u32", f"s{S_SRD1}", "s4", "s35"))
    A(salu("s_addc_u32", f"s{S_SRD1+1}", "s5", 0))
    A(salu("s_mov_b32", f"s{S_SRD1+2}", 129024))
    A(salu("s_mov_b32", f"s{S_SRD1+3}", "0x00020000"))
    A(valu("v_bfe_u32", f"v{t3}", f"v{t1}", 1, 1))
    A(valu("v_lshlrev_b32", f"v{g}", 2, f"v{t3}"))
    A(valu("v_xor_b32", f"v{g}", f"v{g}", f"v{t2}"))
    A(valu("v_lshlrev_b32", f"v{g}", 4, f"v{g}"))
    A(valu("v_lshlrev_b32", f"v{t3}", 1, f"v{t3}"))
    A(valu("v_xor_b32", f"v{t3}", f"v{t3}", f"v{t2}"))
    A(valu("v_lshlrev_b32", f"v{t3}", 4, f"v{t3}"))
    A(valu("v_lshl_add_u32", f"v{V_DQ}", f"v{t1}", 13, f"v{g}"))
    A(salu("s_lshl_b32", "s35", f"s{S_W}", 16))
    A(valu("v_add_u32", f"v{V_DQ}", "s35", f"v{V_DQ}"))
    A(salu("s_lshl_b32", "s35", f"s{S_W}", 11))
    A(valu("v_lshl_add_u32", f"v{V_DV}", f"v{t1}", 8, f"v{g}"))
    A(valu("v_add_u32", f"v{V_DV}", "s35", f"v{V_DV}"))
    A(valu("v_lshl_add_u32", f"v{V_DK}", f"v{t1}", 8, f"v{t3}"))
    A(valu("v_add_u32", f"v{V_DK}", "s35", f"v{V_DK}"))
    A(salu("s_movk_i32", "s35", 1152))
    A(valu("v_mul_lo_u32", f"v{g}", "s35", f"v{t1}"))
    A(valu("v_add_u32", f"v{g}", f"v{g}", f"v{t3}"))
    A(salu("s_mul_i32", "s35", f"s{S_W}", 36864))
    for k in range(4):
        A(salu("s_add_u32", "s36", "s35", k * (9216 - 1088)))
        A(valu("v_add_u32", f"v{V_DX[k]}", "s36", f"v{g}"))
    A(salu("s_mul_i32", "s35", f"s{S_W}", 9216))
    A(valu("v_add_u32", f"v{V_DX[0] + 8}", "s35", f"v{g}"))
    A(salu("s_mul_i32", f"s{S_MV}", f"s{S_W}", 2056))
    A(salu("s_lshl_b32", f"s{S_MK}", f"s{S_W}", 11))
    A(salu("s_lshr_b32", "s35", f"s{S_W}", 1))
    A(salu("s_lshl_b32", "s35", "s35", 6))
    A(salu("s_add_u32", f"s{S_MK}", f"s{S_MK}", "s35"))
    A(salu("s_mul_i32", f"s{S_MX}", f"s{S_W}", 4352))
    A(salu("s_mul_i32", f"s{S_MO}", f"s{S_W}", 1088))
    A(salu("s_movk_i32", f"s{S_A}", BIAS))
    A(salu("s_movk_i32", f"s{S_A2}", BIAS - 896))
    A(salu("s_mov_b32", f"s{S_B2}", 0))
    P.ptr["Q"] = 0; P.ptr["X"] = 0
    A(dma_X4(P, 0, ("X", 0)))
    for n_ in range(8): A(dma_WQ4(P, n_, ("Q", n_)))
    A(dma_X4(P, 1, ("X", 1)))
    if OPT["pf"]:
        A(salu("s_mul_i32", "s35", "s34", 288))
        A(salu("s_mul_i32", "s36", f"s{S_W}", 72))
        A(salu("s_add_u32", "s35", "s35", "s36"))
        for k in range(2):
            A(valu("v_min_u32", f"v{t3}", 63 if k == 0 else 7, f"v{l}"))
            A(valu("v_add_u32", f"v{t3}", "s35", f"v{t3}"))
            A(valu("v_lshrrev_b32", f"v{g}", 3, f"v{t3}"))
            A(valu("v_lshlrev_b32", f"v{g}", 13, f"v{g}"))
            A(valu("v_and_b32", f"v{t3}", 7, f"v{t3}"))
            A(valu("v_lshl_add_u32", f"v{g}", f"v{t3}", 7, f"v{g}"))
            A(valu("v_add_u32", f"v{g}", BIAS, f"v{g}"))
            A(tagged(bload(1, "v0", f"v{g}", rs("s", S_SRD0, 4), 0, 0), ("pf", 0)))
            A(salu("s_add_u32", "s35", "s35", 64))
        A(salu("s_and_b32", "s35", "s33", 1))
        A(salu("s_lshl_b32", "s35", "s35", 2))
        A(salu("s_add_u32", "s35", "s35", f"s{S_W}"))
        A(salu("s_mul_i32", "s35", "s35", 126 * 128))
        A(valu("v_lshlrev_b32", f"v{g}", 7, f"v{l}"))
        for k in range(2):
            A(tagged(bload(1, "v0", f"v{g}", rs("s", S_SRD1, 4), "s35", 0), ("pf", 1)))
            A(salu("s_add_u32", "s35", "s35", 62 * 128))
    if OPT.get("cpf", 1):
        P.cpf_id = getattr(P, "cpf_id", role)
        A(raw("s_getpc_b64 s[36:37]", "salu"))
        A(label(f"L_cpf_{role}"))
        A(raw(f"s_sub_u32 s36, s36, L_cpf_{role}-L_code_start", "salu"))
        A(raw("s_subb_u32 s37, s37, 0", "salu"))
        A(salu("s_lshr_b32", "s35", "s2", 3))
        A(salu("s_lshl_b32", "s35", "s35", 2))
        A(salu("s_add_u32", "s35", "s35", f"s{S_W}"))
        A(salu("s_and_b32", "s35", "s35", 15))
        A(salu("s_lshl_b32", "s35", "s35", 13))
        A(valu("v_lshlrev_b32", f"v{g}", 7, f"v{l}"))
        A(valu("v_add_u32", f"v{g}", "s35", f"v{g}"))
        A(raw(f"s_mov_b32 s35, L_code_end-L_code_start-4", "salu"))
        A(valu("v_min_u32", f"v{g}", "s35", f"v{g}"))
        A(tagged(I(f"global_load_dword v0, v{g}, s[36:37]", "vmem", [("v", g), ("s", 36), ("s", 37)], [("v", 0)]), ("pf", 2)))
    A(salu("s_lshl_b32", "s35", "s34", 5))
    A(salu("s_lshl_b32", "s36", "s33", 2))
    A(salu("s_add_u32", "s35", "s35", "s36"))
    A(salu("s_lshl_b32", "s36", "s35", 17))
    A(salu("s_lshr_b32", "s37", "s35", 15))
    for srd, p in ((S_SRDK, 6), (S_SRDV, 8)):
        A(salu("s_add_u32", f"s{srd}", f"s{p}", "s36"))
        A(salu("s_addc_u32", f"s{srd+1}", f"s{p+1}", "s37"))
        A(salu("s_sub_u32", f"s{srd}", f"s{srd}", BIAS))
        A(salu("s_subb_u32", f"s{srd+1}", f"s{srd+1}", 0))
        A(salu("s_mov_b32", f"s{srd+2}", 524288 + BIAS))
        A(salu("s_mov_b32", f"s{srd+3}", "0x00020000"))
    A(salu("s_movk_i32", f"s{S_KP}", BIAS)); A(salu("s_movk_i32", f"s{S_KP2}", BIAS - 896))
    A(salu("s_movk_i32", f"s{S_VP}", BIAS)); A(salu("s_movk_i32", f"s{S_VP2}", BIAS - 896))
    P.ptr["K3"] = 0; P.ptr["V3"] = 0
    if OPT.get("rot", 1):
        A(salu("s_lshr_b32", "s35", "s2", 3))
        A(salu("s_add_u32", "s35", "s35", "s2"))
        A(salu("s_add_u32", "s35", "s35", 15))
        A(salu("s_and_b32", "s35", "s35", 15))
        A(salu("s_lshl_b32", f"s{S_KT}", "s35", 13))
        A(salu("s_mov_b32", f"s{S_VT}", f"s{S_KT}"))
        A(salu("s_movk_i32", f"s{S_KH}", BIAS))
        A(salu("s_movk_i32", f"s{S_VH}", BIAS))
        P.ptr["K3"] = -8192; P.ptr["V3"] = -8192
    A(salu("s_mul_i32", "s35", "s33", 512 * 1152))
    A(salu("s_add_u32", f"s{S_SRD2}", "s12", "s35"))
    A(salu("s_addc_u32", f"s{S_SRD2+1}", "s13", 0))
    A(salu("s_mov_b32", f"s{S_SRD2+2}", 512 * 1152))
    A(salu("s_mov_b32", f"s{S_SRD2+3}", "0x00020000"))
    A(salu("s_mul_i32", "s35", "s34", 72))
    A(salu("s_mul_i32", "s36", f"s{S_W}", 18))
    A(salu("s_add_u32", "s35", "s35", "s36"))
    A(valu("v_min_u32", f"v{t3}", 17, f"v{l}"))
    A(valu("v_add_u32", f"v{t3}", "s35", f"v{t3}"))
    A(valu("v_lshlrev_b32", f"v{V_PFO}", 7, f"v{t3}"))
    A(salu("s_mov_b32", f"s{S_PFOO}", 0))
    A(salu("s_mov_b32", f"s{S_C}", (-147456) & 0xffffffff))
    P.ptr["O"] = 0
    A(valu("v_lshlrev_b32", f"v{V_QL}", 4, f"v{l}"))
    A(patterns_common())
    nacc = 256 if role == "C" else 128
    for r in range(nacc): A(valu("v_accvgpr_write_b32", f"a{r}", 0))

def build_role(role, ctx):
    P = Prog(role)
    segs = {}
    def cut(name):
        segs.setdefault(name, []).append(P.out); P.out = []
    prologue_role(P); cut("pro")
    phase_Q4(P); cut("Q")
    q4_finish(P)
    for t in [("QF", 0)]: P.issued.add(t)
    cut("F")
    for r in range(4):
        phase_A(P, ctx, f"{role}B"); cut("AO")
    phase_O(P); cut("O")
    return segs

fold_id = [0]
def norm(t):
    t = re.sub(r"vmcnt\(\d+\) ?", "", t)
    t = re.sub(r"(L_tr_|L_back_)\w+", r"\1X", t)
    return re.sub(r"(--- barrier )\w+", r"\1X", t)
def fold(seq, p):
    chunks = [[]]
    for ins in seq:
        if ins.kind == "comment" and ins.text.startswith("; --- barrier"): chunks.append([])
        chunks[-1].append(ins)
    keys = ["\n".join(norm(i.text) for i in c) for c in chunks]
    best = (0, 0); n = len(chunks)
    for a in range(n):
        k = 1
        while a + (k + 1) * p <= n and all(keys[a + k * p + r] == keys[a + r] for r in range(p)): k += 1
        if k >= 2 and k > best[1]: best = (a, k)
    a, k = best
    if k < 2:
        print("fold failed"); return seq
    out = []
    for c in chunks[:a]: out += c
    for r in range(p):
        for it in range(1, k):
            for x, y in zip(chunks[a + r], chunks[a + it * p + r]):
                if x.kind == "wait" and x.text != y.text:
                    va, la = parse_wait(x.text); vb, lb = parse_wait(y.text)
                    vs = [q for q in (va, vb) if q is not None]
                    x.text = wait(min(vs) if vs else None, la).text
    fold_id[0] += 1
    lab = f"L_loop{fold_id[0]}"
    out.append(salu("s_mov_b32", f"s{S_LOOP}", k))
    out.append(label(lab))
    for c in chunks[a:a + p]: out += c
    out.append(salu("s_sub_u32", f"s{S_LOOP}", f"s{S_LOOP}", 1))
    out.append(salu("s_cmp_lg_u32", None, f"s{S_LOOP}", 0))
    out.append(raw(f"s_cbranch_scc1 {lab}", "branch"))
    for c in chunks[a + k * p:]: out += c
    print(f"fold: {n} chunks -> loop start {a} x{k} (period {p})")
    return out

def parse_wait(t):
    vm = re.search(r"vmcnt\((\d+)\)", t); lg = re.search(r"lgkmcnt\((\d+)\)", t)
    return (int(vm.group(1)) if vm else None, int(lg.group(1)) if lg else None)
def merge_instances(insts, name):
    base = insts[0]
    for other in insts[1:]:
        assert len(other) == len(base), (name, len(other), len(base))
        for a, b in zip(base, other):
            if a.text != b.text:
                assert a.kind == "wait" and b.kind == "wait", (name, a.text, b.text)
                va, la = parse_wait(a.text); vb, lb = parse_wait(b.text)
                assert la == lb, (a.text, b.text)
                vs = [x for x in (va, vb) if x is not None]
                a.text = wait(min(vs), la).text
    return base

NRED = 32 * 7 * 18 * 64 // 256
def reduce_kernel():
    L = []
    A = L.append
    ldf = {0: "", 1: " nt", 2: " sc1", 3: " sc0 sc1"}[OPT.get("rdnt", 0)]
    A(f"s_cmp_ge_u32 s2, {NRED}")
    A("s_cbranch_scc1 L_rend")
    A("s_load_dwordx2 s[4:5], s[0:1], 96")
    A("s_load_dwordx2 s[6:7], s[0:1], 80")
    A("v_lshrrev_b32 v1, 6, v0")
    A("v_and_b32 v3, 63, v0")
    A("v_readfirstlane_b32 s12, v1")
    A("s_lshl_b32 s13, s2, 2")
    A("s_add_u32 s13, s13, s12")
    A(f"s_mul_hi_u32 s8, s13, {(2**32 + 125) // 126}")
    A("s_mul_i32 s9, s8, 126")
    A("s_sub_u32 s9, s13, s9")
    A("s_lshr_b32 s10, s8, 4")
    A("s_and_b32 s11, s8, 15")
    A(f"s_mul_hi_u32 s14, s9, {(2**32 + 17) // 18}")
    A("s_mul_i32 s15, s14, 18")
    A("s_sub_u32 s15, s9, s15")
    A("v_lshlrev_b32 v2, 4, v3")
    A("s_lshl_b32 s27, s9, 10")
    A("v_add_u32 v2, s27, v2")
    A("v_and_b32 v4, 15, v3")
    A("v_lshrrev_b32 v5, 4, v3")
    A("s_waitcnt lgkmcnt(0)")
    A("s_mov_b32 s16, s4"); A("s_mov_b32 s17, s5"); A(f"s_mov_b32 s18, {256*PSZ}"); A("s_mov_b32 s19, 0x00020000")
    A("s_mov_b32 s20, s6"); A("s_mov_b32 s21, s7"); A(f"s_mov_b32 s22, {16*112*1152*2}"); A("s_mov_b32 s23, 0x00020000")
    A("s_lshl_b32 s26, s11, 4")
    A("s_lshl_b32 s25, s10, 2")
    A("s_add_u32 s26, s26, s25")
    for j in range(8):
        A(f"s_add_u32 s24, s26, {((j & 1) << 3) | (j >> 1)}")
        A(f"s_mul_i32 s24, s24, {PSZ}")
        A(f"buffer_load_dwordx4 v[{8+4*j}:{11+4*j}], v2, s[16:19], s24 offen{ldf}")
    A("s_mul_i32 s24, s11, 112")
    A("s_lshl_b32 s25, s14, 4")
    A("s_add_u32 s24, s24, s25")
    A("v_add_u32 v4, s24, v4")
    A("s_movk_i32 s25, 2304")
    A("v_mul_lo_u32 v4, s25, v4")
    A("s_mul_i32 s24, s10, 1152")
    A("s_lshl_b32 s25, s15, 6")
    A("s_add_u32 s24, s24, s25")
    A("v_lshl_add_u32 v4, v5, 3, v4")
    A("v_add_u32 v4, s24, v4")
    for j in range(8):
        A(f"s_waitcnt vmcnt({7-j})")
        for d in range(4):
            r = 8 + 4 * j + d
            if j == 0:
                A(f"v_lshlrev_b32 v{48+2*d}, 16, v{r}")
                A(f"v_and_b32 v{48+2*d+1}, 0xffff0000, v{r}")
            else:
                A(f"v_lshlrev_b32 v40, 16, v{r}")
                A(f"v_and_b32 v41, 0xffff0000, v{r}")
                A(f"v_add_f32 v{48+2*d}, v{48+2*d}, v40")
                A(f"v_add_f32 v{48+2*d+1}, v{48+2*d+1}, v41")
    for d in range(4):
        A(f"v_cvt_pk_bf16_f32 v{56+d}, v{48+2*d}, v{48+2*d+1}")
    A("buffer_store_dwordx2 v[56:57], v4, s[20:23], 0 offen")
    A("buffer_store_dwordx2 v[58:59], v4, s[20:23], 0 offen offset:32")
    A("L_rend:")
    A("s_endpgm")
    return "\n".join(L) + "\n"

def fused_tail():
    T = []
    A = lambda t: T.append(raw(t, "raw"))
    T.append(label("L_tail"))
    A("s_waitcnt vmcnt(0)")
    A("s_barrier")
    A("s_load_dwordx2 s[4:5], s[0:1], 88")
    A("s_load_dwordx2 s[6:7], s[0:1], 80")
    A("v_mbcnt_lo_u32_b32 v1, -1, 0")
    A("v_mbcnt_hi_u32_b32 v1, -1, v1")
    A("s_lshl_b32 s12, s32, 4")
    A("s_add_u32 s12, s12, s34")
    A("s_lshl_b32 s12, s12, 2")
    A("s_waitcnt lgkmcnt(0)")
    A("s_mov_b32 s8, s4"); A("s_mov_b32 s9, s5"); A("s_movk_i32 s10, 256"); A("s_mov_b32 s11, 0x00020000")
    A(f"s_cmp_lg_u32 s{S_W}, 0")
    A("s_cbranch_scc1 L_tail_wait")
    A("v_mov_b32 v2, 1")
    A("v_mov_b32 v3, 0")
    A("v_cmp_eq_u32 vcc, 0, v1")
    A("s_and_saveexec_b64 s[14:15], vcc")
    A("buffer_atomic_add v2, v3, s[8:11], s12 offen")
    A("s_mov_b64 exec, s[14:15]")
    A("s_waitcnt vmcnt(0)")
    A("s_mov_b32 s13, 0")
    T.append(label("L_poll"))
    A("buffer_load_dword v2, v3, s[8:11], s12 offen sc1")
    A("s_waitcnt vmcnt(0)")
    A("v_readfirstlane_b32 s16, v2")
    A("s_add_u32 s13, s13, 1")
    A("s_cmp_ge_u32 s16, 8")
    A("s_cbranch_scc1 L_tail_wait")
    A("s_sleep 1")
    A("s_cmp_lt_u32 s13, 0x400000")
    A("s_cbranch_scc1 L_poll")
    T.append(label("L_tail_wait"))
    A("s_barrier")
    T += pstamp(True)
    A("s_mov_b32 s16, s24"); A("s_mov_b32 s17, s25"); A(f"s_mov_b32 s18, {256*PSZ}"); A("s_mov_b32 s19, 0x00020000")
    A("s_mov_b32 s20, s6"); A("s_mov_b32 s21, s7"); A(f"s_mov_b32 s22, {16*112*1152*2}"); A("s_mov_b32 s23, 0x00020000")
    A("v_lshlrev_b32 v2, 4, v1")
    A("v_and_b32 v4, 15, v1")
    A("v_lshrrev_b32 v5, 4, v1")
    A("s_lshl_b32 s26, s33, 4")
    A(f"s_lshl_b32 s27, s{S_W}, 2")
    A("s_add_u32 s26, s26, s27")
    A("s_lshl_b32 s28, s34, 4")
    A("s_lshl_b32 s29, s32, 2")
    A("s_add_u32 s28, s28, s29")
    for k in range(4):
        for p in range(8):
            A(f"s_add_u32 s30, s28, {((p & 1) << 3) | (p >> 1)}")
            A(f"s_mul_i32 s30, s30, {PSZ}")
            A(f"s_add_u32 s31, s26, {k}")
            A("s_lshl_b32 s31, s31, 10")
            A("s_add_u32 s30, s30, s31")
            r = 16 + (k * 8 + p) * 4
            A(f"buffer_load_dwordx4 v[{r}:{r+3}], v2, s[16:19], s30 offen sc1")
    for k in range(4):
        A(f"s_add_u32 s31, s26, {k}")
        A(f"s_mul_hi_u32 s30, s31, {(2**32 + 17) // 18}")
        A("s_mul_i32 s29, s30, 18")
        A("s_sub_u32 s29, s31, s29")
        A("s_mul_i32 s27, s34, 112")
        A("s_lshl_b32 s30, s30, 4")
        A("s_add_u32 s27, s27, s30")
        A("v_add_u32 v6, s27, v4")
        A("s_movk_i32 s27, 2304")
        A("v_mul_lo_u32 v6, s27, v6")
        A("s_mul_i32 s27, s32, 1152")
        A("s_lshl_b32 s29, s29, 6")
        A("s_add_u32 s27, s27, s29")
        A("v_lshl_add_u32 v6, v5, 3, v6")
        A("v_add_u32 v6, s27, v6")
        for p in range(8):
            A(f"s_waitcnt vmcnt({min(63, (3 - k) * 8 + (7 - p) + 2 * 0)})" if False else f"s_waitcnt vmcnt({(3 - k) * 8 + (7 - p) + 2 * k})")
            for d in range(4):
                r = 16 + (k * 8 + p) * 4 + d
                if p == 0:
                    A(f"v_lshlrev_b32 v{8+2*d}, 16, v{r}")
                    A(f"v_and_b32 v{8+2*d+1}, 0xffff0000, v{r}")
                else:
                    A(f"v_lshlrev_b32 v3, 16, v{r}")
                    A(f"v_and_b32 v7, 0xffff0000, v{r}")
                    A(f"v_add_f32 v{8+2*d}, v{8+2*d}, v3")
                    A(f"v_add_f32 v{8+2*d+1}, v{8+2*d+1}, v7")
        for d in range(4):
            A(f"v_cvt_pk_bf16_f32 v{150+4*k+d}, v{8+2*d}, v{8+2*d+1}")
        A("s_cmp_ge_u32 s31, 126")
        A(f"s_cselect_b32 s27, 0x7f000000, 0")
        A(f"buffer_store_dwordx2 v[{150+4*k}:{151+4*k}], v6, s[20:23], s27 offen")
        A(f"buffer_store_dwordx2 v[{152+4*k}:{153+4*k}], v6, s[20:23], s27 offen offset:32")
    if DEBUG == "T":
        A("s_waitcnt vmcnt(0)")
        T += pstamp(True)
    A("s_endpgm")
    return T

def dbg_dump(base, n):
    L = []
    L.append(raw("s_waitcnt vmcnt(0) lgkmcnt(0)", "wait"))
    L.append(nop(15))
    L.append(salu("s_lshl_b32", "s88", "s2", 2))
    L.append(salu("s_add_u32", "s88", "s88", f"s{S_W}"))
    L.append(salu("s_lshl_b32", "s88", "s88", 14))
    L.append(salu("s_add_u32", "s88", "s88", 64 << 20))
    L.append(salu("s_mov_b32", "s84", "s24")); L.append(salu("s_mov_b32", "s85", "s25"))
    L.append(salu("s_mov_b32", "s86", 128 << 20)); L.append(salu("s_mov_b32", "s87", "0x00020000"))
    L.append(valu("v_mbcnt_lo_u32_b32", "v15", -1, 0))
    L.append(valu("v_mbcnt_hi_u32_b32", "v15", -1, "v15"))
    L.append(valu("v_lshlrev_b32", "v15", 2, "v15"))
    for r in range(n):
        if r and r % 16 == 0: L.append(salu("s_add_u32", "s88", "s88", 4096))
        L.append(bstore(1, f"v{base + r}", "v15", "s[84:87]", "s88", (r % 16) * 256))
    L.append(raw("s_waitcnt vmcnt(0)", "wait"))
    L.append(raw("s_endpgm", "end"))
    return L

def stamp_init():
    L = []
    L.append(salu("s_lshl_b32", "s88", "s2", 2))
    L.append(salu("s_add_u32", "s88", "s88", f"s{S_W}"))
    L.append(salu("s_lshl_b32", "s88", "s88", 11 if DEBUG == "G" else (10 if DEBUG == "F" else 8)))
    L.append(salu("s_add_u32", "s88", "s88", 100 << 20))
    L.append(salu("s_mov_b32", "s84", "s24")); L.append(salu("s_mov_b32", "s85", "s25"))
    L.append(salu("s_mov_b32", "s86", 128 << 20)); L.append(salu("s_mov_b32", "s87", "0x00020000"))
    return L
def pstamp(real=False):
    return [] if DEBUG == "G" else stamp(real)
def stamp(real=False):
    if DEBUG not in ("T", "F", "G"): return []
    L = []
    L.append(raw("s_memrealtime s[96:97]" if real else "s_memtime s[96:97]", "smem"))
    L.append(raw("s_waitcnt lgkmcnt(0)", "wait"))
    L.append(valu("v_mov_b32", "v18", "s96"))
    L.append(valu("v_mov_b32", "v19", 0))
    L.append(bstore(1, "v18", "v19", "s[84:87]", "s88", 0))
    L.append(salu("s_add_u32", "s88", "s88", 4))
    return L

def main(outpath):
    ctx = Ctx()
    FUSE = OPT.get("fuse", 1)
    from gcommon import KN
    name = KN if FUSE else MAIN
    if FUSE: txt = header([(KN, (256, 1, 1), (256, 1, 1), LDS_TOTAL)])
    else: txt = header([(MAIN, (256, 1, 1), (256, 1, 1), LDS_TOTAL), (RED, (NRED, 1, 1), (256, 1, 1), 0)])
    txt += kstart(name)
    body = [label("L_code_start")]
    pro = prologue_common()
    body += pro
    body.append(raw(f"s_cmp_ge_u32 s{S_W}, 3", "salu"))
    body.append(raw("s_cbranch_scc1 L_role_W_far", "branch"))
    allprobs = []
    for role in ("C", "W"):
        segs = build_role(role, ctx)
        nq = 2 if role == "C" else 1
        Q = segs["Q"][0]
        AO = merge_instances(segs["AO"], "AO")
        seq = []
        if role == "W": seq.append(label("L_role_W"))
        if DEBUG in ("T", "F", "G"): seq += stamp_init() + pstamp(True) + pstamp()
        seq += segs["pro"][0]
        seq += pstamp()
        seq += fold(Q, OPT.get("qper", 8)) if DEBUG not in ("F", "G") else Q
        seq += pstamp()
        seq += segs["F"][0]
        seq += pstamp()
        if DEBUG == "Q": seq += dbg_dump(V_QF, 32)
        seq.append(label(f"L_head_{role}"))
        seq += fold(AO, 4) if DEBUG not in ("F", "G") else AO
        seq += pstamp()
        if DEBUG == "O": seq += dbg_dump(V_OF, 32)
        seq.append(raw(f"s_add_u32 s{S_R}, s{S_R}, 1", "salu"))
        seq.append(raw(f"s_cmp_lt_u32 s{S_R}, 4", "salu"))
        seq.append(raw(f"s_cbranch_scc1 L_head_{role}", "branch"))
        seq += fold(segs["O"][0], 4) if DEBUG not in ("F", "G") else segs["O"][0]
        seq += pstamp()
        seq.append(raw("s_waitcnt vmcnt(0)", "wait"))
        seq += pstamp() + pstamp(True)
        if FUSE: seq.append(raw("s_branch L_tail", "branch"))
        else: seq.append(raw("s_endpgm", "end"))
        used = set(re.findall(r"s_cbranch_scc1 L_tr_(\w+)", "\n".join(i.text for i in seq)))
        for uid, par in ctx.slow.items():
            if uid in used: seq += trampoline(uid, f"L_slow_{role}{par}")
        for par in (0, 1):
            B = slow_routine(par, nq, f"L_slow_{role}{par}")
            allprobs += check_hazards(B, f"slow{role}{par}")
            seq += B
        lin = pro + segs["pro"][0] + Q + segs["F"][0] + AO + AO + segs["O"][0]
        allprobs += check_hazards(lin, role)
        if role == "C":
            body.append(raw("s_branch L_role_C", "branch"))
            body.append(label("L_role_W_far"))
            body.append(raw("s_getpc_b64 s[30:31]", "salu"))
            body.append(label("L_pcw"))
            body.append(raw("s_add_u32 s30, s30, L_role_W-L_pcw", "salu"))
            body.append(raw("s_addc_u32 s31, s31, 0", "salu"))
            body.append(raw("s_setpc_b64 s[30:31]", "branch"))
            body.append(label("L_end"))
            body.append(raw("s_endpgm", "end"))
            body.append(label("L_role_C"))
        body += seq
        if role == "C" and FUSE: body += fused_tail()
    body.append(label("L_code_end"))
    body.append(raw("s_endpgm", "end"))
    txt += "\n".join(i.text for i in body) + "\n"
    if not FUSE: txt += kstart(RED) + reduce_kernel()
    txt += kdesc(name, 512, sgpr=100, accum=256)
    if not FUSE: txt += kdesc(RED, 64, sgpr=40)
    open(outpath, "w").write(txt)
    for p in allprobs[:40]: print("HAZARD", p)
    print("instructions:", sum(1 for i in body if i.kind not in ("label", "comment")), "bytes of text", len(txt))

if __name__ == "__main__":
    if len(sys.argv) > 2: DEBUG = sys.argv[2]
    for a in sys.argv[3:]:
        k, v = a.split("="); OPT[k] = int(v)
    main(sys.argv[1] if len(sys.argv) > 1 else "k8.s")
```

```python
import sys, math, struct, re
from asmlib import *
sys.path.insert(0, "work")
from gcommon import header, kstart, kdesc

OPT = {"bar_delay": 2, "budget": 4, "barcost": 1, "postq": 4, "catchq": 4, "capf": 2, "pf": 1, "NB": 7, "wcap": 2}
DEBUG = ""
MAIN = "fa_main_kernel"
RED = "fa_reduce_kernel"

NKV = 4
TSLOT = 8256
VBASE = 0
KBASE = NKV * TSLOT
WBASE = 2 * NKV * TSLOT
XSLOT = 16 * 1088
XREG = 0
QREG = 3 * XSLOT
LDS_TOTAL = WBASE + QREG + 4 * TSLOT
PSZ = 7 * 18 * 1024
OGRP = 4352
def wqslot(s): return QREG + ((s + 2) % 4) * TSLOT
def xslot(p): return XREG + (p % 3) * XSLOT
def oslot(z): return [XREG, XREG + XSLOT, QREG, XREG + 2 * XSLOT][z % 4]

V_T = [1, 2]
V_K = 3
V_X = 4
V_W = [5, 6]
V_D = [7, 8, 9, 10]
V_L = [11, 12]
V_TS = [13, 14]
V_TMP = [15, 16, 17, 18, 19]
V_NEGM = 20
V_P = 28
V_S = [36, 52]
V_OACC = 68
V_OUTX = 132
V_QF = 164
V_OF = 196
V_AF = 228
VW_Q = [148, 149, 150, 151]
VW_X = [152, 153, 154, 155]
VW_K = [156, 157]
VW_V = [158, 159, 160, 161]
V_Q = [52, 53]
V_DK, V_DV, V_PFO, V_QL = 7, 8, 9, 10
V_DO = 4
V_DQ = 54
V_DX = [55, 56, 57, 58]

S_SRD0, S_SRD1, S_SRD2, S_SRDP = 40, 44, 48, 52
S_W, S_R = 56, 58
S_A, S_B2, S_C = 60, 61, 62
S_TMP = 63
S_KM = [64, 65, 66]
S_VM = [67, 68, 69]
S_G = [76, 77, 78]
S_CMP = 70
S_THR = 73
S_CSC = 72
S_CSC2 = 26
S_T = 74
S_PFQO, S_PFOO = 79, 89
S_PFQ, S_PFO = 48, 80
S_RET = 90
S_KT, S_KH, S_VT, S_VH = 4, 5, 6, 7
S_KP2, S_VP2, S_A2 = 66, 67, 68
S_MK, S_MV, S_MX, S_MO = 69, 76, 77, 78
S_LOOP = 39
S_SRDQ = 28
S_QFO = 38
QOFF = 48 << 20
S_SRDK, S_SRDV = 80, 92
S_KP, S_VP = 64, 65

SCALE = 1.4426950408889634 / math.sqrt(128.0)
def f32bits(x): return struct.unpack("<I", struct.pack("<f", x))[0]
def tagged(ins, tag):
    ins.tag = tag
    return ins

def outacc(nt, qt, nq):
    idx = nt * nq + qt
    if nq == 1: return rs("a", 4 * idx, 4)
    if idx < 64: return rs("a", 4 * idx, 4)
    return rs("v", V_OUTX + 4 * (idx - 64), 4)
def oacc(s, t, qt): return V_OACC + ((s * 2 + t) * 2 + qt) * 4

class Job:
    def __init__(self, epoch, mk, reads, fixed=()):
        self.epoch = epoch; self.mk = mk; self.reads = reads; self.fixed = fixed
        self.ops = []; self.buf = None; self.pre = []
class Epoch:
    def __init__(self, name, needs):
        self.name = name; self.needs = needs; self.fill = []; self.first = None; self.done_bar = False
class FillQ:
    def __init__(self, items, start, end, isdma=False):
        self.items = list(items); self.start = start; self.end = end; self.isdma = isdma
        self.maxper = OPT.get("dmaper", 2) if isdma else None

class Prog:
    def __init__(self, role):
        self.role = role
        self.nq = 2 if role == "C" else 1
        self.out = []; self.vq = []; self.lq = []; self.nop_id = 0; self.issued = set()
        self.ptr = {}
        self.first_tile = {}
    def emit(self, ins):
        if isinstance(ins, list):
            for i in ins: self.emit(i)
            return
        if ins.kind == "vmem" and isinstance(ins.tag, tuple) and ((OPT.get("noO") and ins.tag[0] == "O") or (OPT.get("noKV") and ins.tag[0] in ("K", "V")) or (OPT.get("noV") and ins.tag[0] == "V")):
            self.vq.append(ins.tag); self.issued.add(ins.tag)
            return
        if ins.kind == "vmem" and (OPT.get("nodma") or (OPT.get("nokv") and self.role == "C") or (OPT.get("now") and self.role == "W")):
            self.vq.append(ins.tag); self.issued.add(ins.tag)
            return
        if ins.kind == "vmem" and ins.text.endswith("lds") and self.out and ("s", 124) in self.out[-1].wr:
            self.out.append(nop(0))
        self.out.append(ins)
        if ins.kind in ("vmem", "vstore"):
            self.vq.append(ins.tag if ins.kind == "vmem" else "store")
            self.issued.add(ins.tag)
        if ins.kind == "lds":
            self.nop_id += 1
            self.lq.append(self.nop_id)
            return self.nop_id
    def vm_wait_for(self, tags):
        last = -1
        for i, t in enumerate(self.vq):
            if t in tags: last = i
        if last < 0: return None
        return len(self.vq) - 1 - last
    def do_wait(self, vm=None, lgkm=None):
        if vm is not None:
            vm = min(vm, 63)
            if vm == 0: self.vq = []
            elif vm < len(self.vq): self.vq = self.vq[len(self.vq) - vm:]
        if lgkm is not None:
            if lgkm == 0: self.lq = []
            elif lgkm < len(self.lq): self.lq = self.lq[len(self.lq) - lgkm:]
        self.emit(wait(vm, lgkm))
    def move_ptr(self, name, target, sregs=()):
        d = target - self.ptr[name]
        self.ptr[name] = target
        if d == 0: return []
        return [salu("s_add_u32", f"s{r}", f"s{r}", d & 0xffffffff) for r in sregs]

    def run_stream(self, jobs, NB=None, AFB=None, ahead=False):
        NB = NB or OPT["NB"]
        AFB = AFB or V_AF
        n = len(jobs)
        budget = OPT["budget"] if self.nq == 2 else OPT["budget"]
        if self.nq == 1: budget = 6
        for k, j in enumerate(jobs):
            if j.epoch.first is None: j.epoch.first = k
            j.epoch.last = k
        eps_list = []
        for j in jobs:
            if not eps_list or eps_list[-1] is not j.epoch: eps_list.append(j.epoch)
        for ei, e in enumerate(eps_list):
            e.idx = ei; e.vis = False
        free = list(range(NB))
        off = 0
        for e in eps_list:
            ne = e.last - e.first + 1
            for k in range(e.first, e.last + 1): jobs[k].want = (off + k - e.first) % NB
            skip = 0
            if NB == 7: skip = {24: 1, 28: 2, 8: 2}.get(ne, 0)
            off = (off + ne + skip) % NB
        nextrd = 0
        fq = []
        state = {"lastrd": -10, "dq": None}
        def issue_reads(j):
            b = j.want; free.remove(b); j.buf = b
            base = AFB + 4 * b
            for kind, dst, addr, imm in j.fixed:
                j.ops.append(self.emit(ds_read(kind, dst, addr, imm)))
            sub = 0
            for kind, addr, imm in j.reads:
                w = 4 if kind == "b128" else 2
                j.ops.append(self.emit(ds_read(kind, rs("v", base + sub, w), addr, imm)))
                sub += w
            return len(j.fixed) + len(j.reads)
        def do_barrier(e, g):
            needs = list(e.needs)
            if ahead:
                nxt = eps_list[e.idx + 1] if e.idx + 1 < len(eps_list) else None
                needs = (list(e.needs) if e.idx == 0 else []) + (list(nxt.needs) if nxt else [])
                if nxt: nxt.vis = True
            e.vis = True
            for t in needs: assert t in self.issued, ("not issued", e.name, t)
            vm = self.vm_wait_for(set(needs)) if needs else None
            self.emit(comment(f"--- barrier {e.name}"))
            if ahead and e.idx > 0:
                if vm is not None: self.do_wait(vm=vm)
                self.emit(barrier())
                e.done_bar = True
                activate(e, g)
                return
            if DEBUG == "G":
                self.do_wait(lgkm=0); self.emit(stamp())
            self.do_wait(vm=vm, lgkm=0 if not OPT.get("nolg") else None) if (vm is not None or not OPT.get("nolg")) else None
            if DEBUG == "G": self.emit(stamp())
            if not OPT.get("nobar"): self.emit(barrier())
            if DEBUG == "F": self.emit(stamp())
            e.done_bar = True
            activate(e, g)
        def activate(e, g):
            for q in e.fill:
                if q.start < g: q.start = g
                if q.isdma and state["dq"] is not None:
                    if not state["dq"].items: state["dq"].start = q.start
                    state["dq"].items += q.items
                    state["dq"].end = max(state["dq"].end, q.end)
                elif q.isdma:
                    state["dq"] = q; fq.insert(0, q)
                else: fq.append(q)
        def wait_for(j):
            idx = -1
            for i, o in enumerate(self.lq):
                if o in j.ops: idx = i
            if idx >= 0:
                self.do_wait(lgkm=min(15, len(self.lq) - 1 - idx))
                return 1
            return 0
        def fillers(g, rem, force_ok):
            for q in fq:
                if not q.items or g < q.start: continue
                left_gaps = max(1, q.end - g + 1)
                cost = sum(i.cost for i in q.items) // 4
                must = cost - (left_gaps - 1) * (q.maxper if q.maxper else OPT["capf"])
                if g >= q.end: must = cost
                if not force_ok: must = 0
                lim = q.maxper if q.maxper else 99
                took = 0
                while q.items and (took < lim or took < must):
                    it = q.items[0]
                    c = max(1, it.cost // 4)
                    if isinstance(it.tag, tuple) and it.tag and it.tag[0] == "after" and g < it.tag[1]: break
                    if took >= must and c > rem: break
                    q.items.pop(0)
                    self.emit(it); took += c; rem -= c
            return rem
        def reads(g, quota):
            nonlocal nextrd
            nl = 0
            while nextrd < n:
                j = jobs[nextrd]; e = j.epoch
                if not e.vis: break
                cnt = len(j.fixed) + len(j.reads)
                if j.want in free and (nl + cnt <= quota or (nl == 0 and quota > 0)):
                    c = issue_reads(j); nl += c
                    nextrd += 1
                    state["lastrd"] = g
                else: break
            return nl
        def try_barrier(g):
            if ahead:
                if g + 1 < n:
                    e = jobs[g + 1].epoch
                    if not e.done_bar and e.first == g + 1:
                        do_barrier(e, g); return True
                return False
            if nextrd < n:
                j = jobs[nextrd]; e = j.epoch
                lead = nextrd - (g + 1)
                if not e.done_bar and (g == -1 or g >= state["lastrd"] + OPT["bar_delay"] or lead <= 2):
                    do_barrier(e, g); return True
            return False
        def windowA(g):
            cap = OPT["wcap"]
            lead = nextrd - (g + 1)
            used = reads(g, 2 if lead >= NB - 1 else OPT["catchq"])
            fillers(g, cap - used, False)
        def windowB(g, cap):
            nx = g + 1
            used = 0
            didbar = try_barrier(g)
            if didbar: used += 2 + OPT["barcost"]
            if (not didbar or (ahead and g >= 0)) and nx < n and jobs[nx].ops: used += wait_for(jobs[nx])
            lead = nextrd - (g + 1)
            if g == -1: used += reads(g, 99)
            elif self.nq == 1: used += reads(g, OPT["postq"] if didbar else (OPT["catchq"] if lead < NB - 1 else 2))
            elif didbar or lead < NB - 2: used += reads(g, 2)
            late_wait = nx < n and any(o in self.lq for o in jobs[nx].ops)
            if late_wait: used += 1
            fillers(g, cap - used, True)
            if late_wait: wait_for(jobs[nx])
        windowB(-1, 99)
        for k in range(n):
            j = jobs[k]
            for p in j.pre:
                if callable(p): p(self)
                else: self.emit(p)
            ms = j.mk(rs("v", AFB + 4 * j.buf, 4))
            if len(ms) == 2:
                self.emit(ms[0])
                windowA(k)
                self.emit(ms[1])
                free.append(j.buf)
                windowB(k, OPT["wcap"])
            else:
                self.emit(ms[0])
                free.append(j.buf)
                windowB(k, 6)
        for q in fq:
            while q.items: self.emit(q.items.pop(0))

def dma_KVs(P, kind, n, tag):
    K = kind == "K"
    b = (KBASE if K else VBASE) + ((n % 16) % NKV) * TSLOT
    p1, p2, srd, pat, M = (S_KP, S_KP2, S_SRDK, V_DK, S_MK) if K else (S_VP, S_VP2, S_SRDV, V_DV, S_MV)
    L = [salu("s_add_u32", "m0", f"s{M}", b)]
    if OPT.get("rot", 0):
        rt, rh = (S_KT, S_KH) if K else (S_VT, S_VH)
        L.append(salu("s_add_u32", f"s{rt}", f"s{rt}", 8192))
        L.append(salu("s_and_b32", f"s{rt}", f"s{rt}", 0x1ffff))
        prev = P.ptr[kind + "3"] // 8192
        P.ptr[kind + "3"] = n * 8192
        assert n == prev + 1, (kind, n, prev)
        if n % 16 == 0 and not P.first_tile.get(kind, True): L.append(salu("s_add_u32", f"s{rh}", f"s{rh}", 131072))
        P.first_tile[kind] = False
        L.append(salu("s_add_u32", f"s{p1}", f"s{rt}", f"s{rh}"))
        L.append(salu("s_add_u32", f"s{p2}", f"s{p1}", (-896) & 0xffffffff))
    else:
        L += P.move_ptr(kind + "3", n * 8192, sregs=(p1, p2))
    L.append(tagged(dma(f"v{pat}", rs("s", srd, 4), f"s{p1}", 0, nt=True), tag))
    L.append(tagged(dma(f"v{pat}", rs("s", srd, 4), f"s{p2}", 1024, nt=True), tag))
    return L
def o_tile_info(z):
    s = (z % 16) >> 2
    starts = [0, 2, 4, 6, 9]
    q = z & 3
    return s, starts[q], starts[q + 1]
def dma_O(P, z, tag):
    s, c0, c1 = o_tile_info(z)
    hd = z // 16
    b = WBASE + oslot(z)
    L = []
    for cg in range(c0, c1):
        L.append(salu("s_add_u32", "m0", f"s{S_MO}", b + (cg - c0) * OGRP))
        mv = P.move_ptr("O", (hd * 128 + 32 * s) * 1152 + cg * 128, sregs=(S_C,))
        L += mv
        L.append(tagged(dma(f"v{V_DO}", rs("s", S_SRD2, 4), f"s{S_C}", 0), tag))
    return L
def pf_wq():
    if not OPT["pf"]: return []
    return [tagged(bload(1, "v0", f"v{V_D[2]}", rs("s", S_PFQ, 4), f"s{S_PFQO}", 0), ("pf", 0)),
            salu("s_add_u32", f"s{S_PFQO}", f"s{S_PFQO}", 256)]
def pf_wo():
    if not OPT["pf"]: return []
    return [tagged(bload(1, "v0", f"v{V_PFO}", rs("s", S_SRD2, 4), f"s{S_PFOO}", 0), ("pf", 0)),
            salu("s_add_u32", f"s{S_PFOO}", f"s{S_PFOO}", 128 * 1152)]

def q4acc(h, s, t, qt, nq):
    return (h * 8 + s * 2 + t) * nq * 4 + qt * 4
def xslot4(p): return (p % 2) * XSLOT
def dma_WQ4(P, eps, tag):
    st, h = eps // 4, eps % 4
    b = (eps % 8) * TSLOT
    L = [salu("s_add_u32", "m0", f"s{S_MV}", b)]
    L += P.move_ptr("Q", h * 256 + st * 262144, sregs=(S_A, S_A2))
    L.append(tagged(dma(f"v{V_DQ}", rs("s", S_SRD0, 4), f"s{S_A}", 0), tag))
    L.append(tagged(dma(f"v{V_DQ}", rs("s", S_SRD0, 4), f"s{S_A2}", 1024), tag))
    return L
def dma_X4(P, p, tag):
    b = WBASE + xslot4(p)
    L = [salu("s_add_u32", "m0", f"s{S_MX}", b)]
    L += P.move_ptr("X", p * 128, sregs=(S_B2,))
    for k in range(4):
        L.append(tagged(dma(f"v{V_DX[k]}", rs("s", S_SRD1, 4), f"s{S_B2}", 1088 * k), tag))
    return L

def phase_Q4(P):
    role, nq = P.role, P.nq
    jobs = []
    for m in range(36):
        st = m // 2
        needs = [("Q", 2 * m), ("Q", 2 * m + 1)] + ([("X", st >> 1)] if m % 4 == 0 else [])
        e = Epoch(f"Q{m}", needs)
        xb = V_S[0] + 8 * (st & 1)
        for hh in range(2):
            eps = 2 * m + hh
            h = eps % 4
            first = (h == 0)
            for s in range(4):
                for t in range(2):
                    base = (eps % 8) * TSLOT + (s >> 1) * 1024 + 8 * t
                    addr = f"v{V_T[s & 1]}"
                    reads = [("tr", addr, base), ("tr", addr, base + 512)]
                    fixed = []
                    if first:
                        fixed = [("b128", rs("v", xb + 4 * qt, 4), f"v{V_X}", xslot4(st >> 1) + (st & 1) * 64 + qt * 2176) for qt in range(nq)]
                        first = False
                    def mk(a, s=s, t=t, h=h, xb=xb):
                        L = []
                        for qt in range(nq):
                            acc = rs("a", q4acc(h, s, t, qt, nq), 4)
                            L.append(mfma16(acc, a, rs("v", xb + 4 * qt, 4), acc))
                        return L
                    jobs.append(Job(e, mk, reads, fixed))
        f = 16 * m
        d = []
        if m >= 1:
            d += dma_WQ4(P, 2 * (m + 3), ("Q", 2 * (m + 3))) + dma_WQ4(P, 2 * (m + 3) + 1, ("Q", 2 * (m + 3) + 1))
        if m % 4 == 0 and m >= 4: d += dma_X4(P, m // 4 + 1, ("X", m // 4 + 1))
        if d: e.fill.append(FillQ(d, f - 1, f + 10, isdma=True))
    P.run_stream(jobs, NB=8, AFB=V_OACC, ahead=True)

def q4_finish(P):
    role, nq = P.role, P.nq
    P.do_wait(vm=0, lgkm=0)
    P.emit(barrier())
    for kind, n in (("K", 0), ("K", 1), ("V", 0), ("K", 2), ("V", 1), ("K", 3)):
        P.emit(dma_KVs(P, kind, n, (kind, n)))
    P.emit(valu("v_mov_b32", f"v{V_DO}", f"v{V_DX[0] + 8}"))
    for z in range(3): P.emit(dma_O(P, z, ("O", z)))
    P.emit(nop(7))
    T = V_OACC
    v = V_TMP[0]
    P.emit(valu("v_mbcnt_lo_u32_b32", f"v{v}", -1, 0))
    P.emit(valu("v_mbcnt_hi_u32_b32", f"v{v}", -1, f"v{v}"))
    for h in range(4):
        dstbase = V_QF if h == 0 else V_OF
        for s in range(4):
            for qt in range(nq):
                for t in range(2):
                    a = q4acc(h, s, t, qt, nq)
                    tb = T + ((s * 2 + qt) * 2 + t) * 4
                    for r in range(4): P.emit(valu("v_accvgpr_read_b32", f"v{tb + r}", f"a{a + r}"))
                    for r in range(4): P.emit(valu("v_accvgpr_write_b32", f"a{a + r}", 0))
                    for r in range(0, 4, 2):
                        P.emit(valu("v_pk_mul_f32", rs("v", tb + r, 2), rs("v", tb + r, 2), rs("s", S_CSC2, 2)))
                    for hh in range(2):
                        P.emit(valu("v_cvt_pk_bf16_f32", f"v{dstbase + (s * 2 + qt) * 4 + 2 * t + hh}", f"v{tb + 2 * hh}", f"v{tb + 2 * hh + 1}"))
        if h > 0:
            for s in range(4):
                for qt in range(nq):
                    fr = s * 2 + qt
                    P.emit(bstore(4, rs("v", V_OF + fr * 4, 4), f"v{V_QL}", rs("s", S_SRDQ, 4), f"s{S_QFO}", (fr % 4) * 1024) if fr < 4 else
                           bstore(4, rs("v", V_OF + fr * 4, 4), f"v{V_QL}", rs("s", S_SRDQ, 4), f"s{S_T}", (fr % 4) * 1024))
            P.emit(salu("s_add_u32", f"s{S_QFO}", f"s{S_QFO}", 8192))
            P.emit(salu("s_add_u32", f"s{S_T}", f"s{S_T}", 8192))
    if role == "W":
        for r in range(128, 144): P.emit(valu("v_accvgpr_write_b32", f"a{r}", 0))
    else:
        for r in range(32): P.emit(valu("v_mov_b32", f"v{V_OUTX + r}", 0))
    if OPT.get("fwait", 0): P.do_wait(vm=0)
    else: P.emit(nop(3))
    for r in range(32): P.emit(valu("v_mov_b32", f"v{V_OF + r}", 0))
    P.emit(salu("s_mov_b32", f"s{S_QFO}", 0))
    P.emit(salu("s_movk_i32", f"s{S_T}", 4096))

def qf_reload(P):
    L = []
    for s in range(4):
        for qt in range(P.nq):
            fr = s * 2 + qt
            so = S_QFO if fr < 4 else S_T
            L.append(tagged(bload(4, rs("v", V_QF + fr * 4, 4), f"v{V_QL}", rs("s", S_SRDQ, 4), f"s{so}", (fr % 4) * 1024), ("QF", 1)))
    L.append(salu("s_add_u32", f"s{S_QFO}", f"s{S_QFO}", 8192))
    L.append(salu("s_add_u32", f"s{S_T}", f"s{S_T}", 8192))
    return L

class Ctx:
    def __init__(self): self.slow = {}

def xlane_reduce(op, reg, tmp):
    L = []
    L.append(valu("v_mov_b32", f"v{tmp}", f"v{reg}"))
    L.append(nop(1))
    L.append(valu("v_permlane32_swap_b32", f"v{reg}", f"v{tmp}"))
    L.append(valu(op, f"v{reg}", f"v{reg}", f"v{tmp}"))
    L.append(valu("v_mov_b32", f"v{tmp}", f"v{reg}"))
    L.append(nop(1))
    L.append(valu("v_permlane16_swap_b32", f"v{reg}", f"v{tmp}"))
    L.append(valu(op, f"v{reg}", f"v{reg}", f"v{tmp}"))
    return L

def max8(S, dst, T):
    return [valu("v_max3_f32", f"v{dst}", f"v{S}", f"v{S+1}", f"v{S+2}"),
            valu("v_max3_f32", f"v{T}", f"v{S+3}", f"v{S+4}", f"v{S+5}"),
            valu("v_max3_f32", f"v{dst}", f"v{dst}", f"v{S+6}", f"v{S+7}"),
            valu("v_max_f32", f"v{dst}", f"v{dst}", f"v{T}")]

def exp_items(S, nq, P_after):
    T = V_TMP
    L = []
    n = 0
    for qt in range(nq):
        for e in range(4):
            a = S + qt * 8 + 2 * e
            t0, t1 = T[1 + (2 * n) % 4], T[1 + (2 * n + 1) % 4]; n += 1
            L.append(valu("v_exp_f32", f"v{t0}", f"v{a}"))
            L.append(valu("v_exp_f32", f"v{t1}", f"v{a + 1}"))
            if e == 0: L.append(valu("v_mov_b32", f"v{V_TS[qt]}", f"v{t0}"))
            else: L.append(valu("v_add_f32", f"v{V_TS[qt]}", f"v{V_TS[qt]}", f"v{t0}"))
            L.append(valu("v_add_f32", f"v{V_TS[qt]}", f"v{V_TS[qt]}", f"v{t1}"))
            cv = valu("v_cvt_pk_bf16_f32", f"v{V_P + 4 * qt + e}", f"v{t0}", f"v{t1}")
            if P_after is not None: cv.tag = ("after", P_after)
            L.append(cv)
    return L

def first_tile_items(nq):
    S = V_S[0]; T = V_TMP
    L = []
    for qt in range(nq):
        L += max8(S + 8 * qt, T[0], T[1])
        L += xlane_reduce("v_max_f32", T[0], T[1])
        for r in range(4): L.append(valu("v_sub_f32", f"v{V_NEGM + 4 * qt + r}", 0, f"v{T[0]}"))
        for r in range(8): L.append(valu("v_sub_f32", f"v{S + 8 * qt + r}", f"v{S + 8 * qt + r}", f"v{T[0]}"))
        L.append(valu("v_mov_b32", f"v{V_L[qt]}", 0))
    return L

def make_check(ctx, i, name, nq):
    uid = f"{name}{i}"
    def f(P):
        if i > 0:
            if nq == 2:
                P.emit(valu("v_max_f32", f"v{V_TMP[0]}", f"v{V_TS[0]}", f"v{V_TS[1]}"))
                P.out.pop()
                P.emit(valu("v_add_f32", f"v{V_TMP[0]}", f"v{V_TS[0]}", f"v{V_TS[1]}"))
                src_ = V_TMP[0]
            else: src_ = V_TS[0]
            P.emit(valu("v_cmp_nle_f32", rs("s", S_CMP, 2), f"v{src_}", f"s{S_THR}"))
            P.emit(salu("s_cmp_lg_u64", None, rs("s", S_CMP, 2), 0))
            if not OPT.get("noslow"): P.emit(raw(f"s_cbranch_scc1 L_tr_{uid}", "branch"))
            P.emit(label(f"L_back_{uid}"))
        for qt in range(nq): P.emit(valu("v_add_f32", f"v{V_L[qt]}", f"v{V_L[qt]}", f"v{V_TS[qt]}"))
        if i == 0: P.emit(nop(0))
    if i > 0: ctx.slow[uid] = i & 1
    return f

def slow_routine(par, nq, lab):
    S = V_S[par]; S2 = V_S[1 - par]; T = V_TMP
    B = [label(lab), nop(7), nop(7)]
    for qt in range(nq):
        B += max8(S + 8 * qt, T[0], T[1])
        B += xlane_reduce("v_max_f32", T[0], T[1])
        B.append(valu("v_max_f32", f"v{T[0]}", 0, f"v{T[0]}"))
        B.append(valu("v_sub_f32", f"v{T[1]}", 0, f"v{T[0]}"))
        B.append(valu("v_exp_f32", f"v{T[1]}", f"v{T[1]}"))
        for r in range(4): B.append(valu("v_sub_f32", f"v{V_NEGM + 4 * qt + r}", f"v{V_NEGM + 4 * qt + r}", f"v{T[0]}"))
        B.append(valu("v_mul_f32", f"v{V_L[qt]}", f"v{V_L[qt]}", f"v{T[1]}"))
        for s in range(4):
            for t in range(2):
                for r in range(4):
                    a = oacc(s, t, qt) + r
                    B.append(valu("v_mul_f32", f"v{a}", f"v{a}", f"v{T[1]}"))
        for r in range(8):
            B.append(valu("v_sub_f32", f"v{S + 8 * qt + r}", f"v{S + 8 * qt + r}", f"v{T[0]}"))
            B.append(valu("v_sub_f32", f"v{S2 + 8 * qt + r}", f"v{S2 + 8 * qt + r}", f"v{T[0]}"))
    B += exp_items(S, nq, None)
    B.append(nop(1))
    B.append(raw(f"s_setpc_b64 s[{S_RET}:{S_RET+1}]", "branch"))
    return B
def trampoline(uid, slowlab):
    return [label(f"L_tr_{uid}"),
            raw(f"s_getpc_b64 s[{S_RET}:{S_RET+1}]", "salu"),
            label(f"L_pc_{uid}"),
            raw(f"s_add_u32 s{S_RET}, s{S_RET}, L_back_{uid}-L_pc_{uid}", "salu"),
            raw(f"s_addc_u32 s{S_RET+1}, s{S_RET+1}, -1", "salu"),
            raw(f"s_branch {slowlab}", "branch")]

def qk_jobs(e, i, nq):
    jobs = []
    S = V_S[i & 1]
    slot = i % NKV
    for kt in range(2):
        for s in range(4):
            def mk(a, kt=kt, s=s):
                L = []
                for qt in range(nq):
                    d = rs("v", S + qt * 8 + kt * 4, 4)
                    c = d if s > 0 else ("0" if i == 0 else rs("v", V_NEGM + 4 * qt, 4))
                    L.append(mfma16(d, a, rs("v", V_QF + (s * 2 + qt) * 4, 4), c))
                return L
            jobs.append(Job(e, mk, [("b128", f"v{V_K}", slot * TSLOT + (s >> 1) * 1024 + (s & 1) * 64 + kt * 512)]))
    return jobs
def pv_jobs(e, i, nq):
    jobs = []
    slot = i % NKV
    for s in range(4):
        for t in range(2):
            base = VBASE + slot * TSLOT + (s >> 1) * 1024 + 8 * t
            addr = f"v{V_T[s & 1]}"
            def mk(a, s=s, t=t):
                L = []
                for qt in range(nq):
                    acc = rs("v", oacc(s, t, qt), 4)
                    L.append(mfma16(acc, a, rs("v", V_P + 4 * qt, 4), "0" if i == 0 else acc))
                return L
            jobs.append(Job(e, mk, [("tr", addr, base), ("tr", addr, base + 512)]))
    return jobs
def of_set(z, mode):
    if mode == "AO":
        if z <= 1: return 0
        if z >= 14: return 0
        return 0 if ((z - 2) % 4) < 2 else 1
    else:
        return 0
def o_jobs(e, z, nq, mode="AO"):
    jobs = []
    s, c0, c1 = o_tile_info(z)
    s = of_set(z, mode)
    for cg in range(c0, c1):
        for q4 in range(4):
            nt = 4 * cg + q4
            base = oslot(z) + (cg - c0) * OGRP + (q4 >> 1) * 64
            def mk(a, nt=nt):
                L = []
                for qt in range(nq):
                    acc = outacc(nt, qt, nq)
                    L.append(mfma16(acc, a, rs("v", V_OF + (s * 2 + qt) * 4, 4), acc))
                return L
            jobs.append(Job(e, mk, [("tr", f"v{V_W[q4 & 1]}", base), ("tr", f"v{V_W[q4 & 1]}", base + 512)]))
    return jobs

def phase_A(P, ctx, name):
    role, nq = P.role, P.nq
    jobs = []; eps = []
    e = Epoch(f"{name}pre", [("K", 0), ("QF", 0)]); eps.append(e)
    jobs += qk_jobs(e, 0, nq)
    starts = {}; qkfirst = {}; olast = {}
    for i in range(17):
        needs = []
        if i >= 1: needs.append(("V", i - 1))
        if i + 1 <= 15: needs.append(("K", i + 1))
        if i <= 15: needs.append(("O", i))
        e = Epoch(f"{name}{i}", needs); eps.append(e)
        starts[i] = len(jobs)
        if i >= 1:
            pj = pv_jobs(e, i - 1, nq)
            pj[0].pre.append(make_check(ctx, i - 1, name, nq))
            jobs += pj
        if i <= 15:
            jobs += o_jobs(e, i, nq)
            olast[i] = len(jobs) - 1
        if i + 1 <= 15:
            qkfirst[i + 1] = len(jobs)
            jobs += qk_jobs(e, i + 1, nq)
    starts[17] = len(jobs)
    for i in range(17):
        e = eps[i + 1]; f = starts[i]
        if i <= 15:
            if i == 0:
                e.fill.append(FillQ(first_tile_items(nq), f + 1, qkfirst[1] - 2))
                st = qkfirst[1] - 1
            else: st = f + 1
            pa = f + 7 if i >= 1 else None
            e.fill.append(FillQ(exp_items(V_S[i & 1], nq, pa), st, starts[i + 1] - 1))
        if i in (3, 7, 11):
            mv = [valu("v_mov_b32", f"v{V_OF + r}", f"v{V_OF + 8 + r}") for r in range(4 * nq if nq == 1 else 8)]
            e.fill.append(FillQ(mv, olast[i] + 1, starts[i + 1] + 6))
        if i in (5, 9, 13):
            mv = [valu("v_mov_b32", f"v{V_OF + 8 + r}", f"v{V_OF + 16 + r}") for r in range(4 * nq if nq == 1 else 8)]
            mv += [valu("v_mov_b32", f"v{V_OF + 16 + r}", f"v{V_OF + 24 + r}") for r in range(4 * nq if nq == 1 else 8)]
            e.fill.append(FillQ(mv, olast[i] + 1, starts[i + 1] + 6))
        d = []
        if i <= 15:
            d += dma_O(P, i + 3, ("O", i + 3))
            d += dma_KVs(P, "K", i + 4, ("K", i + 4))
            d += dma_KVs(P, "V", i + 2, ("V", i + 2))
        if i == 1: d += pf_wo()
        if i == 15: d += qf_reload(P)
        if d:
            late = OPT.get("late", 1)
            endg = starts[i + 1] - 9
            st0 = max(f - 8, endg - OPT.get("dmawin", 8)) if late else f - 8
            e.fill.insert(0, FillQ(d, st0, endg, isdma=True))
    P.run_stream(jobs, ahead=bool(OPT.get("aheadA", 0)))
    def rb(t):
        if isinstance(t, tuple) and t[0] in ("K", "V", "O") and t[1] >= 16: return (t[0], t[1] - 16)
        if isinstance(t, tuple) and t[0] == "QF" and t[1] == 1: return ("QF", 0)
        return ("old", 0)
    P.vq = [rb(t) for t in P.vq]
    P.issued = set(rb(t) for t in P.issued)
    P.ptr["K3"] -= 16 * 8192; P.ptr["V3"] -= 16 * 8192
    P.ptr["O"] -= 128 * 1152
    T = V_TMP
    P.emit(nop(3))
    for qt in range(nq):
        P.emit(xlane_reduce("v_add_f32", V_L[qt], T[0]))
        P.emit(valu("v_rcp_f32", f"v{T[1 + qt]}", f"v{V_L[qt]}"))
    P.emit(nop(3))
    for s in range(4):
        for qt in range(nq):
            for t in range(2):
                a = oacc(s, t, qt)
                for r in range(4):
                    P.emit(valu("v_mul_f32", f"v{a + r}", f"v{a + r}", f"v{T[1 + qt]}"))
                for h in range(2):
                    P.emit(valu("v_cvt_pk_bf16_f32", f"v{V_OF + (s * 2 + qt) * 4 + 2 * t + h}", f"v{a + 2 * h}", f"v{a + 2 * h + 1}"))
    P.emit(nop(1))

def _olast():
    s, c0, c1 = o_tile_info(15)
    return (32 * s) * 1152 + (c1 - 1) * 128
O_LAST = _olast()
def _o2():
    s, c0, c1 = o_tile_info(2)
    return (32 * s) * 1152 + (c1 - 1) * 128
O2_LAST = _o2()

def phase_O(P):
    role, nq = P.role, P.nq
    jobs = []
    for z in range(16):
        e = Epoch(f"O{z}", [("O", z)])
        f = len(jobs)
        jobs += o_jobs(e, z, nq, "O")
        if z % 4 == 0 and z > 0:
            mv = [valu("v_mov_b32", f"v{V_OF + r}", f"v{V_OF + 8 + r}") for r in range(24)]
            jobs[f].pre += mv + [nop(1)]
        e.fill.append(FillQ(dma_O(P, z + 3, ("O", z + 3)), f - 8, f + 2, isdma=True))
    P.run_stream(jobs)
    P.emit(nop(7))
    T = V_S[0]
    v = V_TMP[0]
    P.emit(valu("v_mbcnt_lo_u32_b32", f"v{v}", -1, 0))
    P.emit(valu("v_mbcnt_hi_u32_b32", f"v{v}", -1, f"v{v}"))
    P.emit(valu("v_lshlrev_b32", f"v{v}", 4, f"v{v}"))
    P.emit(salu("s_mul_i32", f"s{S_T}", f"s{S_W}", 2 * 18 * 1024))
    stf = {0: "", 1: " nt", 2: " sc1", 3: " sc0 sc1", 4: " sc0 sc1 nt"}[OPT.get("stnt", 2 if OPT.get("fuse", 1) else 0)]
    cnt = 0
    for qt in range(nq):
        for ntp in range(18):
            tb = T + 16 * (cnt % 2)
            srcs = []
            for h in range(2):
                a = outacc(2 * ntp + h, qt, nq)
                regs = parse_regs(a)
                if regs[0][0] == "a":
                    for r in range(4):
                        P.emit(valu("v_accvgpr_read_b32", f"v{tb + 4 * h + r}", f"a{regs[r][1]}"))
                    srcs.append(tb + 4 * h)
                else: srcs.append(regs[0][1])
            for h in range(2):
                for d in range(2):
                    P.emit(valu("v_cvt_pk_bf16_f32", f"v{tb + 8 + 2 * h + d}", f"v{srcs[h] + 2 * d}", f"v{srcs[h] + 2 * d + 1}"))
            off = cnt * 1024
            if off % 4096 == 0 and off > 0: P.emit(salu("s_add_u32", f"s{S_T}", f"s{S_T}", 4096))
            if not OPT.get("nost"): P.emit(bstore(4, rs("v", tb + 8, 4), f"v{v}", rs("s", S_SRDP, 4), f"s{S_T}", off % 4096, flags=stf))
            cnt += 1

def prologue_common():
    L = []
    A = L.append
    A(raw("s_cmp_ge_u32 s2, 256", "salu", wr=[("scc",0)]))
    A(raw("s_cbranch_scc1 L_end", "branch"))
    A(raw("s_load_dwordx16 s[4:19], s[0:1], 0", "smem"))
    A(raw("s_load_dwordx4 s[20:23], s[0:1], 64", "smem"))
    A(raw("s_load_dwordx2 s[24:25], s[0:1], 96", "smem"))
    A(valu("v_lshrrev_b32", "v1", 6, "v0"))
    A(valu("v_and_b32", f"v{V_TMP[0]}", 63, "v0"))
    A(valu("v_readfirstlane_b32", f"s{S_W}", "v1"))
    A(salu("s_and_b32", "s30", "s2", 7))
    A(salu("s_lshr_b32", "s31", "s2", 3))
    A(salu("s_lshr_b32", "s32", "s30", 2))
    A(salu("s_and_b32", "s33", "s30", 3))
    A(salu("s_lshl_b32", "s33", "s33", 1))
    A(salu("s_and_b32", "s34", "s31", 1))
    A(salu("s_add_u32", "s33", "s33", "s34"))
    A(salu("s_lshr_b32", "s34", "s31", 1))
    A(salu("s_mov_b32", f"s{S_R}", 0))
    A(raw("s_waitcnt lgkmcnt(0)", "wait"))
    A(salu("s_cmp_eq_u32", None, "s32", 0))
    for d, a, b in ((4, 4, 14), (6, 6, 16), (8, 8, 18), (10, 10, 20), (12, 12, 22)):
        A(salu("s_cselect_b32", f"s{d}", f"s{a}", f"s{b}"))
        A(salu("s_cselect_b32", f"s{d+1}", f"s{a+1}", f"s{b+1}"))
    return L

def patterns_common():
    L = []
    A = L.append
    A(salu("s_mov_b32", f"s{S_CSC}", hex(f32bits(SCALE))))
    A(salu("s_mov_b32", f"s{S_THR}", hex(f32bits(4096.0))))
    A(salu("s_mul_i32", "s35", "s2", PSZ))
    A(salu("s_add_u32", f"s{S_SRDP}", "s24", "s35"))
    A(salu("s_addc_u32", f"s{S_SRDP+1}", "s25", 0))
    A(salu("s_mov_b32", f"s{S_SRDP+2}", PSZ))
    A(salu("s_mov_b32", f"s{S_SRDP+3}", "0x00020000"))
    A(salu("s_mov_b32", f"s{S_CSC2}", hex(f32bits(SCALE))))
    A(salu("s_mov_b32", f"s{S_CSC2+1}", hex(f32bits(SCALE))))
    A(salu("s_lshl_b32", "s35", "s2", 2))
    A(salu("s_add_u32", "s35", "s35", f"s{S_W}"))
    A(salu("s_mul_i32", "s35", "s35", 3 * 8192))
    A(salu("s_add_u32", "s35", "s35", QOFF))
    A(salu("s_add_u32", f"s{S_SRDQ}", "s24", "s35"))
    A(salu("s_addc_u32", f"s{S_SRDQ+1}", "s25", 0))
    A(salu("s_movk_i32", f"s{S_SRDQ+2}", 3 * 8192))
    A(salu("s_mov_b32", f"s{S_SRDQ+3}", "0x00020000"))
    A(salu("s_mov_b32", f"s{S_QFO}", 0))
    A(salu("s_movk_i32", f"s{S_T}", 4096))
    l, g, t1, t2, t3 = V_TMP
    A(valu("v_lshrrev_b32", f"v{g}", 4, f"v{l}"))
    A(valu("v_bfe_u32", f"v{t1}", f"v{l}", 2, 2))
    A(valu("v_and_b32", f"v{t2}", 3, f"v{l}"))
    A(salu("s_movk_i32", "s35", 2056))
    A(valu("v_mul_lo_u32", f"v{V_T[0]}", "s35", f"v{g}"))
    A(valu("v_lshl_add_u32", f"v{V_T[0]}", f"v{t1}", 7, f"v{V_T[0]}"))
    A(valu("v_lshrrev_b32", f"v{t3}", 1, f"v{t1}"))
    A(valu("v_lshl_add_u32", f"v{V_T[0]}", f"v{t3}", 6, f"v{V_T[0]}"))
    A(valu("v_lshl_add_u32", f"v{V_T[0]}", f"v{t2}", 4, f"v{V_T[0]}"))
    A(valu("v_xor_b32", f"v{t3}", 1, f"v{t3}"))
    A(valu("v_mul_lo_u32", f"v{V_T[1]}", "s35", f"v{g}"))
    A(valu("v_lshl_add_u32", f"v{V_T[1]}", f"v{t1}", 7, f"v{V_T[1]}"))
    A(valu("v_lshl_add_u32", f"v{V_T[1]}", f"v{t3}", 6, f"v{V_T[1]}"))
    A(valu("v_lshl_add_u32", f"v{V_T[1]}", f"v{t2}", 4, f"v{V_T[1]}"))
    A(salu("s_movk_i32", "s35", 1088))
    A(valu("v_mul_lo_u32", f"v{V_W[0]}", "s35", f"v{g}"))
    A(valu("v_lshl_add_u32", f"v{V_W[0]}", f"v{t1}", 7, f"v{V_W[0]}"))
    A(valu("v_lshrrev_b32", f"v{t3}", 1, f"v{t1}"))
    A(valu("v_lshl_add_u32", f"v{V_W[0]}", f"v{t3}", 5, f"v{V_W[0]}"))
    A(valu("v_lshl_add_u32", f"v{V_W[0]}", f"v{t2}", 3, f"v{V_W[0]}"))
    A(valu("v_add_u32", f"v{V_W[0]}", WBASE, f"v{V_W[0]}"))
    A(valu("v_xor_b32", f"v{V_W[1]}", 32, f"v{V_W[0]}"))
    A(valu("v_lshlrev_b32", f"v{V_K}", 11, f"v{t1}"))
    A(valu("v_lshrrev_b32", f"v{t3}", 1, f"v{t1}"))
    A(valu("v_lshl_add_u32", f"v{V_K}", f"v{t3}", 6, f"v{V_K}"))
    A(valu("v_lshl_add_u32", f"v{V_K}", f"v{t2}", 7, f"v{V_K}"))
    A(valu("v_and_b32", f"v{t3}", 2, f"v{t2}"))
    A(valu("v_xor_b32", f"v{t3}", f"v{t3}", f"v{g}"))
    A(valu("v_lshl_add_u32", f"v{V_K}", f"v{t3}", 4, f"v{V_K}"))
    A(valu("v_add_u32", f"v{V_K}", KBASE, f"v{V_K}"))
    A(valu("v_and_b32", f"v{t2}", 15, f"v{l}"))
    A(valu("v_lshrrev_b32", f"v{t1}", 3, f"v{t2}"))
    A(salu("s_lshl_b32", "s36", f"s{S_W}", 2))
    A(valu("v_add_u32", f"v{t1}", "s36", f"v{t1}"))
    A(valu("v_mul_lo_u32", f"v{V_X}", "s35", f"v{t1}"))
    A(valu("v_and_b32", f"v{t3}", 7, f"v{t2}"))
    A(valu("v_lshl_add_u32", f"v{V_X}", f"v{t3}", 7, f"v{V_X}"))
    A(valu("v_and_b32", f"v{t3}", 2, f"v{t2}"))
    A(valu("v_xor_b32", f"v{t3}", f"v{t3}", f"v{g}"))
    A(valu("v_lshl_add_u32", f"v{V_X}", f"v{t3}", 4, f"v{V_X}"))
    A(valu("v_add_u32", f"v{V_X}", WBASE + XREG, f"v{V_X}"))
    return L

BIAS = 4096
def prologue_role(P):
    role = P.role
    A = P.emit
    l, g, t1, t2, t3 = V_TMP
    A(valu("v_lshrrev_b32", f"v{t1}", 3, f"v{l}"))
    A(valu("v_and_b32", f"v{t2}", 7, f"v{l}"))
    A(salu("s_lshl_b32", "s35", "s33", 10))
    A(salu("s_add_u32", f"s{S_SRD0}", "s10", "s35"))
    A(salu("s_addc_u32", f"s{S_SRD0+1}", "s11", 0))
    A(salu("s_sub_u32", f"s{S_SRD0}", f"s{S_SRD0}", BIAS))
    A(salu("s_subb_u32", f"s{S_SRD0+1}", f"s{S_SRD0+1}", 0))
    A(salu("s_sub_u32", f"s{S_SRD0+2}", 576 * 8192 + BIAS, "s35"))
    A(salu("s_mov_b32", f"s{S_SRD0+3}", "0x00020000"))
    A(salu("s_mul_i32", "s35", "s34", 129024))
    A(salu("s_add_u32", f"s{S_SRD1}", "s4", "s35"))
    A(salu("s_addc_u32", f"s{S_SRD1+1}", "s5", 0))
    A(salu("s_mov_b32", f"s{S_SRD1+2}", 129024))
    A(salu("s_mov_b32", f"s{S_SRD1+3}", "0x00020000"))
    A(valu("v_bfe_u32", f"v{t3}", f"v{t1}", 1, 1))
    A(valu("v_lshlrev_b32", f"v{g}", 2, f"v{t3}"))
    A(valu("v_xor_b32", f"v{g}", f"v{g}", f"v{t2}"))
    A(valu("v_lshlrev_b32", f"v{g}", 4, f"v{g}"))
    A(valu("v_lshlrev_b32", f"v{t3}", 1, f"v{t3}"))
    A(valu("v_xor_b32", f"v{t3}", f"v{t3}", f"v{t2}"))
    A(valu("v_lshlrev_b32", f"v{t3}", 4, f"v{t3}"))
    A(valu("v_lshl_add_u32", f"v{V_DQ}", f"v{t1}", 13, f"v{g}"))
    A(salu("s_lshl_b32", "s35", f"s{S_W}", 16))
    A(valu("v_add_u32", f"v{V_DQ}", "s35", f"v{V_DQ}"))
    A(salu("s_lshl_b32", "s35", f"s{S_W}", 11))
    A(valu("v_lshl_add_u32", f"v{V_DV}", f"v{t1}", 8, f"v{g}"))
    A(valu("v_add_u32", f"v{V_DV}", "s35", f"v{V_DV}"))
    A(valu("v_lshl_add_u32", f"v{V_DK}", f"v{t1}", 8, f"v{t3}"))
    A(valu("v_add_u32", f"v{V_DK}", "s35", f"v{V_DK}"))
    A(salu("s_movk_i32", "s35", 1152))
    A(valu("v_mul_lo_u32", f"v{g}", "s35", f"v{t1}"))
    A(valu("v_add_u32", f"v{g}", f"v{g}", f"v{t3}"))
    A(salu("s_mul_i32", "s35", f"s{S_W}", 36864))
    for k in range(4):
        A(salu("s_add_u32", "s36", "s35", k * (9216 - 1088)))
        A(valu("v_add_u32", f"v{V_DX[k]}", "s36", f"v{g}"))
    A(salu("s_mul_i32", "s35", f"s{S_W}", 9216))
    A(valu("v_add_u32", f"v{V_DX[0] + 8}", "s35", f"v{g}"))
    A(salu("s_mul_i32", f"s{S_MV}", f"s{S_W}", 2056))
    A(salu("s_lshl_b32", f"s{S_MK}", f"s{S_W}", 11))
    A(salu("s_lshr_b32", "s35", f"s{S_W}", 1))
    A(salu("s_lshl_b32", "s35", "s35", 6))
    A(salu("s_add_u32", f"s{S_MK}", f"s{S_MK}", "s35"))
    A(salu("s_mul_i32", f"s{S_MX}", f"s{S_W}", 4352))
    A(salu("s_mul_i32", f"s{S_MO}", f"s{S_W}", 1088))
    A(salu("s_movk_i32", f"s{S_A}", BIAS))
    A(salu("s_movk_i32", f"s{S_A2}", BIAS - 896))
    A(salu("s_mov_b32", f"s{S_B2}", 0))
    P.ptr["Q"] = 0; P.ptr["X"] = 0
    A(dma_X4(P, 0, ("X", 0)))
    for n_ in range(8): A(dma_WQ4(P, n_, ("Q", n_)))
    A(dma_X4(P, 1, ("X", 1)))
    if OPT["pf"]:
        A(salu("s_mul_i32", "s35", "s34", 288))
        A(salu("s_mul_i32", "s36", f"s{S_W}", 72))
        A(salu("s_add_u32", "s35", "s35", "s36"))
        for k in range(2):
            A(valu("v_min_u32", f"v{t3}", 63 if k == 0 else 7, f"v{l}"))
            A(valu("v_add_u32", f"v{t3}", "s35", f"v{t3}"))
            A(valu("v_lshrrev_b32", f"v{g}", 3, f"v{t3}"))
            A(valu("v_lshlrev_b32", f"v{g}", 13, f"v{g}"))
            A(valu("v_and_b32", f"v{t3}", 7, f"v{t3}"))
            A(valu("v_lshl_add_u32", f"v{g}", f"v{t3}", 7, f"v{g}"))
            A(valu("v_add_u32", f"v{g}", BIAS, f"v{g}"))
            A(tagged(bload(1, "v0", f"v{g}", rs("s", S_SRD0, 4), 0, 0), ("pf", 0)))
            A(salu("s_add_u32", "s35", "s35", 64))
        A(salu("s_and_b32", "s35", "s33", 1))
        A(salu("s_lshl_b32", "s35", "s35", 2))
        A(salu("s_add_u32", "s35", "s35", f"s{S_W}"))
        A(salu("s_mul_i32", "s35", "s35", 126 * 128))
        A(valu("v_lshlrev_b32", f"v{g}", 7, f"v{l}"))
        for k in range(2):
            A(tagged(bload(1, "v0", f"v{g}", rs("s", S_SRD1, 4), "s35", 0), ("pf", 1)))
            A(salu("s_add_u32", "s35", "s35", 62 * 128))
    if OPT.get("cpf", 1):
        P.cpf_id = getattr(P, "cpf_id", role)
        A(raw("s_getpc_b64 s[36:37]", "salu"))
        A(label(f"L_cpf_{role}"))
        A(raw(f"s_sub_u32 s36, s36, L_cpf_{role}-L_code_start", "salu"))
        A(raw("s_subb_u32 s37, s37, 0", "salu"))
        A(salu("s_lshr_b32", "s35", "s2", 3))
        A(salu("s_lshl_b32", "s35", "s35", 2))
        A(salu("s_add_u32", "s35", "s35", f"s{S_W}"))
        A(salu("s_and_b32", "s35", "s35", 15))
        A(salu("s_lshl_b32", "s35", "s35", 13))
        A(valu("v_lshlrev_b32", f"v{g}", 7, f"v{l}"))
        A(valu("v_add_u32", f"v{g}", "s35", f"v{g}"))
        A(raw(f"s_mov_b32 s35, L_code_end-L_code_start-4", "salu"))
        A(valu("v_min_u32", f"v{g}", "s35", f"v{g}"))
        A(tagged(I(f"global_load_dword v0, v{g}, s[36:37]", "vmem", [("v", g), ("s", 36), ("s", 37)], [("v", 0)]), ("pf", 2)))
    A(salu("s_lshl_b32", "s35", "s34", 5))
    A(salu("s_lshl_b32", "s36", "s33", 2))
    A(salu("s_add_u32", "s35", "s35", "s36"))
    A(salu("s_lshl_b32", "s36", "s35", 17))
    A(salu("s_lshr_b32", "s37", "s35", 15))
    for srd, p in ((S_SRDK, 6), (S_SRDV, 8)):
        A(salu("s_add_u32", f"s{srd}", f"s{p}", "s36"))
        A(salu("s_addc_u32", f"s{srd+1}", f"s{p+1}", "s37"))
        A(salu("s_sub_u32", f"s{srd}", f"s{srd}", BIAS))
        A(salu("s_subb_u32", f"s{srd+1}", f"s{srd+1}", 0))
        A(salu("s_mov_b32", f"s{srd+2}", 524288 + BIAS))
        A(salu("s_mov_b32", f"s{srd+3}", "0x00020000"))
    A(salu("s_movk_i32", f"s{S_KP}", BIAS)); A(salu("s_movk_i32", f"s{S_KP2}", BIAS - 896))
    A(salu("s_movk_i32", f"s{S_VP}", BIAS)); A(salu("s_movk_i32", f"s{S_VP2}", BIAS - 896))
    P.ptr["K3"] = 0; P.ptr["V3"] = 0
    if OPT.get("rot", 0):
        A(salu("s_lshr_b32", "s35", "s2", 3))
        A(salu("s_add_u32", "s35", "s35", "s2"))
        A(salu("s_add_u32", "s35", "s35", 15))
        A(salu("s_and_b32", "s35", "s35", 15))
        A(salu("s_lshl_b32", f"s{S_KT}", "s35", 13))
        A(salu("s_mov_b32", f"s{S_VT}", f"s{S_KT}"))
        A(salu("s_movk_i32", f"s{S_KH}", BIAS))
        A(salu("s_movk_i32", f"s{S_VH}", BIAS))
        P.ptr["K3"] = -8192; P.ptr["V3"] = -8192
    A(salu("s_mul_i32", "s35", "s33", 512 * 1152))
    A(salu("s_add_u32", f"s{S_SRD2}", "s12", "s35"))
    A(salu("s_addc_u32", f"s{S_SRD2+1}", "s13", 0))
    A(salu("s_mov_b32", f"s{S_SRD2+2}", 512 * 1152))
    A(salu("s_mov_b32", f"s{S_SRD2+3}", "0x00020000"))
    A(salu("s_mul_i32", "s35", "s34", 72))
    A(salu("s_mul_i32", "s36", f"s{S_W}", 18))
    A(salu("s_add_u32", "s35", "s35", "s36"))
    A(valu("v_min_u32", f"v{t3}", 17, f"v{l}"))
    A(valu("v_add_u32", f"v{t3}", "s35", f"v{t3}"))
    A(valu("v_lshlrev_b32", f"v{V_PFO}", 7, f"v{t3}"))
    A(salu("s_mov_b32", f"s{S_PFOO}", 0))
    A(salu("s_mov_b32", f"s{S_C}", (-147456) & 0xffffffff))
    P.ptr["O"] = 0
    A(valu("v_lshlrev_b32", f"v{V_QL}", 4, f"v{l}"))
    A(patterns_common())
    nacc = 256 if role == "C" else 128
    for r in range(nacc): A(valu("v_accvgpr_write_b32", f"a{r}", 0))

def build_role(role, ctx):
    P = Prog(role)
    segs = {}
    def cut(name):
        segs.setdefault(name, []).append(P.out); P.out = []
    prologue_role(P); cut("pro")
    phase_Q4(P); cut("Q")
    q4_finish(P)
    for t in [("QF", 0)]: P.issued.add(t)
    cut("F")
    for r in range(4):
        phase_A(P, ctx, f"{role}B"); cut("AO")
    phase_O(P); cut("O")
    return segs

fold_id = [0]
def norm(t):
    t = re.sub(r"vmcnt\(\d+\) ?", "", t)
    t = re.sub(r"(L_tr_|L_back_)\w+", r"\1X", t)
    return re.sub(r"(--- barrier )\w+", r"\1X", t)
def fold(seq, p):
    chunks = [[]]
    for ins in seq:
        if ins.kind == "comment" and ins.text.startswith("; --- barrier"): chunks.append([])
        chunks[-1].append(ins)
    keys = ["\n".join(norm(i.text) for i in c) for c in chunks]
    best = (0, 0); n = len(chunks)
    for a in range(n):
        k = 1
        while a + (k + 1) * p <= n and all(keys[a + k * p + r] == keys[a + r] for r in range(p)): k += 1
        if k >= 2 and k > best[1]: best = (a, k)
    a, k = best
    if k < 2:
        print("fold failed"); return seq
    out = []
    for c in chunks[:a]: out += c
    for r in range(p):
        for it in range(1, k):
            for x, y in zip(chunks[a + r], chunks[a + it * p + r]):
                if x.kind == "wait" and x.text != y.text:
                    va, la = parse_wait(x.text); vb, lb = parse_wait(y.text)
                    vs = [q for q in (va, vb) if q is not None]
                    x.text = wait(min(vs) if vs else None, la).text
    fold_id[0] += 1
    lab = f"L_loop{fold_id[0]}"
    out.append(salu("s_mov_b32", f"s{S_LOOP}", k))
    out.append(label(lab))
    for c in chunks[a:a + p]: out += c
    out.append(salu("s_sub_u32", f"s{S_LOOP}", f"s{S_LOOP}", 1))
    out.append(salu("s_cmp_lg_u32", None, f"s{S_LOOP}", 0))
    out.append(raw(f"s_cbranch_scc1 {lab}", "branch"))
    for c in chunks[a + k * p:]: out += c
    print(f"fold: {n} chunks -> loop start {a} x{k} (period {p})")
    return out

def parse_wait(t):
    vm = re.search(r"vmcnt\((\d+)\)", t); lg = re.search(r"lgkmcnt\((\d+)\)", t)
    return (int(vm.group(1)) if vm else None, int(lg.group(1)) if lg else None)
def merge_instances(insts, name):
    base = insts[0]
    for other in insts[1:]:
        assert len(other) == len(base), (name, len(other), len(base))
        for a, b in zip(base, other):
            if a.text != b.text:
                assert a.kind == "wait" and b.kind == "wait", (name, a.text, b.text)
                va, la = parse_wait(a.text); vb, lb = parse_wait(b.text)
                assert la == lb, (a.text, b.text)
                vs = [x for x in (va, vb) if x is not None]
                a.text = wait(min(vs), la).text
    return base

NRED = 32 * 7 * 18 * 64 // 256
def reduce_kernel():
    L = []
    A = L.append
    ldf = {0: "", 1: " nt", 2: " sc1", 3: " sc0 sc1"}[OPT.get("rdnt", 0)]
    A(f"s_cmp_ge_u32 s2, {NRED}")
    A("s_cbranch_scc1 L_rend")
    A("s_load_dwordx2 s[4:5], s[0:1], 96")
    A("s_load_dwordx2 s[6:7], s[0:1], 80")
    A("v_lshrrev_b32 v1, 6, v0")
    A("v_and_b32 v3, 63, v0")
    A("v_readfirstlane_b32 s12, v1")
    A("s_lshl_b32 s13, s2, 2")
    A("s_add_u32 s13, s13, s12")
    A(f"s_mul_hi_u32 s8, s13, {(2**32 + 125) // 126}")
    A("s_mul_i32 s9, s8, 126")
    A("s_sub_u32 s9, s13, s9")
    A("s_lshr_b32 s10, s8, 4")
    A("s_and_b32 s11, s8, 15")
    A(f"s_mul_hi_u32 s14, s9, {(2**32 + 17) // 18}")
    A("s_mul_i32 s15, s14, 18")
    A("s_sub_u32 s15, s9, s15")
    A("v_lshlrev_b32 v2, 4, v3")
    A("s_lshl_b32 s27, s9, 10")
    A("v_add_u32 v2, s27, v2")
    A("v_and_b32 v4, 15, v3")
    A("v_lshrrev_b32 v5, 4, v3")
    A("s_waitcnt lgkmcnt(0)")
    A("s_mov_b32 s16, s4"); A("s_mov_b32 s17, s5"); A(f"s_mov_b32 s18, {256*PSZ}"); A("s_mov_b32 s19, 0x00020000")
    A("s_mov_b32 s20, s6"); A("s_mov_b32 s21, s7"); A(f"s_mov_b32 s22, {16*112*1152*2}"); A("s_mov_b32 s23, 0x00020000")
    A("s_lshl_b32 s26, s11, 4")
    A("s_lshl_b32 s25, s10, 2")
    A("s_add_u32 s26, s26, s25")
    for j in range(8):
        A(f"s_add_u32 s24, s26, {((j & 1) << 3) | (j >> 1)}")
        A(f"s_mul_i32 s24, s24, {PSZ}")
        A(f"buffer_load_dwordx4 v[{8+4*j}:{11+4*j}], v2, s[16:19], s24 offen{ldf}")
    A("s_mul_i32 s24, s11, 112")
    A("s_lshl_b32 s25, s14, 4")
    A("s_add_u32 s24, s24, s25")
    A("v_add_u32 v4, s24, v4")
    A("s_movk_i32 s25, 2304")
    A("v_mul_lo_u32 v4, s25, v4")
    A("s_mul_i32 s24, s10, 1152")
    A("s_lshl_b32 s25, s15, 6")
    A("s_add_u32 s24, s24, s25")
    A("v_lshl_add_u32 v4, v5, 3, v4")
    A("v_add_u32 v4, s24, v4")
    for j in range(8):
        A(f"s_waitcnt vmcnt({7-j})")
        for d in range(4):
            r = 8 + 4 * j + d
            if j == 0:
                A(f"v_lshlrev_b32 v{48+2*d}, 16, v{r}")
                A(f"v_and_b32 v{48+2*d+1}, 0xffff0000, v{r}")
            else:
                A(f"v_lshlrev_b32 v40, 16, v{r}")
                A(f"v_and_b32 v41, 0xffff0000, v{r}")
                A(f"v_add_f32 v{48+2*d}, v{48+2*d}, v40")
                A(f"v_add_f32 v{48+2*d+1}, v{48+2*d+1}, v41")
    for d in range(4):
        A(f"v_cvt_pk_bf16_f32 v{56+d}, v{48+2*d}, v{48+2*d+1}")
    A("buffer_store_dwordx2 v[56:57], v4, s[20:23], 0 offen")
    A("buffer_store_dwordx2 v[58:59], v4, s[20:23], 0 offen offset:32")
    A("L_rend:")
    A("s_endpgm")
    return "\n".join(L) + "\n"

def fused_tail():
    T = []
    A = lambda t: T.append(raw(t, "raw"))
    T.append(label("L_tail"))
    A("s_waitcnt vmcnt(0)")
    A("s_barrier")
    A("s_load_dwordx2 s[4:5], s[0:1], 88")
    A("s_load_dwordx2 s[6:7], s[0:1], 80")
    A("v_mbcnt_lo_u32_b32 v1, -1, 0")
    A("v_mbcnt_hi_u32_b32 v1, -1, v1")
    A("s_lshl_b32 s12, s32, 4")
    A("s_add_u32 s12, s12, s34")
    A("s_lshl_b32 s12, s12, 2")
    A("s_waitcnt lgkmcnt(0)")
    A("s_mov_b32 s8, s4"); A("s_mov_b32 s9, s5"); A("s_movk_i32 s10, 256"); A("s_mov_b32 s11, 0x00020000")
    A(f"s_cmp_lg_u32 s{S_W}, 0")
    A("s_cbranch_scc1 L_tail_wait")
    A("v_mov_b32 v2, 1")
    A("v_mov_b32 v3, 0")
    A("v_cmp_eq_u32 vcc, 0, v1")
    A("s_and_saveexec_b64 s[14:15], vcc")
    A("buffer_atomic_add v2, v3, s[8:11], s12 offen")
    A("s_mov_b64 exec, s[14:15]")
    A("s_waitcnt vmcnt(0)")
    A("s_mov_b32 s13, 0")
    T.append(label("L_poll"))
    A("buffer_load_dword v2, v3, s[8:11], s12 offen sc1")
    A("s_waitcnt vmcnt(0)")
    A("v_readfirstlane_b32 s16, v2")
    A("s_add_u32 s13, s13, 1")
    A("s_cmp_ge_u32 s16, 8")
    A("s_cbranch_scc1 L_tail_wait")
    A("s_sleep 1")
    A("s_cmp_lt_u32 s13, 0x400000")
    A("s_cbranch_scc1 L_poll")
    T.append(label("L_tail_wait"))
    A("s_barrier")
    T += pstamp(True)
    A("s_mov_b32 s16, s24"); A("s_mov_b32 s17, s25"); A(f"s_mov_b32 s18, {256*PSZ}"); A("s_mov_b32 s19, 0x00020000")
    A("s_mov_b32 s20, s6"); A("s_mov_b32 s21, s7"); A(f"s_mov_b32 s22, {16*112*1152*2}"); A("s_mov_b32 s23, 0x00020000")
    A("v_lshlrev_b32 v2, 4, v1")
    A("v_and_b32 v4, 15, v1")
    A("v_lshrrev_b32 v5, 4, v1")
    A("s_lshl_b32 s26, s33, 4")
    A(f"s_lshl_b32 s27, s{S_W}, 2")
    A("s_add_u32 s26, s26, s27")
    A("s_lshl_b32 s28, s34, 4")
    A("s_lshl_b32 s29, s32, 2")
    A("s_add_u32 s28, s28, s29")
    for k in range(4):
        for p in range(8):
            A(f"s_add_u32 s30, s28, {((p & 1) << 3) | (p >> 1)}")
            A(f"s_mul_i32 s30, s30, {PSZ}")
            A(f"s_add_u32 s31, s26, {k}")
            A("s_lshl_b32 s31, s31, 10")
            A("s_add_u32 s30, s30, s31")
            r = 16 + (k * 8 + p) * 4
            A(f"buffer_load_dwordx4 v[{r}:{r+3}], v2, s[16:19], s30 offen sc1")
    for k in range(4):
        A(f"s_add_u32 s31, s26, {k}")
        A(f"s_mul_hi_u32 s30, s31, {(2**32 + 17) // 18}")
        A("s_mul_i32 s29, s30, 18")
        A("s_sub_u32 s29, s31, s29")
        A("s_mul_i32 s27, s34, 112")
        A("s_lshl_b32 s30, s30, 4")
        A("s_add_u32 s27, s27, s30")
        A("v_add_u32 v6, s27, v4")
        A("s_movk_i32 s27, 2304")
        A("v_mul_lo_u32 v6, s27, v6")
        A("s_mul_i32 s27, s32, 1152")
        A("s_lshl_b32 s29, s29, 6")
        A("s_add_u32 s27, s27, s29")
        A("v_lshl_add_u32 v6, v5, 3, v6")
        A("v_add_u32 v6, s27, v6")
        for p in range(8):
            A(f"s_waitcnt vmcnt({min(63, (3 - k) * 8 + (7 - p) + 2 * 0)})" if False else f"s_waitcnt vmcnt({(3 - k) * 8 + (7 - p) + 2 * k})")
            for d in range(4):
                r = 16 + (k * 8 + p) * 4 + d
                if p == 0:
                    A(f"v_lshlrev_b32 v{8+2*d}, 16, v{r}")
                    A(f"v_and_b32 v{8+2*d+1}, 0xffff0000, v{r}")
                else:
                    A(f"v_lshlrev_b32 v3, 16, v{r}")
                    A(f"v_and_b32 v7, 0xffff0000, v{r}")
                    A(f"v_add_f32 v{8+2*d}, v{8+2*d}, v3")
                    A(f"v_add_f32 v{8+2*d+1}, v{8+2*d+1}, v7")
        for d in range(4):
            A(f"v_cvt_pk_bf16_f32 v{150+4*k+d}, v{8+2*d}, v{8+2*d+1}")
        A("s_cmp_ge_u32 s31, 126")
        A(f"s_cselect_b32 s27, 0x7f000000, 0")
        A(f"buffer_store_dwordx2 v[{150+4*k}:{151+4*k}], v6, s[20:23], s27 offen")
        A(f"buffer_store_dwordx2 v[{152+4*k}:{153+4*k}], v6, s[20:23], s27 offen offset:32")
    if DEBUG == "T":
        A("s_waitcnt vmcnt(0)")
        T += pstamp(True)
    A("s_endpgm")
    return T

def dbg_dump(base, n):
    L = []
    L.append(raw("s_waitcnt vmcnt(0) lgkmcnt(0)", "wait"))
    L.append(nop(15))
    L.append(salu("s_lshl_b32", "s88", "s2", 2))
    L.append(salu("s_add_u32", "s88", "s88", f"s{S_W}"))
    L.append(salu("s_lshl_b32", "s88", "s88", 14))
    L.append(salu("s_add_u32", "s88", "s88", 64 << 20))
    L.append(salu("s_mov_b32", "s84", "s24")); L.append(salu("s_mov_b32", "s85", "s25"))
    L.append(salu("s_mov_b32", "s86", 128 << 20)); L.append(salu("s_mov_b32", "s87", "0x00020000"))
    L.append(valu("v_mbcnt_lo_u32_b32", "v15", -1, 0))
    L.append(valu("v_mbcnt_hi_u32_b32", "v15", -1, "v15"))
    L.append(valu("v_lshlrev_b32", "v15", 2, "v15"))
    for r in range(n):
        if r and r % 16 == 0: L.append(salu("s_add_u32", "s88", "s88", 4096))
        L.append(bstore(1, f"v{base + r}", "v15", "s[84:87]", "s88", (r % 16) * 256))
    L.append(raw("s_waitcnt vmcnt(0)", "wait"))
    L.append(raw("s_endpgm", "end"))
    return L

def stamp_init():
    L = []
    L.append(salu("s_lshl_b32", "s88", "s2", 2))
    L.append(salu("s_add_u32", "s88", "s88", f"s{S_W}"))
    L.append(salu("s_lshl_b32", "s88", "s88", 11 if DEBUG == "G" else (10 if DEBUG == "F" else 8)))
    L.append(salu("s_add_u32", "s88", "s88", 100 << 20))
    L.append(salu("s_mov_b32", "s84", "s24")); L.append(salu("s_mov_b32", "s85", "s25"))
    L.append(salu("s_mov_b32", "s86", 128 << 20)); L.append(salu("s_mov_b32", "s87", "0x00020000"))
    return L
def pstamp(real=False):
    return [] if DEBUG == "G" else stamp(real)
def stamp(real=False):
    if DEBUG not in ("T", "F", "G"): return []
    L = []
    L.append(raw("s_memrealtime s[96:97]" if real else "s_memtime s[96:97]", "smem"))
    L.append(raw("s_waitcnt lgkmcnt(0)", "wait"))
    L.append(valu("v_mov_b32", "v18", "s96"))
    L.append(valu("v_mov_b32", "v19", 0))
    L.append(bstore(1, "v18", "v19", "s[84:87]", "s88", 0))
    L.append(salu("s_add_u32", "s88", "s88", 4))
    return L

def main(outpath):
    ctx = Ctx()
    FUSE = OPT.get("fuse", 1)
    from gcommon import KN
    name = KN if FUSE else MAIN
    if FUSE: txt = header([(KN, (256, 1, 1), (256, 1, 1), LDS_TOTAL)])
    else: txt = header([(MAIN, (256, 1, 1), (256, 1, 1), LDS_TOTAL), (RED, (NRED, 1, 1), (256, 1, 1), 0)])
    txt += kstart(name)
    body = [label("L_code_start")]
    pro = prologue_common()
    body += pro
    body.append(raw(f"s_cmp_ge_u32 s{S_W}, 3", "salu"))
    body.append(raw("s_cbranch_scc1 L_role_W_far", "branch"))
    allprobs = []
    for role in ("C", "W"):
        segs = build_role(role, ctx)
        nq = 2 if role == "C" else 1
        Q = segs["Q"][0]
        AO = merge_instances(segs["AO"], "AO")
        seq = []
        if role == "W": seq.append(label("L_role_W"))
        if DEBUG in ("T", "F", "G"): seq += stamp_init() + pstamp(True) + pstamp()
        seq += segs["pro"][0]
        seq += pstamp()
        seq += fold(Q, OPT.get("qper", 8)) if DEBUG not in ("F", "G") else Q
        seq += pstamp()
        seq += segs["F"][0]
        seq += pstamp()
        if DEBUG == "Q": seq += dbg_dump(V_QF, 32)
        seq.append(label(f"L_head_{role}"))
        seq += fold(AO, 4) if DEBUG not in ("F", "G") else AO
        seq += pstamp()
        if DEBUG == "O": seq += dbg_dump(V_OF, 32)
        seq.append(raw(f"s_add_u32 s{S_R}, s{S_R}, 1", "salu"))
        seq.append(raw(f"s_cmp_lt_u32 s{S_R}, 4", "salu"))
        seq.append(raw(f"s_cbranch_scc1 L_head_{role}", "branch"))
        seq += fold(segs["O"][0], 4) if DEBUG not in ("F", "G") else segs["O"][0]
        seq += pstamp()
        seq.append(raw("s_waitcnt vmcnt(0)", "wait"))
        seq += pstamp() + pstamp(True)
        if FUSE: seq.append(raw("s_branch L_tail", "branch"))
        else: seq.append(raw("s_endpgm", "end"))
        used = set(re.findall(r"s_cbranch_scc1 L_tr_(\w+)", "\n".join(i.text for i in seq)))
        for uid, par in ctx.slow.items():
            if uid in used: seq += trampoline(uid, f"L_slow_{role}{par}")
        for par in (0, 1):
            B = slow_routine(par, nq, f"L_slow_{role}{par}")
            allprobs += check_hazards(B, f"slow{role}{par}")
            seq += B
        lin = pro + segs["pro"][0] + Q + segs["F"][0] + AO + AO + segs["O"][0]
        allprobs += check_hazards(lin, role)
        if role == "C":
            body.append(raw("s_branch L_role_C", "branch"))
            body.append(label("L_role_W_far"))
            body.append(raw("s_getpc_b64 s[30:31]", "salu"))
            body.append(label("L_pcw"))
            body.append(raw("s_add_u32 s30, s30, L_role_W-L_pcw", "salu"))
            body.append(raw("s_addc_u32 s31, s31, 0", "salu"))
            body.append(raw("s_setpc_b64 s[30:31]", "branch"))
            body.append(label("L_end"))
            body.append(raw("s_endpgm", "end"))
            body.append(label("L_role_C"))
        body += seq
        if role == "C" and FUSE: body += fused_tail()
    body.append(label("L_code_end"))
    body.append(raw("s_endpgm", "end"))
    txt += "\n".join(i.text for i in body) + "\n"
    if not FUSE: txt += kstart(RED) + reduce_kernel()
    txt += kdesc(name, 512, sgpr=100, accum=256)
    if not FUSE: txt += kdesc(RED, 64, sgpr=40)
    open(outpath, "w").write(txt)
    for p in allprobs[:40]: print("HAZARD", p)
    print("instructions:", sum(1 for i in body if i.kind not in ("label", "comment")), "bytes of text", len(txt))

if __name__ == "__main__":
    if len(sys.argv) > 2: DEBUG = sys.argv[2]
    for a in sys.argv[3:]:
        k, v = a.split("="); OPT[k] = int(v)
    main(sys.argv[1] if len(sys.argv) > 1 else "k8.s")
```

```python
import sys, math, struct, re
from asmlib import *
sys.path.insert(0, "work")
from gcommon import header, kstart, kdesc

OPT = {"bar_delay": 2, "budget": 4, "barcost": 1, "postq": 4, "catchq": 4, "capf": 2, "pf": 1, "NB": 7, "wcap": 2}
DEBUG = ""
MAIN = "fa_main_kernel"
RED = "fa_reduce_kernel"

NKV = 4
TSLOT = 8256
VBASE = 0
KBASE = NKV * TSLOT
WBASE = 2 * NKV * TSLOT
XSLOT = 16 * 1088
XREG = 0
QREG = 3 * XSLOT
LDS_TOTAL = WBASE + QREG + 4 * TSLOT
PSZ = 7 * 18 * 1024
OGRP = 4352
def wqslot(s): return QREG + ((s + 2) % 4) * TSLOT
def xslot(p): return XREG + (p % 3) * XSLOT
def oslot(z): return [XREG, XREG + XSLOT, QREG, XREG + 2 * XSLOT][z % 4]

V_T = [1, 2]
V_K = 3
V_X = 4
V_W = [5, 6]
V_D = [7, 8, 9, 10]
V_L = [11, 12]
V_TS = [13, 14]
V_TMP = [15, 16, 17, 18, 19]
V_NEGM = 20
V_P = 28
V_S = [36, 52]
V_OACC = 68
V_OUTX = 132
V_QF = 164
V_OF = 196
V_AF = 228
VW_Q = [148, 149, 150, 151]
VW_X = [152, 153, 154, 155]
VW_K = [156, 157]
VW_V = [158, 159, 160, 161]
V_Q = [52, 53]
V_DK, V_DV, V_PFO, V_QL = 7, 8, 9, 10
V_DO = 4
V_DQ = 54
V_DX = [55, 56, 57, 58]

S_SRD0, S_SRD1, S_SRD2, S_SRDP = 40, 44, 48, 52
S_W, S_R = 56, 58
S_A, S_B2, S_C = 60, 61, 62
S_TMP = 63
S_KM = [64, 65, 66]
S_VM = [67, 68, 69]
S_G = [76, 77, 78]
S_CMP = 70
S_THR = 73
S_CSC = 72
S_CSC2 = 26
S_T = 74
S_PFQO, S_PFOO = 79, 89
S_PFQ, S_PFO = 48, 80
S_RET = 90
S_KT, S_KH, S_VT, S_VH = 4, 5, 6, 7
S_KP2, S_VP2, S_A2 = 66, 67, 68
S_MK, S_MV, S_MX, S_MO = 69, 76, 77, 78
S_LOOP = 39
S_SRDQ = 28
S_QFO = 38
QOFF = 48 << 20
S_SRDK, S_SRDV = 80, 92
S_KP, S_VP = 64, 65

SCALE = 1.4426950408889634 / math.sqrt(128.0)
def f32bits(x): return struct.unpack("<I", struct.pack("<f", x))[0]
def tagged(ins, tag):
    ins.tag = tag
    return ins

def outacc(nt, qt, nq):
    idx = nt * nq + qt
    if nq == 1: return rs("a", 4 * idx, 4)
    if idx < 64: return rs("a", 4 * idx, 4)
    return rs("v", V_OUTX + 4 * (idx - 64), 4)
def oacc(s, t, qt): return V_OACC + ((s * 2 + t) * 2 + qt) * 4

class Job:
    def __init__(self, epoch, mk, reads, fixed=()):
        self.epoch = epoch; self.mk = mk; self.reads = reads; self.fixed = fixed
        self.ops = []; self.buf = None; self.pre = []
class Epoch:
    def __init__(self, name, needs):
        self.name = name; self.needs = needs; self.fill = []; self.first = None; self.done_bar = False
class FillQ:
    def __init__(self, items, start, end, isdma=False):
        self.items = list(items); self.start = start; self.end = end; self.isdma = isdma
        self.maxper = OPT.get("dmaper", 2) if isdma else None

class Prog:
    def __init__(self, role):
        self.role = role
        self.nq = 2 if role == "C" else 1
        self.out = []; self.vq = []; self.lq = []; self.nop_id = 0; self.issued = set()
        self.ptr = {}
        self.first_tile = {}
    def emit(self, ins):
        if isinstance(ins, list):
            for i in ins: self.emit(i)
            return
        if ins.kind == "vmem" and isinstance(ins.tag, tuple) and ((OPT.get("noO") and ins.tag[0] == "O") or (OPT.get("noKV") and ins.tag[0] in ("K", "V")) or (OPT.get("noV") and ins.tag[0] == "V")):
            self.vq.append(ins.tag); self.issued.add(ins.tag)
            return
        if ins.kind == "vmem" and (OPT.get("nodma") or (OPT.get("nokv") and self.role == "C") or (OPT.get("now") and self.role == "W")):
            self.vq.append(ins.tag); self.issued.add(ins.tag)
            return
        if ins.kind == "vmem" and ins.text.endswith("lds") and self.out and ("s", 124) in self.out[-1].wr:
            self.out.append(nop(0))
        self.out.append(ins)
        if ins.kind in ("vmem", "vstore"):
            self.vq.append(ins.tag if ins.kind == "vmem" else "store")
            self.issued.add(ins.tag)
        if ins.kind == "lds":
            self.nop_id += 1
            self.lq.append(self.nop_id)
            return self.nop_id
    def vm_wait_for(self, tags):
        last = -1
        for i, t in enumerate(self.vq):
            if t in tags: last = i
        if last < 0: return None
        return len(self.vq) - 1 - last
    def do_wait(self, vm=None, lgkm=None):
        if vm is not None:
            vm = min(vm, 63)
            if vm == 0: self.vq = []
            elif vm < len(self.vq): self.vq = self.vq[len(self.vq) - vm:]
        if lgkm is not None:
            if lgkm == 0: self.lq = []
            elif lgkm < len(self.lq): self.lq = self.lq[len(self.lq) - lgkm:]
        self.emit(wait(vm, lgkm))
    def move_ptr(self, name, target, sregs=()):
        d = target - self.ptr[name]
        self.ptr[name] = target
        if d == 0: return []
        return [salu("s_add_u32", f"s{r}", f"s{r}", d & 0xffffffff) for r in sregs]

    def run_stream(self, jobs, NB=None, AFB=None, ahead=False):
        NB = NB or OPT["NB"]
        AFB = AFB or V_AF
        n = len(jobs)
        budget = OPT["budget"] if self.nq == 2 else OPT["budget"]
        if self.nq == 1: budget = 6
        for k, j in enumerate(jobs):
            if j.epoch.first is None: j.epoch.first = k
            j.epoch.last = k
        eps_list = []
        for j in jobs:
            if not eps_list or eps_list[-1] is not j.epoch: eps_list.append(j.epoch)
        for ei, e in enumerate(eps_list):
            e.idx = ei; e.vis = False
        free = list(range(NB))
        off = 0
        for e in eps_list:
            ne = e.last - e.first + 1
            for k in range(e.first, e.last + 1): jobs[k].want = (off + k - e.first) % NB
            skip = 0
            if NB == 7: skip = {24: 1, 28: 2, 8: 2}.get(ne, 0)
            off = (off + ne + skip) % NB
        nextrd = 0
        fq = []
        state = {"lastrd": -10, "dq": None}
        def issue_reads(j):
            b = j.want; free.remove(b); j.buf = b
            base = AFB + 4 * b
            for kind, dst, addr, imm in j.fixed:
                j.ops.append(self.emit(ds_read(kind, dst, addr, imm)))
            sub = 0
            for kind, addr, imm in j.reads:
                w = 4 if kind == "b128" else 2
                j.ops.append(self.emit(ds_read(kind, rs("v", base + sub, w), addr, imm)))
                sub += w
            return len(j.fixed) + len(j.reads)
        def do_barrier(e, g):
            needs = list(e.needs)
            if ahead:
                nxt = eps_list[e.idx + 1] if e.idx + 1 < len(eps_list) else None
                needs = (list(e.needs) if e.idx == 0 else []) + (list(nxt.needs) if nxt else [])
                if nxt: nxt.vis = True
            e.vis = True
            for t in needs: assert t in self.issued, ("not issued", e.name, t)
            vm = self.vm_wait_for(set(needs)) if needs else None
            self.emit(comment(f"--- barrier {e.name}"))
            if ahead and e.idx > 0:
                if vm is not None: self.do_wait(vm=vm)
                self.emit(barrier())
                e.done_bar = True
                activate(e, g)
                return
            if DEBUG == "G":
                self.do_wait(lgkm=0); self.emit(stamp())
            self.do_wait(vm=vm, lgkm=0 if not OPT.get("nolg") else None) if (vm is not None or not OPT.get("nolg")) else None
            if DEBUG == "G": self.emit(stamp())
            if not OPT.get("nobar"): self.emit(barrier())
            if DEBUG == "F": self.emit(stamp())
            e.done_bar = True
            activate(e, g)
        def activate(e, g):
            for q in e.fill:
                if q.start < g: q.start = g
                if q.isdma and state["dq"] is not None:
                    if not state["dq"].items: state["dq"].start = q.start
                    state["dq"].items += q.items
                    state["dq"].end = max(state["dq"].end, q.end)
                elif q.isdma:
                    state["dq"] = q; fq.insert(0, q)
                else: fq.append(q)
        def wait_for(j):
            idx = -1
            for i, o in enumerate(self.lq):
                if o in j.ops: idx = i
            if idx >= 0:
                self.do_wait(lgkm=min(15, len(self.lq) - 1 - idx))
                return 1
            return 0
        def fillers(g, rem, force_ok):
            for q in fq:
                if not q.items or g < q.start: continue
                left_gaps = max(1, q.end - g + 1)
                cost = sum(i.cost for i in q.items) // 4
                must = cost - (left_gaps - 1) * (q.maxper if q.maxper else OPT["capf"])
                if g >= q.end: must = cost
                if not force_ok: must = 0
                lim = q.maxper if q.maxper else 99
                took = 0
                while q.items and (took < lim or took < must):
                    it = q.items[0]
                    c = max(1, it.cost // 4)
                    if isinstance(it.tag, tuple) and it.tag and it.tag[0] == "after" and g < it.tag[1]: break
                    if took >= must and c > rem: break
                    q.items.pop(0)
                    self.emit(it); took += c; rem -= c
            return rem
        def reads(g, quota):
            nonlocal nextrd
            nl = 0
            while nextrd < n:
                j = jobs[nextrd]; e = j.epoch
                if not e.vis: break
                cnt = len(j.fixed) + len(j.reads)
                if j.want in free and (nl + cnt <= quota or (nl == 0 and quota > 0)):
                    c = issue_reads(j); nl += c
                    nextrd += 1
                    state["lastrd"] = g
                else: break
            return nl
        def try_barrier(g):
            if ahead:
                if g + 1 < n:
                    e = jobs[g + 1].epoch
                    if not e.done_bar and e.first == g + 1:
                        do_barrier(e, g); return True
                return False
            if nextrd < n:
                j = jobs[nextrd]; e = j.epoch
                lead = nextrd - (g + 1)
                if not e.done_bar and (g == -1 or g >= state["lastrd"] + OPT["bar_delay"] or lead <= 2):
                    do_barrier(e, g); return True
            return False
        def windowA(g):
            cap = OPT["wcap"]
            lead = nextrd - (g + 1)
            used = reads(g, 2 if lead >= NB - 1 else OPT["catchq"])
            fillers(g, cap - used, False)
        def windowB(g, cap):
            nx = g + 1
            used = 0
            didbar = try_barrier(g)
            if didbar: used += 2 + OPT["barcost"]
            if (not didbar or (ahead and g >= 0)) and nx < n and jobs[nx].ops: used += wait_for(jobs[nx])
            lead = nextrd - (g + 1)
            if g == -1: used += reads(g, 99)
            elif self.nq == 1: used += reads(g, OPT["postq"] if didbar else (OPT["catchq"] if lead < NB - 1 else 2))
            elif didbar or lead < NB - 2: used += reads(g, 2)
            late_wait = nx < n and any(o in self.lq for o in jobs[nx].ops)
            if late_wait: used += 1
            fillers(g, cap - used, True)
            if late_wait: wait_for(jobs[nx])
        windowB(-1, 99)
        for k in range(n):
            j = jobs[k]
            for p in j.pre:
                if callable(p): p(self)
                else: self.emit(p)
            ms = j.mk(rs("v", AFB + 4 * j.buf, 4))
            if len(ms) == 2:
                self.emit(ms[0])
                windowA(k)
                self.emit(ms[1])
                free.append(j.buf)
                windowB(k, OPT["wcap"])
            else:
                self.emit(ms[0])
                free.append(j.buf)
                windowB(k, 6)
        for q in fq:
            while q.items: self.emit(q.items.pop(0))

def dma_KVs(P, kind, n, tag):
    K = kind == "K"
    b = (KBASE if K else VBASE) + ((n % 16) % NKV) * TSLOT
    p1, p2, srd, pat, M = (S_KP, S_KP2, S_SRDK, V_DK, S_MK) if K else (S_VP, S_VP2, S_SRDV, V_DV, S_MV)
    L = [salu("s_add_u32", "m0", f"s{M}", b)]
    if OPT.get("rot", 0):
        rt, rh = (S_KT, S_KH) if K else (S_VT, S_VH)
        L.append(salu("s_add_u32", f"s{rt}", f"s{rt}", 8192))
        L.append(salu("s_and_b32", f"s{rt}", f"s{rt}", 0x1ffff))
        prev = P.ptr[kind + "3"] // 8192
        P.ptr[kind + "3"] = n * 8192
        assert n == prev + 1, (kind, n, prev)
        if n % 16 == 0 and not P.first_tile.get(kind, True): L.append(salu("s_add_u32", f"s{rh}", f"s{rh}", 131072))
        P.first_tile[kind] = False
        L.append(salu("s_add_u32", f"s{p1}", f"s{rt}", f"s{rh}"))
        L.append(salu("s_add_u32", f"s{p2}", f"s{p1}", (-896) & 0xffffffff))
    else:
        L += P.move_ptr(kind + "3", n * 8192, sregs=(p1, p2))
    L.append(tagged(dma(f"v{pat}", rs("s", srd, 4), f"s{p1}", 0, nt=True), tag))
    L.append(tagged(dma(f"v{pat}", rs("s", srd, 4), f"s{p2}", 1024, nt=True), tag))
    return L
def o_tile_info(z):
    s = (z % 16) >> 2
    starts = [0, 2, 4, 6, 9]
    q = z & 3
    return s, starts[q], starts[q + 1]
def dma_O(P, z, tag):
    s, c0, c1 = o_tile_info(z)
    hd = z // 16
    b = WBASE + oslot(z)
    L = []
    for cg in range(c0, c1):
        L.append(salu("s_add_u32", "m0", f"s{S_MO}", b + (cg - c0) * OGRP))
        mv = P.move_ptr("O", (hd * 128 + 32 * s) * 1152 + cg * 128, sregs=(S_C,))
        L += mv
        L.append(tagged(dma(f"v{V_DO}", rs("s", S_SRD2, 4), f"s{S_C}", 0, nt=bool(OPT.get("wont", 0))), tag))
    return L
def pf_wq():
    if not OPT["pf"]: return []
    return [tagged(bload(1, "v0", f"v{V_D[2]}", rs("s", S_PFQ, 4), f"s{S_PFQO}", 0), ("pf", 0)),
            salu("s_add_u32", f"s{S_PFQO}", f"s{S_PFQO}", 256)]
def pf_wo():
    if not OPT["pf"]: return []
    return [tagged(bload(1, "v0", f"v{V_PFO}", rs("s", S_SRD2, 4), f"s{S_PFOO}", 0), ("pf", 0)),
            salu("s_add_u32", f"s{S_PFOO}", f"s{S_PFOO}", 128 * 1152)]

def q4acc(h, s, t, qt, nq):
    return (h * 8 + s * 2 + t) * nq * 4 + qt * 4
def xslot4(p): return (p % 2) * XSLOT
def dma_WQ4(P, eps, tag):
    st, h = eps // 4, eps % 4
    b = (eps % 8) * TSLOT
    L = [salu("s_add_u32", "m0", f"s{S_MV}", b)]
    L += P.move_ptr("Q", h * 256 + st * 262144, sregs=(S_A, S_A2))
    L.append(tagged(dma(f"v{V_DQ}", rs("s", S_SRD0, 4), f"s{S_A}", 0), tag))
    L.append(tagged(dma(f"v{V_DQ}", rs("s", S_SRD0, 4), f"s{S_A2}", 1024), tag))
    return L
def dma_X4(P, p, tag):
    b = WBASE + xslot4(p)
    L = [salu("s_add_u32", "m0", f"s{S_MX}", b)]
    L += P.move_ptr("X", p * 128, sregs=(S_B2,))
    for k in range(4):
        L.append(tagged(dma(f"v{V_DX[k]}", rs("s", S_SRD1, 4), f"s{S_B2}", 1088 * k), tag))
    return L

def phase_Q4(P):
    role, nq = P.role, P.nq
    jobs = []
    for m in range(36):
        st = m // 2
        needs = [("Q", 2 * m), ("Q", 2 * m + 1)] + ([("X", st >> 1)] if m % 4 == 0 else [])
        e = Epoch(f"Q{m}", needs)
        xb = V_S[0] + 8 * (st & 1)
        for hh in range(2):
            eps = 2 * m + hh
            h = eps % 4
            first = (h == 0)
            for s in range(4):
                for t in range(2):
                    base = (eps % 8) * TSLOT + (s >> 1) * 1024 + 8 * t
                    addr = f"v{V_T[s & 1]}"
                    reads = [("tr", addr, base), ("tr", addr, base + 512)]
                    fixed = []
                    if first:
                        fixed = [("b128", rs("v", xb + 4 * qt, 4), f"v{V_X}", xslot4(st >> 1) + (st & 1) * 64 + qt * 2176) for qt in range(nq)]
                        first = False
                    def mk(a, s=s, t=t, h=h, xb=xb):
                        L = []
                        for qt in range(nq):
                            acc = rs("a", q4acc(h, s, t, qt, nq), 4)
                            L.append(mfma16(acc, a, rs("v", xb + 4 * qt, 4), acc))
                        return L
                    jobs.append(Job(e, mk, reads, fixed))
        f = 16 * m
        d = []
        if m >= 1:
            d += dma_WQ4(P, 2 * (m + 3), ("Q", 2 * (m + 3))) + dma_WQ4(P, 2 * (m + 3) + 1, ("Q", 2 * (m + 3) + 1))
        if m % 4 == 0 and m >= 4: d += dma_X4(P, m // 4 + 1, ("X", m // 4 + 1))
        if d: e.fill.append(FillQ(d, f - 1, f + 10, isdma=True))
    P.run_stream(jobs, NB=8, AFB=V_OACC, ahead=True)

def q4_finish(P):
    role, nq = P.role, P.nq
    P.do_wait(vm=0, lgkm=0)
    P.emit(barrier())
    for kind, n in (("K", 0), ("K", 1), ("V", 0), ("K", 2), ("V", 1), ("K", 3)):
        P.emit(dma_KVs(P, kind, n, (kind, n)))
    P.emit(valu("v_mov_b32", f"v{V_DO}", f"v{V_DX[0] + 8}"))
    for z in range(3): P.emit(dma_O(P, z, ("O", z)))
    P.emit(nop(7))
    T = V_OACC
    v = V_TMP[0]
    P.emit(valu("v_mbcnt_lo_u32_b32", f"v{v}", -1, 0))
    P.emit(valu("v_mbcnt_hi_u32_b32", f"v{v}", -1, f"v{v}"))
    for h in range(4):
        dstbase = V_QF if h == 0 else V_OF
        for s in range(4):
            for qt in range(nq):
                for t in range(2):
                    a = q4acc(h, s, t, qt, nq)
                    tb = T + ((s * 2 + qt) * 2 + t) * 4
                    for r in range(4): P.emit(valu("v_accvgpr_read_b32", f"v{tb + r}", f"a{a + r}"))
                    for r in range(4): P.emit(valu("v_accvgpr_write_b32", f"a{a + r}", 0))
                    for r in range(0, 4, 2):
                        P.emit(valu("v_pk_mul_f32", rs("v", tb + r, 2), rs("v", tb + r, 2), rs("s", S_CSC2, 2)))
                    for hh in range(2):
                        P.emit(valu("v_cvt_pk_bf16_f32", f"v{dstbase + (s * 2 + qt) * 4 + 2 * t + hh}", f"v{tb + 2 * hh}", f"v{tb + 2 * hh + 1}"))
        if h > 0:
            for s in range(4):
                for qt in range(nq):
                    fr = s * 2 + qt
                    qsf = {0: "", 1: " nt", 2: " sc1", 3: " sc0 sc1"}[OPT.get("qst", 0)]
                    P.emit(bstore(4, rs("v", V_OF + fr * 4, 4), f"v{V_QL}", rs("s", S_SRDQ, 4), f"s{S_QFO}", (fr % 4) * 1024, flags=qsf) if fr < 4 else
                           bstore(4, rs("v", V_OF + fr * 4, 4), f"v{V_QL}", rs("s", S_SRDQ, 4), f"s{S_T}", (fr % 4) * 1024, flags=qsf))
            P.emit(salu("s_add_u32", f"s{S_QFO}", f"s{S_QFO}", 8192))
            P.emit(salu("s_add_u32", f"s{S_T}", f"s{S_T}", 8192))
    if role == "W":
        for r in range(128, 144): P.emit(valu("v_accvgpr_write_b32", f"a{r}", 0))
    else:
        for r in range(32): P.emit(valu("v_mov_b32", f"v{V_OUTX + r}", 0))
    if OPT.get("fwait", 0): P.do_wait(vm=0)
    else: P.emit(nop(3))
    for r in range(32): P.emit(valu("v_mov_b32", f"v{V_OF + r}", 0))
    P.emit(salu("s_mov_b32", f"s{S_QFO}", 0))
    P.emit(salu("s_movk_i32", f"s{S_T}", 4096))

def qf_reload(P):
    L = []
    for s in range(4):
        for qt in range(P.nq):
            fr = s * 2 + qt
            so = S_QFO if fr < 4 else S_T
            L.append(tagged(bload(4, rs("v", V_QF + fr * 4, 4), f"v{V_QL}", rs("s", S_SRDQ, 4), f"s{so}", (fr % 4) * 1024, flags={0: "", 1: " nt", 2: " sc1"}[OPT.get("qld", 0)]), ("QF", 1)))
    L.append(salu("s_add_u32", f"s{S_QFO}", f"s{S_QFO}", 8192))
    L.append(salu("s_add_u32", f"s{S_T}", f"s{S_T}", 8192))
    return L

class Ctx:
    def __init__(self): self.slow = {}

def xlane_reduce(op, reg, tmp):
    L = []
    L.append(valu("v_mov_b32", f"v{tmp}", f"v{reg}"))
    L.append(nop(1))
    L.append(valu("v_permlane32_swap_b32", f"v{reg}", f"v{tmp}"))
    L.append(valu(op, f"v{reg}", f"v{reg}", f"v{tmp}"))
    L.append(valu("v_mov_b32", f"v{tmp}", f"v{reg}"))
    L.append(nop(1))
    L.append(valu("v_permlane16_swap_b32", f"v{reg}", f"v{tmp}"))
    L.append(valu(op, f"v{reg}", f"v{reg}", f"v{tmp}"))
    return L

def max8(S, dst, T):
    return [valu("v_max3_f32", f"v{dst}", f"v{S}", f"v{S+1}", f"v{S+2}"),
            valu("v_max3_f32", f"v{T}", f"v{S+3}", f"v{S+4}", f"v{S+5}"),
            valu("v_max3_f32", f"v{dst}", f"v{dst}", f"v{S+6}", f"v{S+7}"),
            valu("v_max_f32", f"v{dst}", f"v{dst}", f"v{T}")]

def exp_items(S, nq, P_after):
    T = V_TMP
    L = []
    n = 0
    for qt in range(nq):
        for e in range(4):
            a = S + qt * 8 + 2 * e
            t0, t1 = T[1 + (2 * n) % 4], T[1 + (2 * n + 1) % 4]; n += 1
            L.append(valu("v_exp_f32", f"v{t0}", f"v{a}"))
            L.append(valu("v_exp_f32", f"v{t1}", f"v{a + 1}"))
            if e == 0: L.append(valu("v_mov_b32", f"v{V_TS[qt]}", f"v{t0}"))
            else: L.append(valu("v_add_f32", f"v{V_TS[qt]}", f"v{V_TS[qt]}", f"v{t0}"))
            L.append(valu("v_add_f32", f"v{V_TS[qt]}", f"v{V_TS[qt]}", f"v{t1}"))
            cv = valu("v_cvt_pk_bf16_f32", f"v{V_P + 4 * qt + e}", f"v{t0}", f"v{t1}")
            if P_after is not None: cv.tag = ("after", P_after)
            L.append(cv)
    return L

def first_tile_items(nq):
    S = V_S[0]; T = V_TMP
    L = []
    for qt in range(nq):
        L += max8(S + 8 * qt, T[0], T[1])
        L += xlane_reduce("v_max_f32", T[0], T[1])
        for r in range(4): L.append(valu("v_sub_f32", f"v{V_NEGM + 4 * qt + r}", 0, f"v{T[0]}"))
        for r in range(8): L.append(valu("v_sub_f32", f"v{S + 8 * qt + r}", f"v{S + 8 * qt + r}", f"v{T[0]}"))
        L.append(valu("v_mov_b32", f"v{V_L[qt]}", 0))
    return L

def make_check(ctx, i, name, nq):
    uid = f"{name}{i}"
    def f(P):
        if i > 0:
            if nq == 2:
                P.emit(valu("v_max_f32", f"v{V_TMP[0]}", f"v{V_TS[0]}", f"v{V_TS[1]}"))
                P.out.pop()
                P.emit(valu("v_add_f32", f"v{V_TMP[0]}", f"v{V_TS[0]}", f"v{V_TS[1]}"))
                src_ = V_TMP[0]
            else: src_ = V_TS[0]
            P.emit(valu("v_cmp_nle_f32", rs("s", S_CMP, 2), f"v{src_}", f"s{S_THR}"))
            P.emit(salu("s_cmp_lg_u64", None, rs("s", S_CMP, 2), 0))
            if not OPT.get("noslow"): P.emit(raw(f"s_cbranch_scc1 L_tr_{uid}", "branch"))
            P.emit(label(f"L_back_{uid}"))
        for qt in range(nq): P.emit(valu("v_add_f32", f"v{V_L[qt]}", f"v{V_L[qt]}", f"v{V_TS[qt]}"))
        if i == 0: P.emit(nop(0))
    if i > 0: ctx.slow[uid] = i & 1
    return f

def slow_routine(par, nq, lab):
    S = V_S[par]; S2 = V_S[1 - par]; T = V_TMP
    B = [label(lab), nop(7), nop(7)]
    for qt in range(nq):
        B += max8(S + 8 * qt, T[0], T[1])
        B += xlane_reduce("v_max_f32", T[0], T[1])
        B.append(valu("v_max_f32", f"v{T[0]}", 0, f"v{T[0]}"))
        B.append(valu("v_sub_f32", f"v{T[1]}", 0, f"v{T[0]}"))
        B.append(valu("v_exp_f32", f"v{T[1]}", f"v{T[1]}"))
        for r in range(4): B.append(valu("v_sub_f32", f"v{V_NEGM + 4 * qt + r}", f"v{V_NEGM + 4 * qt + r}", f"v{T[0]}"))
        B.append(valu("v_mul_f32", f"v{V_L[qt]}", f"v{V_L[qt]}", f"v{T[1]}"))
        for s in range(4):
            for t in range(2):
                for r in range(4):
                    a = oacc(s, t, qt) + r
                    B.append(valu("v_mul_f32", f"v{a}", f"v{a}", f"v{T[1]}"))
        for r in range(8):
            B.append(valu("v_sub_f32", f"v{S + 8 * qt + r}", f"v{S + 8 * qt + r}", f"v{T[0]}"))
            B.append(valu("v_sub_f32", f"v{S2 + 8 * qt + r}", f"v{S2 + 8 * qt + r}", f"v{T[0]}"))
    B += exp_items(S, nq, None)
    B.append(nop(1))
    B.append(raw(f"s_setpc_b64 s[{S_RET}:{S_RET+1}]", "branch"))
    return B
def trampoline(uid, slowlab):
    return [label(f"L_tr_{uid}"),
            raw(f"s_getpc_b64 s[{S_RET}:{S_RET+1}]", "salu"),
            label(f"L_pc_{uid}"),
            raw(f"s_add_u32 s{S_RET}, s{S_RET}, L_back_{uid}-L_pc_{uid}", "salu"),
            raw(f"s_addc_u32 s{S_RET+1}, s{S_RET+1}, -1", "salu"),
            raw(f"s_branch {slowlab}", "branch")]

def qk_jobs(e, i, nq):
    jobs = []
    S = V_S[i & 1]
    slot = i % NKV
    for kt in range(2):
        for s in range(4):
            def mk(a, kt=kt, s=s):
                L = []
                for qt in range(nq):
                    d = rs("v", S + qt * 8 + kt * 4, 4)
                    c = d if s > 0 else ("0" if i == 0 else rs("v", V_NEGM + 4 * qt, 4))
                    L.append(mfma16(d, a, rs("v", V_QF + (s * 2 + qt) * 4, 4), c))
                return L
            jobs.append(Job(e, mk, [("b128", f"v{V_K}", slot * TSLOT + (s >> 1) * 1024 + (s & 1) * 64 + kt * 512)]))
    return jobs
def pv_jobs(e, i, nq):
    jobs = []
    slot = i % NKV
    for s in range(4):
        for t in range(2):
            base = VBASE + slot * TSLOT + (s >> 1) * 1024 + 8 * t
            addr = f"v{V_T[s & 1]}"
            def mk(a, s=s, t=t):
                L = []
                for qt in range(nq):
                    acc = rs("v", oacc(s, t, qt), 4)
                    L.append(mfma16(acc, a, rs("v", V_P + 4 * qt, 4), "0" if i == 0 else acc))
                return L
            jobs.append(Job(e, mk, [("tr", addr, base), ("tr", addr, base + 512)]))
    return jobs
def of_set(z, mode):
    if mode == "AO":
        if z <= 1: return 0
        if z >= 14: return 0
        return 0 if ((z - 2) % 4) < 2 else 1
    else:
        return 0
def o_jobs(e, z, nq, mode="AO"):
    jobs = []
    s, c0, c1 = o_tile_info(z)
    s = of_set(z, mode)
    for cg in range(c0, c1):
        for q4 in range(4):
            nt = 4 * cg + q4
            base = oslot(z) + (cg - c0) * OGRP + (q4 >> 1) * 64
            def mk(a, nt=nt):
                L = []
                for qt in range(nq):
                    acc = outacc(nt, qt, nq)
                    L.append(mfma16(acc, a, rs("v", V_OF + (s * 2 + qt) * 4, 4), acc))
                return L
            jobs.append(Job(e, mk, [("tr", f"v{V_W[q4 & 1]}", base), ("tr", f"v{V_W[q4 & 1]}", base + 512)]))
    return jobs

def phase_A(P, ctx, name):
    role, nq = P.role, P.nq
    jobs = []; eps = []
    e = Epoch(f"{name}pre", [("K", 0), ("QF", 0)]); eps.append(e)
    jobs += qk_jobs(e, 0, nq)
    starts = {}; qkfirst = {}; olast = {}
    for i in range(17):
        needs = []
        if i >= 1: needs.append(("V", i - 1))
        if i + 1 <= 15: needs.append(("K", i + 1))
        if i <= 15: needs.append(("O", i))
        e = Epoch(f"{name}{i}", needs); eps.append(e)
        starts[i] = len(jobs)
        if i >= 1:
            pj = pv_jobs(e, i - 1, nq)
            pj[0].pre.append(make_check(ctx, i - 1, name, nq))
            jobs += pj
        if i <= 15:
            jobs += o_jobs(e, i, nq)
            olast[i] = len(jobs) - 1
        if i + 1 <= 15:
            qkfirst[i + 1] = len(jobs)
            jobs += qk_jobs(e, i + 1, nq)
    starts[17] = len(jobs)
    for i in range(17):
        e = eps[i + 1]; f = starts[i]
        if i <= 15:
            if i == 0:
                e.fill.append(FillQ(first_tile_items(nq), f + 1, qkfirst[1] - 2))
                st = qkfirst[1] - 1
            else: st = f + 1
            pa = f + 7 if i >= 1 else None
            e.fill.append(FillQ(exp_items(V_S[i & 1], nq, pa), st, starts[i + 1] - 1))
        if i in (3, 7, 11):
            mv = [valu("v_mov_b32", f"v{V_OF + r}", f"v{V_OF + 8 + r}") for r in range(4 * nq if nq == 1 else 8)]
            e.fill.append(FillQ(mv, olast[i] + 1, starts[i + 1] + 6))
        if i in (5, 9, 13):
            mv = [valu("v_mov_b32", f"v{V_OF + 8 + r}", f"v{V_OF + 16 + r}") for r in range(4 * nq if nq == 1 else 8)]
            mv += [valu("v_mov_b32", f"v{V_OF + 16 + r}", f"v{V_OF + 24 + r}") for r in range(4 * nq if nq == 1 else 8)]
            e.fill.append(FillQ(mv, olast[i] + 1, starts[i + 1] + 6))
        d = []
        if i <= 15:
            d += dma_O(P, i + 3, ("O", i + 3))
            d += dma_KVs(P, "K", i + 4, ("K", i + 4))
            d += dma_KVs(P, "V", i + 2, ("V", i + 2))
        if i == 1: d += pf_wo()
        if i == 15: d += qf_reload(P)
        if d:
            late = OPT.get("late", 1)
            endg = starts[i + 1] - 9
            st0 = max(f - 8, endg - OPT.get("dmawin", 8)) if late else f - 8
            e.fill.insert(0, FillQ(d, st0, endg, isdma=True))
    P.run_stream(jobs, ahead=bool(OPT.get("aheadA", 0)))
    def rb(t):
        if isinstance(t, tuple) and t[0] in ("K", "V", "O") and t[1] >= 16: return (t[0], t[1] - 16)
        if isinstance(t, tuple) and t[0] == "QF" and t[1] == 1: return ("QF", 0)
        return ("old", 0)
    P.vq = [rb(t) for t in P.vq]
    P.issued = set(rb(t) for t in P.issued)
    P.ptr["K3"] -= 16 * 8192; P.ptr["V3"] -= 16 * 8192
    P.ptr["O"] -= 128 * 1152
    T = V_TMP
    P.emit(nop(3))
    for qt in range(nq):
        P.emit(xlane_reduce("v_add_f32", V_L[qt], T[0]))
        P.emit(valu("v_rcp_f32", f"v{T[1 + qt]}", f"v{V_L[qt]}"))
    P.emit(nop(3))
    for s in range(4):
        for qt in range(nq):
            for t in range(2):
                a = oacc(s, t, qt)
                for r in range(4):
                    P.emit(valu("v_mul_f32", f"v{a + r}", f"v{a + r}", f"v{T[1 + qt]}"))
                for h in range(2):
                    P.emit(valu("v_cvt_pk_bf16_f32", f"v{V_OF + (s * 2 + qt) * 4 + 2 * t + h}", f"v{a + 2 * h}", f"v{a + 2 * h + 1}"))
    P.emit(nop(1))

def _olast():
    s, c0, c1 = o_tile_info(15)
    return (32 * s) * 1152 + (c1 - 1) * 128
O_LAST = _olast()
def _o2():
    s, c0, c1 = o_tile_info(2)
    return (32 * s) * 1152 + (c1 - 1) * 128
O2_LAST = _o2()

def phase_O(P):
    role, nq = P.role, P.nq
    jobs = []
    for z in range(16):
        e = Epoch(f"O{z}", [("O", z)])
        f = len(jobs)
        jobs += o_jobs(e, z, nq, "O")
        if z % 4 == 0 and z > 0:
            mv = [valu("v_mov_b32", f"v{V_OF + r}", f"v{V_OF + 8 + r}") for r in range(24)]
            jobs[f].pre += mv + [nop(1)]
        e.fill.append(FillQ(dma_O(P, z + 3, ("O", z + 3)), f - 8, f + 2, isdma=True))
    P.run_stream(jobs)
    P.emit(nop(7))
    T = V_S[0]
    v = V_TMP[0]
    P.emit(valu("v_mbcnt_lo_u32_b32", f"v{v}", -1, 0))
    P.emit(valu("v_mbcnt_hi_u32_b32", f"v{v}", -1, f"v{v}"))
    P.emit(valu("v_lshlrev_b32", f"v{v}", 4, f"v{v}"))
    P.emit(salu("s_mul_i32", f"s{S_T}", f"s{S_W}", 2 * 18 * 1024))
    stf = {0: "", 1: " nt", 2: " sc1", 3: " sc0 sc1", 4: " sc0 sc1 nt"}[OPT.get("stnt", 2 if OPT.get("fuse", 1) else 0)]
    cnt = 0
    for qt in range(nq):
        for ntp in range(18):
            tb = T + 16 * (cnt % 2)
            srcs = []
            for h in range(2):
                a = outacc(2 * ntp + h, qt, nq)
                regs = parse_regs(a)
                if regs[0][0] == "a":
                    for r in range(4):
                        P.emit(valu("v_accvgpr_read_b32", f"v{tb + 4 * h + r}", f"a{regs[r][1]}"))
                    srcs.append(tb + 4 * h)
                else: srcs.append(regs[0][1])
            for h in range(2):
                for d in range(2):
                    P.emit(valu("v_cvt_pk_bf16_f32", f"v{tb + 8 + 2 * h + d}", f"v{srcs[h] + 2 * d}", f"v{srcs[h] + 2 * d + 1}"))
            off = cnt * 1024
            if off % 4096 == 0 and off > 0: P.emit(salu("s_add_u32", f"s{S_T}", f"s{S_T}", 4096))
            if not OPT.get("nost"): P.emit(bstore(4, rs("v", tb + 8, 4), f"v{v}", rs("s", S_SRDP, 4), f"s{S_T}", off % 4096, flags=stf))
            cnt += 1

def prologue_common():
    L = []
    A = L.append
    A(raw("s_cmp_ge_u32 s2, 256", "salu", wr=[("scc",0)]))
    A(raw("s_cbranch_scc1 L_end", "branch"))
    A(raw("s_load_dwordx16 s[4:19], s[0:1], 0", "smem"))
    A(raw("s_load_dwordx4 s[20:23], s[0:1], 64", "smem"))
    A(raw("s_load_dwordx2 s[24:25], s[0:1], 96", "smem"))
    A(valu("v_lshrrev_b32", "v1", 6, "v0"))
    A(valu("v_and_b32", f"v{V_TMP[0]}", 63, "v0"))
    A(valu("v_readfirstlane_b32", f"s{S_W}", "v1"))
    A(salu("s_and_b32", "s30", "s2", 7))
    A(salu("s_lshr_b32", "s31", "s2", 3))
    A(salu("s_lshr_b32", "s32", "s30", 2))
    A(salu("s_and_b32", "s33", "s30", 3))
    A(salu("s_lshl_b32", "s33", "s33", 1))
    A(salu("s_and_b32", "s34", "s31", 1))
    A(salu("s_add_u32", "s33", "s33", "s34"))
    A(salu("s_lshr_b32", "s34", "s31", 1))
    A(salu("s_mov_b32", f"s{S_R}", 0))
    A(raw("s_waitcnt lgkmcnt(0)", "wait"))
    A(salu("s_cmp_eq_u32", None, "s32", 0))
    for d, a, b in ((4, 4, 14), (6, 6, 16), (8, 8, 18), (10, 10, 20), (12, 12, 22)):
        A(salu("s_cselect_b32", f"s{d}", f"s{a}", f"s{b}"))
        A(salu("s_cselect_b32", f"s{d+1}", f"s{a+1}", f"s{b+1}"))
    return L

def patterns_common():
    L = []
    A = L.append
    A(salu("s_mov_b32", f"s{S_CSC}", hex(f32bits(SCALE))))
    A(salu("s_mov_b32", f"s{S_THR}", hex(f32bits(4096.0))))
    A(salu("s_mul_i32", "s35", "s2", PSZ))
    A(salu("s_add_u32", f"s{S_SRDP}", "s24", "s35"))
    A(salu("s_addc_u32", f"s{S_SRDP+1}", "s25", 0))
    A(salu("s_mov_b32", f"s{S_SRDP+2}", PSZ))
    A(salu("s_mov_b32", f"s{S_SRDP+3}", "0x00020000"))
    A(salu("s_mov_b32", f"s{S_CSC2}", hex(f32bits(SCALE))))
    A(salu("s_mov_b32", f"s{S_CSC2+1}", hex(f32bits(SCALE))))
    A(salu("s_lshl_b32", "s35", "s2", 2))
    A(salu("s_add_u32", "s35", "s35", f"s{S_W}"))
    A(salu("s_mul_i32", "s35", "s35", 3 * 8192))
    A(salu("s_add_u32", "s35", "s35", QOFF))
    A(salu("s_add_u32", f"s{S_SRDQ}", "s24", "s35"))
    A(salu("s_addc_u32", f"s{S_SRDQ+1}", "s25", 0))
    A(salu("s_movk_i32", f"s{S_SRDQ+2}", 3 * 8192))
    A(salu("s_mov_b32", f"s{S_SRDQ+3}", "0x00020000"))
    A(salu("s_mov_b32", f"s{S_QFO}", 0))
    A(salu("s_movk_i32", f"s{S_T}", 4096))
    l, g, t1, t2, t3 = V_TMP
    A(valu("v_lshrrev_b32", f"v{g}", 4, f"v{l}"))
    A(valu("v_bfe_u32", f"v{t1}", f"v{l}", 2, 2))
    A(valu("v_and_b32", f"v{t2}", 3, f"v{l}"))
    A(salu("s_movk_i32", "s35", 2056))
    A(valu("v_mul_lo_u32", f"v{V_T[0]}", "s35", f"v{g}"))
    A(valu("v_lshl_add_u32", f"v{V_T[0]}", f"v{t1}", 7, f"v{V_T[0]}"))
    A(valu("v_lshrrev_b32", f"v{t3}", 1, f"v{t1}"))
    A(valu("v_lshl_add_u32", f"v{V_T[0]}", f"v{t3}", 6, f"v{V_T[0]}"))
    A(valu("v_lshl_add_u32", f"v{V_T[0]}", f"v{t2}", 4, f"v{V_T[0]}"))
    A(valu("v_xor_b32", f"v{t3}", 1, f"v{t3}"))
    A(valu("v_mul_lo_u32", f"v{V_T[1]}", "s35", f"v{g}"))
    A(valu("v_lshl_add_u32", f"v{V_T[1]}", f"v{t1}", 7, f"v{V_T[1]}"))
    A(valu("v_lshl_add_u32", f"v{V_T[1]}", f"v{t3}", 6, f"v{V_T[1]}"))
    A(valu("v_lshl_add_u32", f"v{V_T[1]}", f"v{t2}", 4, f"v{V_T[1]}"))
    A(salu("s_movk_i32", "s35", 1088))
    A(valu("v_mul_lo_u32", f"v{V_W[0]}", "s35", f"v{g}"))
    A(valu("v_lshl_add_u32", f"v{V_W[0]}", f"v{t1}", 7, f"v{V_W[0]}"))
    A(valu("v_lshrrev_b32", f"v{t3}", 1, f"v{t1}"))
    A(valu("v_lshl_add_u32", f"v{V_W[0]}", f"v{t3}", 5, f"v{V_W[0]}"))
    A(valu("v_lshl_add_u32", f"v{V_W[0]}", f"v{t2}", 3, f"v{V_W[0]}"))
    A(valu("v_add_u32", f"v{V_W[0]}", WBASE, f"v{V_W[0]}"))
    A(valu("v_xor_b32", f"v{V_W[1]}", 32, f"v{V_W[0]}"))
    A(valu("v_lshlrev_b32", f"v{V_K}", 11, f"v{t1}"))
    A(valu("v_lshrrev_b32", f"v{t3}", 1, f"v{t1}"))
    A(valu("v_lshl_add_u32", f"v{V_K}", f"v{t3}", 6, f"v{V_K}"))
    A(valu("v_lshl_add_u32", f"v{V_K}", f"v{t2}", 7, f"v{V_K}"))
    A(valu("v_and_b32", f"v{t3}", 2, f"v{t2}"))
    A(valu("v_xor_b32", f"v{t3}", f"v{t3}", f"v{g}"))
    A(valu("v_lshl_add_u32", f"v{V_K}", f"v{t3}", 4, f"v{V_K}"))
    A(valu("v_add_u32", f"v{V_K}", KBASE, f"v{V_K}"))
    A(valu("v_and_b32", f"v{t2}", 15, f"v{l}"))
    A(valu("v_lshrrev_b32", f"v{t1}", 3, f"v{t2}"))
    A(salu("s_lshl_b32", "s36", f"s{S_W}", 2))
    A(valu("v_add_u32", f"v{t1}", "s36", f"v{t1}"))
    A(valu("v_mul_lo_u32", f"v{V_X}", "s35", f"v{t1}"))
    A(valu("v_and_b32", f"v{t3}", 7, f"v{t2}"))
    A(valu("v_lshl_add_u32", f"v{V_X}", f"v{t3}", 7, f"v{V_X}"))
    A(valu("v_and_b32", f"v{t3}", 2, f"v{t2}"))
    A(valu("v_xor_b32", f"v{t3}", f"v{t3}", f"v{g}"))
    A(valu("v_lshl_add_u32", f"v{V_X}", f"v{t3}", 4, f"v{V_X}"))
    A(valu("v_add_u32", f"v{V_X}", WBASE + XREG, f"v{V_X}"))
    return L

BIAS = 4096
def prologue_role(P):
    role = P.role
    A = P.emit
    l, g, t1, t2, t3 = V_TMP
    A(valu("v_lshrrev_b32", f"v{t1}", 3, f"v{l}"))
    A(valu("v_and_b32", f"v{t2}", 7, f"v{l}"))
    A(salu("s_lshl_b32", "s35", "s33", 10))
    A(salu("s_add_u32", f"s{S_SRD0}", "s10", "s35"))
    A(salu("s_addc_u32", f"s{S_SRD0+1}", "s11", 0))
    A(salu("s_sub_u32", f"s{S_SRD0}", f"s{S_SRD0}", BIAS))
    A(salu("s_subb_u32", f"s{S_SRD0+1}", f"s{S_SRD0+1}", 0))
    A(salu("s_sub_u32", f"s{S_SRD0+2}", 576 * 8192 + BIAS, "s35"))
    A(salu("s_mov_b32", f"s{S_SRD0+3}", "0x00020000"))
    A(salu("s_mul_i32", "s35", "s34", 129024))
    A(salu("s_add_u32", f"s{S_SRD1}", "s4", "s35"))
    A(salu("s_addc_u32", f"s{S_SRD1+1}", "s5", 0))
    A(salu("s_mov_b32", f"s{S_SRD1+2}", 129024))
    A(salu("s_mov_b32", f"s{S_SRD1+3}", "0x00020000"))
    A(valu("v_bfe_u32", f"v{t3}", f"v{t1}", 1, 1))
    A(valu("v_lshlrev_b32", f"v{g}", 2, f"v{t3}"))
    A(valu("v_xor_b32", f"v{g}", f"v{g}", f"v{t2}"))
    A(valu("v_lshlrev_b32", f"v{g}", 4, f"v{g}"))
    A(valu("v_lshlrev_b32", f"v{t3}", 1, f"v{t3}"))
    A(valu("v_xor_b32", f"v{t3}", f"v{t3}", f"v{t2}"))
    A(valu("v_lshlrev_b32", f"v{t3}", 4, f"v{t3}"))
    A(valu("v_lshl_add_u32", f"v{V_DQ}", f"v{t1}", 13, f"v{g}"))
    A(salu("s_lshl_b32", "s35", f"s{S_W}", 16))
    A(valu("v_add_u32", f"v{V_DQ}", "s35", f"v{V_DQ}"))
    A(salu("s_lshl_b32", "s35", f"s{S_W}", 11))
    A(valu("v_lshl_add_u32", f"v{V_DV}", f"v{t1}", 8, f"v{g}"))
    A(valu("v_add_u32", f"v{V_DV}", "s35", f"v{V_DV}"))
    A(valu("v_lshl_add_u32", f"v{V_DK}", f"v{t1}", 8, f"v{t3}"))
    A(valu("v_add_u32", f"v{V_DK}", "s35", f"v{V_DK}"))
    A(salu("s_movk_i32", "s35", 1152))
    A(valu("v_mul_lo_u32", f"v{g}", "s35", f"v{t1}"))
    A(valu("v_add_u32", f"v{g}", f"v{g}", f"v{t3}"))
    A(salu("s_mul_i32", "s35", f"s{S_W}", 36864))
    for k in range(4):
        A(salu("s_add_u32", "s36", "s35", k * (9216 - 1088)))
        A(valu("v_add_u32", f"v{V_DX[k]}", "s36", f"v{g}"))
    A(salu("s_mul_i32", "s35", f"s{S_W}", 9216))
    A(valu("v_add_u32", f"v{V_DX[0] + 8}", "s35", f"v{g}"))
    A(salu("s_mul_i32", f"s{S_MV}", f"s{S_W}", 2056))
    A(salu("s_lshl_b32", f"s{S_MK}", f"s{S_W}", 11))
    A(salu("s_lshr_b32", "s35", f"s{S_W}", 1))
    A(salu("s_lshl_b32", "s35", "s35", 6))
    A(salu("s_add_u32", f"s{S_MK}", f"s{S_MK}", "s35"))
    A(salu("s_mul_i32", f"s{S_MX}", f"s{S_W}", 4352))
    A(salu("s_mul_i32", f"s{S_MO}", f"s{S_W}", 1088))
    A(salu("s_movk_i32", f"s{S_A}", BIAS))
    A(salu("s_movk_i32", f"s{S_A2}", BIAS - 896))
    A(salu("s_mov_b32", f"s{S_B2}", 0))
    P.ptr["Q"] = 0; P.ptr["X"] = 0
    A(dma_X4(P, 0, ("X", 0)))
    for n_ in range(8): A(dma_WQ4(P, n_, ("Q", n_)))
    A(dma_X4(P, 1, ("X", 1)))
    if OPT["pf"]:
        A(salu("s_mul_i32", "s35", "s34", 288))
        A(salu("s_mul_i32", "s36", f"s{S_W}", 72))
        A(salu("s_add_u32", "s35", "s35", "s36"))
        for k in range(2):
            A(valu("v_min_u32", f"v{t3}", 63 if k == 0 else 7, f"v{l}"))
            A(valu("v_add_u32", f"v{t3}", "s35", f"v{t3}"))
            A(valu("v_lshrrev_b32", f"v{g}", 3, f"v{t3}"))
            A(valu("v_lshlrev_b32", f"v{g}", 13, f"v{g}"))
            A(valu("v_and_b32", f"v{t3}", 7, f"v{t3}"))
            A(valu("v_lshl_add_u32", f"v{g}", f"v{t3}", 7, f"v{g}"))
            A(valu("v_add_u32", f"v{g}", BIAS, f"v{g}"))
            A(tagged(bload(1, "v0", f"v{g}", rs("s", S_SRD0, 4), 0, 0), ("pf", 0)))
            A(salu("s_add_u32", "s35", "s35", 64))
        A(salu("s_and_b32", "s35", "s33", 1))
        A(salu("s_lshl_b32", "s35", "s35", 2))
        A(salu("s_add_u32", "s35", "s35", f"s{S_W}"))
        A(salu("s_mul_i32", "s35", "s35", 126 * 128))
        A(valu("v_lshlrev_b32", f"v{g}", 7, f"v{l}"))
        for k in range(2):
            A(tagged(bload(1, "v0", f"v{g}", rs("s", S_SRD1, 4), "s35", 0), ("pf", 1)))
            A(salu("s_add_u32", "s35", "s35", 62 * 128))
    if OPT.get("cpf", 1):
        P.cpf_id = getattr(P, "cpf_id", role)
        A(raw("s_getpc_b64 s[36:37]", "salu"))
        A(label(f"L_cpf_{role}"))
        A(raw(f"s_sub_u32 s36, s36, L_cpf_{role}-L_code_start", "salu"))
        A(raw("s_subb_u32 s37, s37, 0", "salu"))
        A(salu("s_lshr_b32", "s35", "s2", 3))
        A(salu("s_lshl_b32", "s35", "s35", 2))
        A(salu("s_add_u32", "s35", "s35", f"s{S_W}"))
        A(salu("s_and_b32", "s35", "s35", 15))
        A(salu("s_lshl_b32", "s35", "s35", 13))
        A(valu("v_lshlrev_b32", f"v{g}", 7, f"v{l}"))
        A(valu("v_add_u32", f"v{g}", "s35", f"v{g}"))
        A(raw(f"s_mov_b32 s35, L_code_end-L_code_start-4", "salu"))
        A(valu("v_min_u32", f"v{g}", "s35", f"v{g}"))
        A(tagged(I(f"global_load_dword v0, v{g}, s[36:37]", "vmem", [("v", g), ("s", 36), ("s", 37)], [("v", 0)]), ("pf", 2)))
    A(salu("s_lshl_b32", "s35", "s34", 5))
    A(salu("s_lshl_b32", "s36", "s33", 2))
    A(salu("s_add_u32", "s35", "s35", "s36"))
    A(salu("s_lshl_b32", "s36", "s35", 17))
    A(salu("s_lshr_b32", "s37", "s35", 15))
    for srd, p in ((S_SRDK, 6), (S_SRDV, 8)):
        A(salu("s_add_u32", f"s{srd}", f"s{p}", "s36"))
        A(salu("s_addc_u32", f"s{srd+1}", f"s{p+1}", "s37"))
        A(salu("s_sub_u32", f"s{srd}", f"s{srd}", BIAS))
        A(salu("s_subb_u32", f"s{srd+1}", f"s{srd+1}", 0))
        A(salu("s_mov_b32", f"s{srd+2}", 524288 + BIAS))
        A(salu("s_mov_b32", f"s{srd+3}", "0x00020000"))
    A(salu("s_movk_i32", f"s{S_KP}", BIAS)); A(salu("s_movk_i32", f"s{S_KP2}", BIAS - 896))
    A(salu("s_movk_i32", f"s{S_VP}", BIAS)); A(salu("s_movk_i32", f"s{S_VP2}", BIAS - 896))
    P.ptr["K3"] = 0; P.ptr["V3"] = 0
    if OPT.get("rot", 0):
        A(salu("s_lshr_b32", "s35", "s2", 3))
        A(salu("s_add_u32", "s35", "s35", "s2"))
        A(salu("s_add_u32", "s35", "s35", 15))
        A(salu("s_and_b32", "s35", "s35", 15))
        A(salu("s_lshl_b32", f"s{S_KT}", "s35", 13))
        A(salu("s_mov_b32", f"s{S_VT}", f"s{S_KT}"))
        A(salu("s_movk_i32", f"s{S_KH}", BIAS))
        A(salu("s_movk_i32", f"s{S_VH}", BIAS))
        P.ptr["K3"] = -8192; P.ptr["V3"] = -8192
    A(salu("s_mul_i32", "s35", "s33", 512 * 1152))
    A(salu("s_add_u32", f"s{S_SRD2}", "s12", "s35"))
    A(salu("s_addc_u32", f"s{S_SRD2+1}", "s13", 0))
    A(salu("s_mov_b32", f"s{S_SRD2+2}", 512 * 1152))
    A(salu("s_mov_b32", f"s{S_SRD2+3}", "0x00020000"))
    A(salu("s_mul_i32", "s35", "s34", 72))
    A(salu("s_mul_i32", "s36", f"s{S_W}", 18))
    A(salu("s_add_u32", "s35", "s35", "s36"))
    A(valu("v_min_u32", f"v{t3}", 17, f"v{l}"))
    A(valu("v_add_u32", f"v{t3}", "s35", f"v{t3}"))
    A(valu("v_lshlrev_b32", f"v{V_PFO}", 7, f"v{t3}"))
    A(salu("s_mov_b32", f"s{S_PFOO}", 0))
    A(salu("s_mov_b32", f"s{S_C}", (-147456) & 0xffffffff))
    P.ptr["O"] = 0
    A(valu("v_lshlrev_b32", f"v{V_QL}", 4, f"v{l}"))
    A(patterns_common())
    nacc = 256 if role == "C" else 128
    for r in range(nacc): A(valu("v_accvgpr_write_b32", f"a{r}", 0))

def build_role(role, ctx):
    P = Prog(role)
    segs = {}
    def cut(name):
        segs.setdefault(name, []).append(P.out); P.out = []
    prologue_role(P); cut("pro")
    phase_Q4(P); cut("Q")
    q4_finish(P)
    for t in [("QF", 0)]: P.issued.add(t)
    cut("F")
    for r in range(4):
        phase_A(P, ctx, f"{role}B"); cut("AO")
    phase_O(P); cut("O")
    return segs

fold_id = [0]
def norm(t):
    t = re.sub(r"vmcnt\(\d+\) ?", "", t)
    t = re.sub(r"(L_tr_|L_back_)\w+", r"\1X", t)
    return re.sub(r"(--- barrier )\w+", r"\1X", t)
def fold(seq, p):
    chunks = [[]]
    for ins in seq:
        if ins.kind == "comment" and ins.text.startswith("; --- barrier"): chunks.append([])
        chunks[-1].append(ins)
    keys = ["\n".join(norm(i.text) for i in c) for c in chunks]
    best = (0, 0); n = len(chunks)
    for a in range(n):
        k = 1
        while a + (k + 1) * p <= n and all(keys[a + k * p + r] == keys[a + r] for r in range(p)): k += 1
        if k >= 2 and k > best[1]: best = (a, k)
    a, k = best
    if k < 2:
        print("fold failed"); return seq
    out = []
    for c in chunks[:a]: out += c
    for r in range(p):
        for it in range(1, k):
            for x, y in zip(chunks[a + r], chunks[a + it * p + r]):
                if x.kind == "wait" and x.text != y.text:
                    va, la = parse_wait(x.text); vb, lb = parse_wait(y.text)
                    vs = [q for q in (va, vb) if q is not None]
                    x.text = wait(min(vs) if vs else None, la).text
    fold_id[0] += 1
    lab = f"L_loop{fold_id[0]}"
    out.append(salu("s_mov_b32", f"s{S_LOOP}", k))
    out.append(label(lab))
    for c in chunks[a:a + p]: out += c
    out.append(salu("s_sub_u32", f"s{S_LOOP}", f"s{S_LOOP}", 1))
    out.append(salu("s_cmp_lg_u32", None, f"s{S_LOOP}", 0))
    out.append(raw(f"s_cbranch_scc1 {lab}", "branch"))
    for c in chunks[a + k * p:]: out += c
    print(f"fold: {n} chunks -> loop start {a} x{k} (period {p})")
    return out

def parse_wait(t):
    vm = re.search(r"vmcnt\((\d+)\)", t); lg = re.search(r"lgkmcnt\((\d+)\)", t)
    return (int(vm.group(1)) if vm else None, int(lg.group(1)) if lg else None)
def merge_instances(insts, name):
    base = insts[0]
    for other in insts[1:]:
        assert len(other) == len(base), (name, len(other), len(base))
        for a, b in zip(base, other):
            if a.text != b.text:
                assert a.kind == "wait" and b.kind == "wait", (name, a.text, b.text)
                va, la = parse_wait(a.text); vb, lb = parse_wait(b.text)
                assert la == lb, (a.text, b.text)
                vs = [x for x in (va, vb) if x is not None]
                a.text = wait(min(vs), la).text
    return base

NRED = 32 * 7 * 18 * 64 // 256
def reduce_kernel():
    L = []
    A = L.append
    ldf = {0: "", 1: " nt", 2: " sc1", 3: " sc0 sc1"}[OPT.get("rdnt", 0)]
    A(f"s_cmp_ge_u32 s2, {NRED}")
    A("s_cbranch_scc1 L_rend")
    A("s_load_dwordx2 s[4:5], s[0:1], 96")
    A("s_load_dwordx2 s[6:7], s[0:1], 80")
    A("v_lshrrev_b32 v1, 6, v0")
    A("v_and_b32 v3, 63, v0")
    A("v_readfirstlane_b32 s12, v1")
    A("s_lshl_b32 s13, s2, 2")
    A("s_add_u32 s13, s13, s12")
    A(f"s_mul_hi_u32 s8, s13, {(2**32 + 125) // 126}")
    A("s_mul_i32 s9, s8, 126")
    A("s_sub_u32 s9, s13, s9")
    A("s_lshr_b32 s10, s8, 4")
    A("s_and_b32 s11, s8, 15")
    A(f"s_mul_hi_u32 s14, s9, {(2**32 + 17) // 18}")
    A("s_mul_i32 s15, s14, 18")
    A("s_sub_u32 s15, s9, s15")
    A("v_lshlrev_b32 v2, 4, v3")
    A("s_lshl_b32 s27, s9, 10")
    A("v_add_u32 v2, s27, v2")
    A("v_and_b32 v4, 15, v3")
    A("v_lshrrev_b32 v5, 4, v3")
    A("s_waitcnt lgkmcnt(0)")
    A("s_mov_b32 s16, s4"); A("s_mov_b32 s17, s5"); A(f"s_mov_b32 s18, {256*PSZ}"); A("s_mov_b32 s19, 0x00020000")
    A("s_mov_b32 s20, s6"); A("s_mov_b32 s21, s7"); A(f"s_mov_b32 s22, {16*112*1152*2}"); A("s_mov_b32 s23, 0x00020000")
    A("s_lshl_b32 s26, s11, 4")
    A("s_lshl_b32 s25, s10, 2")
    A("s_add_u32 s26, s26, s25")
    for j in range(8):
        A(f"s_add_u32 s24, s26, {((j & 1) << 3) | (j >> 1)}")
        A(f"s_mul_i32 s24, s24, {PSZ}")
        A(f"buffer_load_dwordx4 v[{8+4*j}:{11+4*j}], v2, s[16:19], s24 offen{ldf}")
    A("s_mul_i32 s24, s11, 112")
    A("s_lshl_b32 s25, s14, 4")
    A("s_add_u32 s24, s24, s25")
    A("v_add_u32 v4, s24, v4")
    A("s_movk_i32 s25, 2304")
    A("v_mul_lo_u32 v4, s25, v4")
    A("s_mul_i32 s24, s10, 1152")
    A("s_lshl_b32 s25, s15, 6")
    A("s_add_u32 s24, s24, s25")
    A("v_lshl_add_u32 v4, v5, 3, v4")
    A("v_add_u32 v4, s24, v4")
    for j in range(8):
        A(f"s_waitcnt vmcnt({7-j})")
        for d in range(4):
            r = 8 + 4 * j + d
            if j == 0:
                A(f"v_lshlrev_b32 v{48+2*d}, 16, v{r}")
                A(f"v_and_b32 v{48+2*d+1}, 0xffff0000, v{r}")
            else:
                A(f"v_lshlrev_b32 v40, 16, v{r}")
                A(f"v_and_b32 v41, 0xffff0000, v{r}")
                A(f"v_add_f32 v{48+2*d}, v{48+2*d}, v40")
                A(f"v_add_f32 v{48+2*d+1}, v{48+2*d+1}, v41")
    for d in range(4):
        A(f"v_cvt_pk_bf16_f32 v{56+d}, v{48+2*d}, v{48+2*d+1}")
    A("buffer_store_dwordx2 v[56:57], v4, s[20:23], 0 offen")
    A("buffer_store_dwordx2 v[58:59], v4, s[20:23], 0 offen offset:32")
    A("L_rend:")
    A("s_endpgm")
    return "\n".join(L) + "\n"

def fused_tail():
    T = []
    A = lambda t: T.append(raw(t, "raw"))
    T.append(label("L_tail"))
    A("s_waitcnt vmcnt(0)")
    A("s_barrier")
    A("s_load_dwordx2 s[4:5], s[0:1], 88")
    A("s_load_dwordx2 s[6:7], s[0:1], 80")
    A("v_mbcnt_lo_u32_b32 v1, -1, 0")
    A("v_mbcnt_hi_u32_b32 v1, -1, v1")
    A("s_lshl_b32 s12, s32, 4")
    A("s_add_u32 s12, s12, s34")
    A("s_lshl_b32 s12, s12, 2")
    A("s_waitcnt lgkmcnt(0)")
    A("s_mov_b32 s8, s4"); A("s_mov_b32 s9, s5"); A("s_movk_i32 s10, 256"); A("s_mov_b32 s11, 0x00020000")
    A(f"s_cmp_lg_u32 s{S_W}, 0")
    A("s_cbranch_scc1 L_tail_wait")
    A("v_mov_b32 v2, 1")
    A("v_mov_b32 v3, 0")
    A("v_cmp_eq_u32 vcc, 0, v1")
    A("s_and_saveexec_b64 s[14:15], vcc")
    A("buffer_atomic_add v2, v3, s[8:11], s12 offen")
    A("s_mov_b64 exec, s[14:15]")
    A("s_waitcnt vmcnt(0)")
    A("s_mov_b32 s13, 0")
    T.append(label("L_poll"))
    A("buffer_load_dword v2, v3, s[8:11], s12 offen sc1")
    A("s_waitcnt vmcnt(0)")
    A("v_readfirstlane_b32 s16, v2")
    A("s_add_u32 s13, s13, 1")
    A("s_cmp_ge_u32 s16, 8")
    A("s_cbranch_scc1 L_tail_wait")
    A("s_sleep 1")
    A("s_cmp_lt_u32 s13, 0x400000")
    A("s_cbranch_scc1 L_poll")
    T.append(label("L_tail_wait"))
    A("s_barrier")
    T += pstamp(True)
    A("s_mov_b32 s16, s24"); A("s_mov_b32 s17, s25"); A(f"s_mov_b32 s18, {256*PSZ}"); A("s_mov_b32 s19, 0x00020000")
    A("s_mov_b32 s20, s6"); A("s_mov_b32 s21, s7"); A(f"s_mov_b32 s22, {16*112*1152*2}"); A("s_mov_b32 s23, 0x00020000")
    A("v_lshlrev_b32 v2, 4, v1")
    A("v_and_b32 v4, 15, v1")
    A("v_lshrrev_b32 v5, 4, v1")
    A("s_lshl_b32 s26, s33, 4")
    A(f"s_lshl_b32 s27, s{S_W}, 2")
    A("s_add_u32 s26, s26, s27")
    A("s_lshl_b32 s28, s34, 4")
    A("s_lshl_b32 s29, s32, 2")
    A("s_add_u32 s28, s28, s29")
    for k in range(4):
        for p in range(8):
            A(f"s_add_u32 s30, s28, {((p & 1) << 3) | (p >> 1)}")
            A(f"s_mul_i32 s30, s30, {PSZ}")
            A(f"s_add_u32 s31, s26, {k}")
            A("s_lshl_b32 s31, s31, 10")
            A("s_add_u32 s30, s30, s31")
            r = 16 + (k * 8 + p) * 4
            A(f"buffer_load_dwordx4 v[{r}:{r+3}], v2, s[16:19], s30 offen sc1")
    for k in range(4):
        A(f"s_add_u32 s31, s26, {k}")
        A(f"s_mul_hi_u32 s30, s31, {(2**32 + 17) // 18}")
        A("s_mul_i32 s29, s30, 18")
        A("s_sub_u32 s29, s31, s29")
        A("s_mul_i32 s27, s34, 112")
        A("s_lshl_b32 s30, s30, 4")
        A("s_add_u32 s27, s27, s30")
        A("v_add_u32 v6, s27, v4")
        A("s_movk_i32 s27, 2304")
        A("v_mul_lo_u32 v6, s27, v6")
        A("s_mul_i32 s27, s32, 1152")
        A("s_lshl_b32 s29, s29, 6")
        A("s_add_u32 s27, s27, s29")
        A("v_lshl_add_u32 v6, v5, 3, v6")
        A("v_add_u32 v6, s27, v6")
        for p in range(8):
            A(f"s_waitcnt vmcnt({min(63, (3 - k) * 8 + (7 - p) + 2 * 0)})" if False else f"s_waitcnt vmcnt({(3 - k) * 8 + (7 - p) + 2 * k})")
            for d in range(4):
                r = 16 + (k * 8 + p) * 4 + d
                if p == 0:
                    A(f"v_lshlrev_b32 v{8+2*d}, 16, v{r}")
                    A(f"v_and_b32 v{8+2*d+1}, 0xffff0000, v{r}")
                else:
                    A(f"v_lshlrev_b32 v3, 16, v{r}")
                    A(f"v_and_b32 v7, 0xffff0000, v{r}")
                    A(f"v_add_f32 v{8+2*d}, v{8+2*d}, v3")
                    A(f"v_add_f32 v{8+2*d+1}, v{8+2*d+1}, v7")
        for d in range(4):
            A(f"v_cvt_pk_bf16_f32 v{150+4*k+d}, v{8+2*d}, v{8+2*d+1}")
        A("s_cmp_ge_u32 s31, 126")
        A(f"s_cselect_b32 s27, 0x7f000000, 0")
        A(f"buffer_store_dwordx2 v[{150+4*k}:{151+4*k}], v6, s[20:23], s27 offen")
        A(f"buffer_store_dwordx2 v[{152+4*k}:{153+4*k}], v6, s[20:23], s27 offen offset:32")
    if DEBUG == "T":
        A("s_waitcnt vmcnt(0)")
        T += pstamp(True)
    A("s_endpgm")
    return T

def dbg_dump(base, n):
    L = []
    L.append(raw("s_waitcnt vmcnt(0) lgkmcnt(0)", "wait"))
    L.append(nop(15))
    L.append(salu("s_lshl_b32", "s88", "s2", 2))
    L.append(salu("s_add_u32", "s88", "s88", f"s{S_W}"))
    L.append(salu("s_lshl_b32", "s88", "s88", 14))
    L.append(salu("s_add_u32", "s88", "s88", 64 << 20))
    L.append(salu("s_mov_b32", "s84", "s24")); L.append(salu("s_mov_b32", "s85", "s25"))
    L.append(salu("s_mov_b32", "s86", 128 << 20)); L.append(salu("s_mov_b32", "s87", "0x00020000"))
    L.append(valu("v_mbcnt_lo_u32_b32", "v15", -1, 0))
    L.append(valu("v_mbcnt_hi_u32_b32", "v15", -1, "v15"))
    L.append(valu("v_lshlrev_b32", "v15", 2, "v15"))
    for r in range(n):
        if r and r % 16 == 0: L.append(salu("s_add_u32", "s88", "s88", 4096))
        L.append(bstore(1, f"v{base + r}", "v15", "s[84:87]", "s88", (r % 16) * 256))
    L.append(raw("s_waitcnt vmcnt(0)", "wait"))
    L.append(raw("s_endpgm", "end"))
    return L

def stamp_init():
    L = []
    L.append(salu("s_lshl_b32", "s88", "s2", 2))
    L.append(salu("s_add_u32", "s88", "s88", f"s{S_W}"))
    L.append(salu("s_lshl_b32", "s88", "s88", 11 if DEBUG == "G" else (10 if DEBUG == "F" else 8)))
    L.append(salu("s_add_u32", "s88", "s88", 100 << 20))
    L.append(salu("s_mov_b32", "s84", "s24")); L.append(salu("s_mov_b32", "s85", "s25"))
    L.append(salu("s_mov_b32", "s86", 128 << 20)); L.append(salu("s_mov_b32", "s87", "0x00020000"))
    return L
def pstamp(real=False):
    return [] if DEBUG == "G" else stamp(real)
def stamp(real=False):
    if DEBUG not in ("T", "F", "G"): return []
    L = []
    L.append(raw("s_memrealtime s[96:97]" if real else "s_memtime s[96:97]", "smem"))
    L.append(raw("s_waitcnt lgkmcnt(0)", "wait"))
    L.append(valu("v_mov_b32", "v18", "s96"))
    L.append(valu("v_mov_b32", "v19", 0))
    L.append(bstore(1, "v18", "v19", "s[84:87]", "s88", 0))
    L.append(salu("s_add_u32", "s88", "s88", 4))
    return L

def main(outpath):
    ctx = Ctx()
    FUSE = OPT.get("fuse", 1)
    from gcommon import KN
    name = KN if FUSE else MAIN
    if FUSE: txt = header([(KN, (256, 1, 1), (256, 1, 1), LDS_TOTAL)])
    else: txt = header([(MAIN, (256, 1, 1), (256, 1, 1), LDS_TOTAL), (RED, (NRED, 1, 1), (256, 1, 1), 0)])
    txt += kstart(name)
    body = [label("L_code_start")]
    pro = prologue_common()
    body += pro
    body.append(raw(f"s_cmp_ge_u32 s{S_W}, 3", "salu"))
    body.append(raw("s_cbranch_scc1 L_role_W_far", "branch"))
    allprobs = []
    for role in ("C", "W"):
        segs = build_role(role, ctx)
        nq = 2 if role == "C" else 1
        Q = segs["Q"][0]
        AO = merge_instances(segs["AO"], "AO")
        seq = []
        if role == "W": seq.append(label("L_role_W"))
        if DEBUG in ("T", "F", "G"): seq += stamp_init() + pstamp(True) + pstamp()
        seq += segs["pro"][0]
        seq += pstamp()
        seq += fold(Q, OPT.get("qper", 8)) if DEBUG not in ("F", "G") else Q
        seq += pstamp()
        seq += segs["F"][0]
        seq += pstamp()
        if DEBUG == "Q": seq += dbg_dump(V_QF, 32)
        seq.append(label(f"L_head_{role}"))
        seq += fold(AO, 4) if DEBUG not in ("F", "G") else AO
        seq += pstamp()
        if DEBUG == "O": seq += dbg_dump(V_OF, 32)
        seq.append(raw(f"s_add_u32 s{S_R}, s{S_R}, 1", "salu"))
        seq.append(raw(f"s_cmp_lt_u32 s{S_R}, 4", "salu"))
        seq.append(raw(f"s_cbranch_scc1 L_head_{role}", "branch"))
        seq += fold(segs["O"][0], 4) if DEBUG not in ("F", "G") else segs["O"][0]
        seq += pstamp()
        seq.append(raw("s_waitcnt vmcnt(0)", "wait"))
        seq += pstamp() + pstamp(True)
        if FUSE: seq.append(raw("s_branch L_tail", "branch"))
        else: seq.append(raw("s_endpgm", "end"))
        used = set(re.findall(r"s_cbranch_scc1 L_tr_(\w+)", "\n".join(i.text for i in seq)))
        for uid, par in ctx.slow.items():
            if uid in used: seq += trampoline(uid, f"L_slow_{role}{par}")
        for par in (0, 1):
            B = slow_routine(par, nq, f"L_slow_{role}{par}")
            allprobs += check_hazards(B, f"slow{role}{par}")
            seq += B
        lin = pro + segs["pro"][0] + Q + segs["F"][0] + AO + AO + segs["O"][0]
        allprobs += check_hazards(lin, role)
        if role == "C":
            body.append(raw("s_branch L_role_C", "branch"))
            body.append(label("L_role_W_far"))
            body.append(raw("s_getpc_b64 s[30:31]", "salu"))
            body.append(label("L_pcw"))
            body.append(raw("s_add_u32 s30, s30, L_role_W-L_pcw", "salu"))
            body.append(raw("s_addc_u32 s31, s31, 0", "salu"))
            body.append(raw("s_setpc_b64 s[30:31]", "branch"))
            body.append(label("L_end"))
            body.append(raw("s_endpgm", "end"))
            body.append(label("L_role_C"))
        body += seq
        if role == "C" and FUSE: body += fused_tail()
    body.append(label("L_code_end"))
    body.append(raw("s_endpgm", "end"))
    txt += "\n".join(i.text for i in body) + "\n"
    if not FUSE: txt += kstart(RED) + reduce_kernel()
    txt += kdesc(name, 512, sgpr=100, accum=256)
    if not FUSE: txt += kdesc(RED, 64, sgpr=40)
    open(outpath, "w").write(txt)
    for p in allprobs[:40]: print("HAZARD", p)
    print("instructions:", sum(1 for i in body if i.kind not in ("label", "comment")), "bytes of text", len(txt))

if __name__ == "__main__":
    if len(sys.argv) > 2: DEBUG = sys.argv[2]
    for a in sys.argv[3:]:
        k, v = a.split("="); OPT[k] = int(v)
    main(sys.argv[1] if len(sys.argv) > 1 else "k8.s")
```

```python
import sys, math, struct, re
from asmlib import *
sys.path.insert(0, "work")
from gcommon import header, kstart, kdesc

OPT = {"bar_delay": 2, "budget": 4, "barcost": 1, "postq": 4, "catchq": 4, "capf": 2, "pf": 1, "NB": 7, "wcap": 2}
DEBUG = ""
MAIN = "fa_main_kernel"
RED = "fa_reduce_kernel"

NKV = 4
TSLOT = 8256
VBASE = 0
KBASE = NKV * TSLOT
WBASE = 2 * NKV * TSLOT
XSLOT = 16 * 1088
XREG = 0
QREG = 3 * XSLOT
LDS_TOTAL = WBASE + QREG + 4 * TSLOT
PSZ = 7 * 18 * 1024
OGRP = 4352
def wqslot(s): return QREG + ((s + 2) % 4) * TSLOT
def xslot(p): return XREG + (p % 3) * XSLOT
def oslot(z): return [XREG, XREG + XSLOT, QREG, XREG + 2 * XSLOT][z % 4]

V_T = [1, 2]
V_K = 3
V_X = 4
V_W = [5, 6]
V_D = [7, 8, 9, 10]
V_L = [11, 12]
V_TS = [13, 14]
V_TMP = [15, 16, 17, 18, 19]
V_NEGM = 20
V_P = 28
V_S = [36, 52]
V_OACC = 68
V_OUTX = 132
V_QF = 164
V_OF = 196
V_AF = 228
VW_Q = [148, 149, 150, 151]
VW_X = [152, 153, 154, 155]
VW_K = [156, 157]
VW_V = [158, 159, 160, 161]
V_Q = [52, 53]
V_DK, V_DV, V_PFO, V_QL = 7, 8, 9, 10
V_DO = 4
V_DQ = 54
V_DX = [55, 56, 57, 58]

S_SRD0, S_SRD1, S_SRD2, S_SRDP = 40, 44, 48, 52
S_W, S_R = 56, 58
S_A, S_B2, S_C = 60, 61, 62
S_TMP = 63
S_KM = [64, 65, 66]
S_VM = [67, 68, 69]
S_G = [76, 77, 78]
S_CMP = 70
S_THR = 73
S_CSC = 72
S_CSC2 = 26
S_T = 74
S_PFQO, S_PFOO = 79, 89
S_PFQ, S_PFO = 48, 80
S_RET = 90
S_KT, S_KH, S_VT, S_VH = 4, 5, 6, 7
S_KP2, S_VP2, S_A2 = 66, 67, 68
S_MK, S_MV, S_MX, S_MO = 69, 76, 77, 78
S_LOOP = 39
S_SRDQ = 28
S_QFO = 38
QOFF = 48 << 20
S_SRDK, S_SRDV = 80, 92
S_KP, S_VP = 64, 65

SCALE = 1.4426950408889634 / math.sqrt(128.0)
def f32bits(x): return struct.unpack("<I", struct.pack("<f", x))[0]
def tagged(ins, tag):
    ins.tag = tag
    return ins

def outacc(nt, qt, nq):
    idx = nt * nq + qt
    if nq == 1: return rs("a", 4 * idx, 4)
    if idx < 64: return rs("a", 4 * idx, 4)
    return rs("v", V_OUTX + 4 * (idx - 64), 4)
def oacc(s, t, qt): return V_OACC + ((s * 2 + t) * 2 + qt) * 4

class Job:
    def __init__(self, epoch, mk, reads, fixed=()):
        self.epoch = epoch; self.mk = mk; self.reads = reads; self.fixed = fixed
        self.ops = []; self.buf = None; self.pre = []
class Epoch:
    def __init__(self, name, needs):
        self.name = name; self.needs = needs; self.fill = []; self.first = None; self.done_bar = False
class FillQ:
    def __init__(self, items, start, end, isdma=False):
        self.items = list(items); self.start = start; self.end = end; self.isdma = isdma
        self.maxper = OPT.get("dmaper", 2) if isdma else None

class Prog:
    def __init__(self, role):
        self.role = role
        self.nq = 2 if role == "C" else 1
        self.out = []; self.vq = []; self.lq = []; self.nop_id = 0; self.issued = set()
        self.ptr = {}
        self.first_tile = {}
    def emit(self, ins):
        if isinstance(ins, list):
            for i in ins: self.emit(i)
            return
        if ins.kind == "vmem" and isinstance(ins.tag, tuple) and ((OPT.get("noO") and ins.tag[0] == "O") or (OPT.get("noKV") and ins.tag[0] in ("K", "V")) or (OPT.get("noV") and ins.tag[0] == "V")):
            self.vq.append(ins.tag); self.issued.add(ins.tag)
            return
        if ins.kind == "vmem" and (OPT.get("nodma") or (OPT.get("nokv") and self.role == "C") or (OPT.get("now") and self.role == "W")):
            self.vq.append(ins.tag); self.issued.add(ins.tag)
            return
        if ins.kind == "vmem" and ins.text.endswith("lds") and self.out and ("s", 124) in self.out[-1].wr:
            self.out.append(nop(0))
        self.out.append(ins)
        if ins.kind in ("vmem", "vstore"):
            self.vq.append(ins.tag if ins.kind == "vmem" else "store")
            self.issued.add(ins.tag)
        if ins.kind == "lds":
            self.nop_id += 1
            self.lq.append(self.nop_id)
            return self.nop_id
    def vm_wait_for(self, tags):
        last = -1
        for i, t in enumerate(self.vq):
            if t in tags: last = i
        if last < 0: return None
        return len(self.vq) - 1 - last
    def do_wait(self, vm=None, lgkm=None):
        if vm is not None:
            vm = min(vm, 63)
            if vm == 0: self.vq = []
            elif vm < len(self.vq): self.vq = self.vq[len(self.vq) - vm:]
        if lgkm is not None:
            if lgkm == 0: self.lq = []
            elif lgkm < len(self.lq): self.lq = self.lq[len(self.lq) - lgkm:]
        self.emit(wait(vm, lgkm))
    def move_ptr(self, name, target, sregs=()):
        d = target - self.ptr[name]
        self.ptr[name] = target
        if d == 0: return []
        return [salu("s_add_u32", f"s{r}", f"s{r}", d & 0xffffffff) for r in sregs]

    def run_stream(self, jobs, NB=None, AFB=None, ahead=False):
        NB = NB or OPT["NB"]
        AFB = AFB or V_AF
        n = len(jobs)
        budget = OPT["budget"] if self.nq == 2 else OPT["budget"]
        if self.nq == 1: budget = 6
        for k, j in enumerate(jobs):
            if j.epoch.first is None: j.epoch.first = k
            j.epoch.last = k
        eps_list = []
        for j in jobs:
            if not eps_list or eps_list[-1] is not j.epoch: eps_list.append(j.epoch)
        for ei, e in enumerate(eps_list):
            e.idx = ei; e.vis = False
        free = list(range(NB))
        off = 0
        for e in eps_list:
            ne = e.last - e.first + 1
            for k in range(e.first, e.last + 1): jobs[k].want = (off + k - e.first) % NB
            skip = 0
            if NB == 7: skip = {24: 1, 28: 2, 8: 2}.get(ne, 0)
            off = (off + ne + skip) % NB
        nextrd = 0
        fq = []
        state = {"lastrd": -10, "dq": None}
        def issue_reads(j):
            b = j.want; free.remove(b); j.buf = b
            base = AFB + 4 * b
            for kind, dst, addr, imm in j.fixed:
                j.ops.append(self.emit(ds_read(kind, dst, addr, imm)))
            sub = 0
            for kind, addr, imm in j.reads:
                w = 4 if kind == "b128" else 2
                j.ops.append(self.emit(ds_read(kind, rs("v", base + sub, w), addr, imm)))
                sub += w
            return len(j.fixed) + len(j.reads)
        def do_barrier(e, g):
            needs = list(e.needs)
            if ahead:
                nxt = eps_list[e.idx + 1] if e.idx + 1 < len(eps_list) else None
                needs = (list(e.needs) if e.idx == 0 else []) + (list(nxt.needs) if nxt else [])
                if nxt: nxt.vis = True
            e.vis = True
            for t in needs: assert t in self.issued, ("not issued", e.name, t)
            vm = self.vm_wait_for(set(needs)) if needs else None
            self.emit(comment(f"--- barrier {e.name}"))
            if ahead and e.idx > 0:
                if vm is not None: self.do_wait(vm=vm)
                self.emit(barrier())
                e.done_bar = True
                activate(e, g)
                return
            if DEBUG == "G":
                self.do_wait(lgkm=0); self.emit(stamp())
            self.do_wait(vm=vm, lgkm=0 if not OPT.get("nolg") else None) if (vm is not None or not OPT.get("nolg")) else None
            if DEBUG == "G": self.emit(stamp())
            if not OPT.get("nobar"): self.emit(barrier())
            if DEBUG == "F": self.emit(stamp())
            e.done_bar = True
            activate(e, g)
        def activate(e, g):
            for q in e.fill:
                if q.start < g: q.start = g
                if q.isdma and state["dq"] is not None:
                    if not state["dq"].items: state["dq"].start = q.start
                    state["dq"].items += q.items
                    state["dq"].end = max(state["dq"].end, q.end)
                elif q.isdma:
                    state["dq"] = q; fq.insert(0, q)
                else: fq.append(q)
        def wait_for(j):
            idx = -1
            for i, o in enumerate(self.lq):
                if o in j.ops: idx = i
            if idx >= 0:
                self.do_wait(lgkm=min(15, len(self.lq) - 1 - idx))
                return 1
            return 0
        def fillers(g, rem, force_ok):
            for q in fq:
                if not q.items or g < q.start: continue
                left_gaps = max(1, q.end - g + 1)
                cost = sum(i.cost for i in q.items) // 4
                must = cost - (left_gaps - 1) * (q.maxper if q.maxper else OPT["capf"])
                if g >= q.end: must = cost
                if not force_ok: must = 0
                lim = q.maxper if q.maxper else 99
                took = 0
                while q.items and (took < lim or took < must):
                    it = q.items[0]
                    c = max(1, it.cost // 4)
                    if isinstance(it.tag, tuple) and it.tag and it.tag[0] == "after" and g < it.tag[1]: break
                    if took >= must and c > rem: break
                    q.items.pop(0)
                    self.emit(it); took += c; rem -= c
            return rem
        def reads(g, quota):
            nonlocal nextrd
            nl = 0
            while nextrd < n:
                j = jobs[nextrd]; e = j.epoch
                if not e.vis: break
                cnt = len(j.fixed) + len(j.reads)
                if j.want in free and (nl + cnt <= quota or (nl == 0 and quota > 0)):
                    c = issue_reads(j); nl += c
                    nextrd += 1
                    state["lastrd"] = g
                else: break
            return nl
        def try_barrier(g):
            if ahead:
                if g + 1 < n:
                    e = jobs[g + 1].epoch
                    if not e.done_bar and e.first == g + 1:
                        do_barrier(e, g); return True
                return False
            if nextrd < n:
                j = jobs[nextrd]; e = j.epoch
                lead = nextrd - (g + 1)
                if not e.done_bar and (g == -1 or g >= state["lastrd"] + OPT["bar_delay"] or lead <= 2):
                    do_barrier(e, g); return True
            return False
        def windowA(g):
            cap = OPT["wcap"]
            lead = nextrd - (g + 1)
            used = reads(g, 2 if lead >= NB - 1 else OPT["catchq"])
            fillers(g, cap - used, False)
        def windowB(g, cap):
            nx = g + 1
            used = 0
            didbar = try_barrier(g)
            if didbar: used += 2 + OPT["barcost"]
            if (not didbar or (ahead and g >= 0)) and nx < n and jobs[nx].ops: used += wait_for(jobs[nx])
            lead = nextrd - (g + 1)
            if g == -1: used += reads(g, 99)
            elif self.nq == 1: used += reads(g, OPT["postq"] if didbar else (OPT["catchq"] if lead < NB - 1 else 2))
            elif didbar or lead < NB - 2: used += reads(g, 2)
            late_wait = nx < n and any(o in self.lq for o in jobs[nx].ops)
            if late_wait: used += 1
            fillers(g, cap - used, True)
            if late_wait: wait_for(jobs[nx])
        windowB(-1, 99)
        for k in range(n):
            j = jobs[k]
            for p in j.pre:
                if callable(p): p(self)
                else: self.emit(p)
            ms = j.mk(rs("v", AFB + 4 * j.buf, 4))
            if len(ms) == 2:
                self.emit(ms[0])
                windowA(k)
                self.emit(ms[1])
                free.append(j.buf)
                windowB(k, OPT["wcap"])
            else:
                self.emit(ms[0])
                free.append(j.buf)
                windowB(k, 6)
        for q in fq:
            while q.items: self.emit(q.items.pop(0))

def dma_KVs(P, kind, n, tag):
    K = kind == "K"
    b = (KBASE if K else VBASE) + ((n % 16) % NKV) * TSLOT
    p1, p2, srd, pat, M = (S_KP, S_KP2, S_SRDK, V_DK, S_MK) if K else (S_VP, S_VP2, S_SRDV, V_DV, S_MV)
    L = [salu("s_add_u32", "m0", f"s{M}", b)]
    if OPT.get("rot", 0):
        rt, rh = (S_KT, S_KH) if K else (S_VT, S_VH)
        L.append(salu("s_add_u32", f"s{rt}", f"s{rt}", 8192))
        L.append(salu("s_and_b32", f"s{rt}", f"s{rt}", 0x1ffff))
        prev = P.ptr[kind + "3"] // 8192
        P.ptr[kind + "3"] = n * 8192
        assert n == prev + 1, (kind, n, prev)
        if n % 16 == 0 and not P.first_tile.get(kind, True): L.append(salu("s_add_u32", f"s{rh}", f"s{rh}", 131072))
        P.first_tile[kind] = False
        L.append(salu("s_add_u32", f"s{p1}", f"s{rt}", f"s{rh}"))
        L.append(salu("s_add_u32", f"s{p2}", f"s{p1}", (-896) & 0xffffffff))
    else:
        L += P.move_ptr(kind + "3", n * 8192, sregs=(p1, p2))
    L.append(tagged(dma(f"v{pat}", rs("s", srd, 4), f"s{p1}", 0, nt=True), tag))
    L.append(tagged(dma(f"v{pat}", rs("s", srd, 4), f"s{p2}", 1024, nt=True), tag))
    return L
def o_tile_info(z):
    s = (z % 16) >> 2
    starts = [0, 2, 4, 6, 9]
    q = z & 3
    return s, starts[q], starts[q + 1]
def dma_O(P, z, tag):
    s, c0, c1 = o_tile_info(z)
    hd = z // 16
    b = WBASE + oslot(z)
    L = []
    for cg in range(c0, c1):
        L.append(salu("s_add_u32", "m0", f"s{S_MO}", b + (cg - c0) * OGRP))
        mv = P.move_ptr("O", (hd * 128 + 32 * s) * 1152 + cg * 128, sregs=(S_C,))
        L += mv
        L.append(tagged(dma(f"v{V_DO}", rs("s", S_SRD2, 4), f"s{S_C}", 0, nt=bool(OPT.get("wont", 0))), tag))
    return L
def pf_wq():
    if not OPT["pf"]: return []
    return [tagged(bload(1, "v0", f"v{V_D[2]}", rs("s", S_PFQ, 4), f"s{S_PFQO}", 0), ("pf", 0)),
            salu("s_add_u32", f"s{S_PFQO}", f"s{S_PFQO}", 256)]
def pf_wo():
    if not OPT["pf"]: return []
    return [tagged(bload(1, "v0", f"v{V_PFO}", rs("s", S_SRD2, 4), f"s{S_PFOO}", 0, flags=" nt" if OPT.get("pfnt") else ""), ("pf", 0)),
            salu("s_add_u32", f"s{S_PFOO}", f"s{S_PFOO}", 128 * 1152)]

def q4acc(h, s, t, qt, nq):
    return (h * 8 + s * 2 + t) * nq * 4 + qt * 4
def xslot4(p): return (p % 2) * XSLOT
def dma_WQ4(P, eps, tag):
    st, h = eps // 4, eps % 4
    b = (eps % 8) * TSLOT
    L = [salu("s_add_u32", "m0", f"s{S_MV}", b)]
    L += P.move_ptr("Q", h * 256 + st * 262144, sregs=(S_A, S_A2))
    L.append(tagged(dma(f"v{V_DQ}", rs("s", S_SRD0, 4), f"s{S_A}", 0, nt=bool(OPT.get("wqnt", 0))), tag))
    L.append(tagged(dma(f"v{V_DQ}", rs("s", S_SRD0, 4), f"s{S_A2}", 1024, nt=bool(OPT.get("wqnt", 0))), tag))
    return L
def dma_X4(P, p, tag):
    b = WBASE + xslot4(p)
    L = [salu("s_add_u32", "m0", f"s{S_MX}", b)]
    L += P.move_ptr("X", p * 128, sregs=(S_B2,))
    for k in range(4):
        L.append(tagged(dma(f"v{V_DX[k]}", rs("s", S_SRD1, 4), f"s{S_B2}", 1088 * k, nt=bool(OPT.get("xnt", 0))), tag))
    return L

def phase_Q4(P):
    role, nq = P.role, P.nq
    jobs = []
    for m in range(36):
        st = m // 2
        needs = [("Q", 2 * m), ("Q", 2 * m + 1)] + ([("X", st >> 1)] if m % 4 == 0 else [])
        e = Epoch(f"Q{m}", needs)
        xb = V_S[0] + 8 * (st & 1)
        for hh in range(2):
            eps = 2 * m + hh
            h = eps % 4
            first = (h == 0)
            for s in range(4):
                for t in range(2):
                    base = (eps % 8) * TSLOT + (s >> 1) * 1024 + 8 * t
                    addr = f"v{V_T[s & 1]}"
                    reads = [("tr", addr, base), ("tr", addr, base + 512)]
                    fixed = []
                    if first:
                        fixed = [("b128", rs("v", xb + 4 * qt, 4), f"v{V_X}", xslot4(st >> 1) + (st & 1) * 64 + qt * 2176) for qt in range(nq)]
                        first = False
                    def mk(a, s=s, t=t, h=h, xb=xb):
                        L = []
                        for qt in range(nq):
                            acc = rs("a", q4acc(h, s, t, qt, nq), 4)
                            L.append(mfma16(acc, a, rs("v", xb + 4 * qt, 4), acc))
                        return L
                    jobs.append(Job(e, mk, reads, fixed))
        f = 16 * m
        d = []
        if m >= 1:
            d += dma_WQ4(P, 2 * (m + 3), ("Q", 2 * (m + 3))) + dma_WQ4(P, 2 * (m + 3) + 1, ("Q", 2 * (m + 3) + 1))
        if m % 4 == 0 and m >= 4: d += dma_X4(P, m // 4 + 1, ("X", m // 4 + 1))
        if d: e.fill.append(FillQ(d, f - 1, f + 10, isdma=True))
    P.run_stream(jobs, NB=8, AFB=V_OACC, ahead=True)

def q4_finish(P):
    role, nq = P.role, P.nq
    P.do_wait(vm=0, lgkm=0)
    P.emit(barrier())
    for kind, n in (("K", 0), ("K", 1), ("V", 0), ("K", 2), ("V", 1), ("K", 3)):
        P.emit(dma_KVs(P, kind, n, (kind, n)))
    P.emit(valu("v_mov_b32", f"v{V_DO}", f"v{V_DX[0] + 8}"))
    for z in range(3): P.emit(dma_O(P, z, ("O", z)))
    P.emit(nop(7))
    T = V_OACC
    v = V_TMP[0]
    P.emit(valu("v_mbcnt_lo_u32_b32", f"v{v}", -1, 0))
    P.emit(valu("v_mbcnt_hi_u32_b32", f"v{v}", -1, f"v{v}"))
    for h in range(4):
        dstbase = V_QF if h == 0 else V_OF
        for s in range(4):
            for qt in range(nq):
                for t in range(2):
                    a = q4acc(h, s, t, qt, nq)
                    tb = T + ((s * 2 + qt) * 2 + t) * 4
                    for r in range(4): P.emit(valu("v_accvgpr_read_b32", f"v{tb + r}", f"a{a + r}"))
                    for r in range(4): P.emit(valu("v_accvgpr_write_b32", f"a{a + r}", 0))
                    for r in range(0, 4, 2):
                        P.emit(valu("v_pk_mul_f32", rs("v", tb + r, 2), rs("v", tb + r, 2), rs("s", S_CSC2, 2)))
                    for hh in range(2):
                        P.emit(valu("v_cvt_pk_bf16_f32", f"v{dstbase + (s * 2 + qt) * 4 + 2 * t + hh}", f"v{tb + 2 * hh}", f"v{tb + 2 * hh + 1}"))
        if h > 0:
            for s in range(4):
                for qt in range(nq):
                    fr = s * 2 + qt
                    qsf = {0: "", 1: " nt", 2: " sc1", 3: " sc0 sc1"}[OPT.get("qst", 0)]
                    P.emit(bstore(4, rs("v", V_OF + fr * 4, 4), f"v{V_QL}", rs("s", S_SRDQ, 4), f"s{S_QFO}", (fr % 4) * 1024, flags=qsf) if fr < 4 else
                           bstore(4, rs("v", V_OF + fr * 4, 4), f"v{V_QL}", rs("s", S_SRDQ, 4), f"s{S_T}", (fr % 4) * 1024, flags=qsf))
            P.emit(salu("s_add_u32", f"s{S_QFO}", f"s{S_QFO}", 8192))
            P.emit(salu("s_add_u32", f"s{S_T}", f"s{S_T}", 8192))
    if role == "W":
        for r in range(128, 144): P.emit(valu("v_accvgpr_write_b32", f"a{r}", 0))
    else:
        for r in range(32): P.emit(valu("v_mov_b32", f"v{V_OUTX + r}", 0))
    if OPT.get("fwait", 0): P.do_wait(vm=0)
    else: P.emit(nop(3))
    for r in range(32): P.emit(valu("v_mov_b32", f"v{V_OF + r}", 0))
    P.emit(salu("s_mov_b32", f"s{S_QFO}", 0))
    P.emit(salu("s_movk_i32", f"s{S_T}", 4096))

def qf_reload(P):
    L = []
    for s in range(4):
        for qt in range(P.nq):
            fr = s * 2 + qt
            so = S_QFO if fr < 4 else S_T
            L.append(tagged(bload(4, rs("v", V_QF + fr * 4, 4), f"v{V_QL}", rs("s", S_SRDQ, 4), f"s{so}", (fr % 4) * 1024, flags={0: "", 1: " nt", 2: " sc1"}[OPT.get("qld", 0)]), ("QF", 1)))
    L.append(salu("s_add_u32", f"s{S_QFO}", f"s{S_QFO}", 8192))
    L.append(salu("s_add_u32", f"s{S_T}", f"s{S_T}", 8192))
    return L

class Ctx:
    def __init__(self): self.slow = {}

def xlane_reduce(op, reg, tmp):
    L = []
    L.append(valu("v_mov_b32", f"v{tmp}", f"v{reg}"))
    L.append(nop(1))
    L.append(valu("v_permlane32_swap_b32", f"v{reg}", f"v{tmp}"))
    L.append(valu(op, f"v{reg}", f"v{reg}", f"v{tmp}"))
    L.append(valu("v_mov_b32", f"v{tmp}", f"v{reg}"))
    L.append(nop(1))
    L.append(valu("v_permlane16_swap_b32", f"v{reg}", f"v{tmp}"))
    L.append(valu(op, f"v{reg}", f"v{reg}", f"v{tmp}"))
    return L

def max8(S, dst, T):
    return [valu("v_max3_f32", f"v{dst}", f"v{S}", f"v{S+1}", f"v{S+2}"),
            valu("v_max3_f32", f"v{T}", f"v{S+3}", f"v{S+4}", f"v{S+5}"),
            valu("v_max3_f32", f"v{dst}", f"v{dst}", f"v{S+6}", f"v{S+7}"),
            valu("v_max_f32", f"v{dst}", f"v{dst}", f"v{T}")]

def exp_items(S, nq, P_after):
    T = V_TMP
    L = []
    n = 0
    for qt in range(nq):
        for e in range(4):
            a = S + qt * 8 + 2 * e
            t0, t1 = T[1 + (2 * n) % 4], T[1 + (2 * n + 1) % 4]; n += 1
            L.append(valu("v_exp_f32", f"v{t0}", f"v{a}"))
            L.append(valu("v_exp_f32", f"v{t1}", f"v{a + 1}"))
            if e == 0: L.append(valu("v_mov_b32", f"v{V_TS[qt]}", f"v{t0}"))
            else: L.append(valu("v_add_f32", f"v{V_TS[qt]}", f"v{V_TS[qt]}", f"v{t0}"))
            L.append(valu("v_add_f32", f"v{V_TS[qt]}", f"v{V_TS[qt]}", f"v{t1}"))
            cv = valu("v_cvt_pk_bf16_f32", f"v{V_P + 4 * qt + e}", f"v{t0}", f"v{t1}")
            if P_after is not None: cv.tag = ("after", P_after)
            L.append(cv)
    return L

def first_tile_items(nq):
    S = V_S[0]; T = V_TMP
    L = []
    for qt in range(nq):
        L += max8(S + 8 * qt, T[0], T[1])
        L += xlane_reduce("v_max_f32", T[0], T[1])
        for r in range(4): L.append(valu("v_sub_f32", f"v{V_NEGM + 4 * qt + r}", 0, f"v{T[0]}"))
        for r in range(8): L.append(valu("v_sub_f32", f"v{S + 8 * qt + r}", f"v{S + 8 * qt + r}", f"v{T[0]}"))
        L.append(valu("v_mov_b32", f"v{V_L[qt]}", 0))
    return L

def make_check(ctx, i, name, nq):
    uid = f"{name}{i}"
    def f(P):
        if i > 0:
            if nq == 2:
                P.emit(valu("v_max_f32", f"v{V_TMP[0]}", f"v{V_TS[0]}", f"v{V_TS[1]}"))
                P.out.pop()
                P.emit(valu("v_add_f32", f"v{V_TMP[0]}", f"v{V_TS[0]}", f"v{V_TS[1]}"))
                src_ = V_TMP[0]
            else: src_ = V_TS[0]
            P.emit(valu("v_cmp_nle_f32", rs("s", S_CMP, 2), f"v{src_}", f"s{S_THR}"))
            P.emit(salu("s_cmp_lg_u64", None, rs("s", S_CMP, 2), 0))
            if not OPT.get("noslow"): P.emit(raw(f"s_cbranch_scc1 L_tr_{uid}", "branch"))
            P.emit(label(f"L_back_{uid}"))
        for qt in range(nq): P.emit(valu("v_add_f32", f"v{V_L[qt]}", f"v{V_L[qt]}", f"v{V_TS[qt]}"))
        if i == 0: P.emit(nop(0))
    if i > 0: ctx.slow[uid] = i & 1
    return f

def slow_routine(par, nq, lab):
    S = V_S[par]; S2 = V_S[1 - par]; T = V_TMP
    B = [label(lab), nop(7), nop(7)]
    for qt in range(nq):
        B += max8(S + 8 * qt, T[0], T[1])
        B += xlane_reduce("v_max_f32", T[0], T[1])
        B.append(valu("v_max_f32", f"v{T[0]}", 0, f"v{T[0]}"))
        B.append(valu("v_sub_f32", f"v{T[1]}", 0, f"v{T[0]}"))
        B.append(valu("v_exp_f32", f"v{T[1]}", f"v{T[1]}"))
        for r in range(4): B.append(valu("v_sub_f32", f"v{V_NEGM + 4 * qt + r}", f"v{V_NEGM + 4 * qt + r}", f"v{T[0]}"))
        B.append(valu("v_mul_f32", f"v{V_L[qt]}", f"v{V_L[qt]}", f"v{T[1]}"))
        for s in range(4):
            for t in range(2):
                for r in range(4):
                    a = oacc(s, t, qt) + r
                    B.append(valu("v_mul_f32", f"v{a}", f"v{a}", f"v{T[1]}"))
        for r in range(8):
            B.append(valu("v_sub_f32", f"v{S + 8 * qt + r}", f"v{S + 8 * qt + r}", f"v{T[0]}"))
            B.append(valu("v_sub_f32", f"v{S2 + 8 * qt + r}", f"v{S2 + 8 * qt + r}", f"v{T[0]}"))
    B += exp_items(S, nq, None)
    B.append(nop(1))
    B.append(raw(f"s_setpc_b64 s[{S_RET}:{S_RET+1}]", "branch"))
    return B
def trampoline(uid, slowlab):
    return [label(f"L_tr_{uid}"),
            raw(f"s_getpc_b64 s[{S_RET}:{S_RET+1}]", "salu"),
            label(f"L_pc_{uid}"),
            raw(f"s_add_u32 s{S_RET}, s{S_RET}, L_back_{uid}-L_pc_{uid}", "salu"),
            raw(f"s_addc_u32 s{S_RET+1}, s{S_RET+1}, -1", "salu"),
            raw(f"s_branch {slowlab}", "branch")]

def qk_jobs(e, i, nq):
    jobs = []
    S = V_S[i & 1]
    slot = i % NKV
    for kt in range(2):
        for s in range(4):
            def mk(a, kt=kt, s=s):
                L = []
                for qt in range(nq):
                    d = rs("v", S + qt * 8 + kt * 4, 4)
                    c = d if s > 0 else ("0" if i == 0 else rs("v", V_NEGM + 4 * qt, 4))
                    L.append(mfma16(d, a, rs("v", V_QF + (s * 2 + qt) * 4, 4), c))
                return L
            jobs.append(Job(e, mk, [("b128", f"v{V_K}", slot * TSLOT + (s >> 1) * 1024 + (s & 1) * 64 + kt * 512)]))
    return jobs
def pv_jobs(e, i, nq):
    jobs = []
    slot = i % NKV
    for s in range(4):
        for t in range(2):
            base = VBASE + slot * TSLOT + (s >> 1) * 1024 + 8 * t
            addr = f"v{V_T[s & 1]}"
            def mk(a, s=s, t=t):
                L = []
                for qt in range(nq):
                    acc = rs("v", oacc(s, t, qt), 4)
                    L.append(mfma16(acc, a, rs("v", V_P + 4 * qt, 4), "0" if i == 0 else acc))
                return L
            jobs.append(Job(e, mk, [("tr", addr, base), ("tr", addr, base + 512)]))
    return jobs
def of_set(z, mode):
    if mode == "AO":
        if z <= 1: return 0
        if z >= 14: return 0
        return 0 if ((z - 2) % 4) < 2 else 1
    else:
        return 0
def o_jobs(e, z, nq, mode="AO"):
    jobs = []
    s, c0, c1 = o_tile_info(z)
    s = of_set(z, mode)
    for cg in range(c0, c1):
        for q4 in range(4):
            nt = 4 * cg + q4
            base = oslot(z) + (cg - c0) * OGRP + (q4 >> 1) * 64
            def mk(a, nt=nt):
                L = []
                for qt in range(nq):
                    acc = outacc(nt, qt, nq)
                    L.append(mfma16(acc, a, rs("v", V_OF + (s * 2 + qt) * 4, 4), acc))
                return L
            jobs.append(Job(e, mk, [("tr", f"v{V_W[q4 & 1]}", base), ("tr", f"v{V_W[q4 & 1]}", base + 512)]))
    return jobs

def phase_A(P, ctx, name):
    role, nq = P.role, P.nq
    jobs = []; eps = []
    e = Epoch(f"{name}pre", [("K", 0), ("QF", 0)]); eps.append(e)
    jobs += qk_jobs(e, 0, nq)
    starts = {}; qkfirst = {}; olast = {}
    for i in range(17):
        needs = []
        if i >= 1: needs.append(("V", i - 1))
        if i + 1 <= 15: needs.append(("K", i + 1))
        if i <= 15: needs.append(("O", i))
        e = Epoch(f"{name}{i}", needs); eps.append(e)
        starts[i] = len(jobs)
        if i >= 1:
            pj = pv_jobs(e, i - 1, nq)
            pj[0].pre.append(make_check(ctx, i - 1, name, nq))
            jobs += pj
        if i <= 15:
            jobs += o_jobs(e, i, nq)
            olast[i] = len(jobs) - 1
        if i + 1 <= 15:
            qkfirst[i + 1] = len(jobs)
            jobs += qk_jobs(e, i + 1, nq)
    starts[17] = len(jobs)
    for i in range(17):
        e = eps[i + 1]; f = starts[i]
        if i <= 15:
            if i == 0:
                e.fill.append(FillQ(first_tile_items(nq), f + 1, qkfirst[1] - 2))
                st = qkfirst[1] - 1
            else: st = f + 1
            pa = f + 7 if i >= 1 else None
            e.fill.append(FillQ(exp_items(V_S[i & 1], nq, pa), st, starts[i + 1] - 1))
        if i in (3, 7, 11):
            mv = [valu("v_mov_b32", f"v{V_OF + r}", f"v{V_OF + 8 + r}") for r in range(4 * nq if nq == 1 else 8)]
            e.fill.append(FillQ(mv, olast[i] + 1, starts[i + 1] + 6))
        if i in (5, 9, 13):
            mv = [valu("v_mov_b32", f"v{V_OF + 8 + r}", f"v{V_OF + 16 + r}") for r in range(4 * nq if nq == 1 else 8)]
            mv += [valu("v_mov_b32", f"v{V_OF + 16 + r}", f"v{V_OF + 24 + r}") for r in range(4 * nq if nq == 1 else 8)]
            e.fill.append(FillQ(mv, olast[i] + 1, starts[i + 1] + 6))
        d = []
        if i <= 15:
            d += dma_O(P, i + 3, ("O", i + 3))
            d += dma_KVs(P, "K", i + 4, ("K", i + 4))
            d += dma_KVs(P, "V", i + 2, ("V", i + 2))
        if i == 1: d += pf_wo()
        if i == 15: d += qf_reload(P)
        if d:
            late = OPT.get("late", 1)
            endg = starts[i + 1] - 9
            st0 = max(f - 8, endg - OPT.get("dmawin", 8)) if late else f - 8
            e.fill.insert(0, FillQ(d, st0, endg, isdma=True))
    P.run_stream(jobs, ahead=bool(OPT.get("aheadA", 0)))
    def rb(t):
        if isinstance(t, tuple) and t[0] in ("K", "V", "O") and t[1] >= 16: return (t[0], t[1] - 16)
        if isinstance(t, tuple) and t[0] == "QF" and t[1] == 1: return ("QF", 0)
        return ("old", 0)
    P.vq = [rb(t) for t in P.vq]
    P.issued = set(rb(t) for t in P.issued)
    P.ptr["K3"] -= 16 * 8192; P.ptr["V3"] -= 16 * 8192
    P.ptr["O"] -= 128 * 1152
    T = V_TMP
    P.emit(nop(3))
    for qt in range(nq):
        P.emit(xlane_reduce("v_add_f32", V_L[qt], T[0]))
        P.emit(valu("v_rcp_f32", f"v{T[1 + qt]}", f"v{V_L[qt]}"))
    P.emit(nop(3))
    for s in range(4):
        for qt in range(nq):
            for t in range(2):
                a = oacc(s, t, qt)
                for r in range(4):
                    P.emit(valu("v_mul_f32", f"v{a + r}", f"v{a + r}", f"v{T[1 + qt]}"))
                for h in range(2):
                    P.emit(valu("v_cvt_pk_bf16_f32", f"v{V_OF + (s * 2 + qt) * 4 + 2 * t + h}", f"v{a + 2 * h}", f"v{a + 2 * h + 1}"))
    P.emit(nop(1))

def _olast():
    s, c0, c1 = o_tile_info(15)
    return (32 * s) * 1152 + (c1 - 1) * 128
O_LAST = _olast()
def _o2():
    s, c0, c1 = o_tile_info(2)
    return (32 * s) * 1152 + (c1 - 1) * 128
O2_LAST = _o2()

def phase_O(P):
    role, nq = P.role, P.nq
    jobs = []
    for z in range(16):
        e = Epoch(f"O{z}", [("O", z)])
        f = len(jobs)
        jobs += o_jobs(e, z, nq, "O")
        if z % 4 == 0 and z > 0:
            mv = [valu("v_mov_b32", f"v{V_OF + r}", f"v{V_OF + 8 + r}") for r in range(24)]
            jobs[f].pre += mv + [nop(1)]
        e.fill.append(FillQ(dma_O(P, z + 3, ("O", z + 3)), f - 8, f + 2, isdma=True))
    P.run_stream(jobs)
    P.emit(nop(7))
    T = V_S[0]
    v = V_TMP[0]
    P.emit(valu("v_mbcnt_lo_u32_b32", f"v{v}", -1, 0))
    P.emit(valu("v_mbcnt_hi_u32_b32", f"v{v}", -1, f"v{v}"))
    P.emit(valu("v_lshlrev_b32", f"v{v}", 4, f"v{v}"))
    P.emit(salu("s_mul_i32", f"s{S_T}", f"s{S_W}", 2 * 18 * 1024))
    stf = {0: "", 1: " nt", 2: " sc1", 3: " sc0 sc1", 4: " sc0 sc1 nt"}[OPT.get("stnt", 2 if OPT.get("fuse", 1) else 0)]
    cnt = 0
    for qt in range(nq):
        for ntp in range(18):
            tb = T + 16 * (cnt % 2)
            srcs = []
            for h in range(2):
                a = outacc(2 * ntp + h, qt, nq)
                regs = parse_regs(a)
                if regs[0][0] == "a":
                    for r in range(4):
                        P.emit(valu("v_accvgpr_read_b32", f"v{tb + 4 * h + r}", f"a{regs[r][1]}"))
                    srcs.append(tb + 4 * h)
                else: srcs.append(regs[0][1])
            for h in range(2):
                for d in range(2):
                    P.emit(valu("v_cvt_pk_bf16_f32", f"v{tb + 8 + 2 * h + d}", f"v{srcs[h] + 2 * d}", f"v{srcs[h] + 2 * d + 1}"))
            off = cnt * 1024
            if off % 4096 == 0 and off > 0: P.emit(salu("s_add_u32", f"s{S_T}", f"s{S_T}", 4096))
            if not OPT.get("nost"): P.emit(bstore(4, rs("v", tb + 8, 4), f"v{v}", rs("s", S_SRDP, 4), f"s{S_T}", off % 4096, flags=stf))
            cnt += 1

def prologue_common():
    L = []
    A = L.append
    A(raw("s_cmp_ge_u32 s2, 256", "salu", wr=[("scc",0)]))
    A(raw("s_cbranch_scc1 L_end", "branch"))
    A(raw("s_load_dwordx16 s[4:19], s[0:1], 0", "smem"))
    A(raw("s_load_dwordx4 s[20:23], s[0:1], 64", "smem"))
    A(raw("s_load_dwordx2 s[24:25], s[0:1], 96", "smem"))
    A(valu("v_lshrrev_b32", "v1", 6, "v0"))
    A(valu("v_and_b32", f"v{V_TMP[0]}", 63, "v0"))
    A(valu("v_readfirstlane_b32", f"s{S_W}", "v1"))
    A(salu("s_and_b32", "s30", "s2", 7))
    A(salu("s_lshr_b32", "s31", "s2", 3))
    A(salu("s_lshr_b32", "s32", "s30", 2))
    A(salu("s_and_b32", "s33", "s30", 3))
    A(salu("s_lshl_b32", "s33", "s33", 1))
    A(salu("s_and_b32", "s34", "s31", 1))
    A(salu("s_add_u32", "s33", "s33", "s34"))
    A(salu("s_lshr_b32", "s34", "s31", 1))
    A(salu("s_mov_b32", f"s{S_R}", 0))
    A(raw("s_waitcnt lgkmcnt(0)", "wait"))
    A(salu("s_cmp_eq_u32", None, "s32", 0))
    for d, a, b in ((4, 4, 14), (6, 6, 16), (8, 8, 18), (10, 10, 20), (12, 12, 22)):
        A(salu("s_cselect_b32", f"s{d}", f"s{a}", f"s{b}"))
        A(salu("s_cselect_b32", f"s{d+1}", f"s{a+1}", f"s{b+1}"))
    return L

def patterns_common():
    L = []
    A = L.append
    A(salu("s_mov_b32", f"s{S_CSC}", hex(f32bits(SCALE))))
    A(salu("s_mov_b32", f"s{S_THR}", hex(f32bits(4096.0))))
    A(salu("s_mul_i32", "s35", "s2", PSZ))
    A(salu("s_add_u32", f"s{S_SRDP}", "s24", "s35"))
    A(salu("s_addc_u32", f"s{S_SRDP+1}", "s25", 0))
    A(salu("s_mov_b32", f"s{S_SRDP+2}", PSZ))
    A(salu("s_mov_b32", f"s{S_SRDP+3}", "0x00020000"))
    A(salu("s_mov_b32", f"s{S_CSC2}", hex(f32bits(SCALE))))
    A(salu("s_mov_b32", f"s{S_CSC2+1}", hex(f32bits(SCALE))))
    A(salu("s_lshl_b32", "s35", "s2", 2))
    A(salu("s_add_u32", "s35", "s35", f"s{S_W}"))
    A(salu("s_mul_i32", "s35", "s35", 3 * 8192))
    A(salu("s_add_u32", "s35", "s35", QOFF))
    A(salu("s_add_u32", f"s{S_SRDQ}", "s24", "s35"))
    A(salu("s_addc_u32", f"s{S_SRDQ+1}", "s25", 0))
    A(salu("s_movk_i32", f"s{S_SRDQ+2}", 3 * 8192))
    A(salu("s_mov_b32", f"s{S_SRDQ+3}", "0x00020000"))
    A(salu("s_mov_b32", f"s{S_QFO}", 0))
    A(salu("s_movk_i32", f"s{S_T}", 4096))
    l, g, t1, t2, t3 = V_TMP
    A(valu("v_lshrrev_b32", f"v{g}", 4, f"v{l}"))
    A(valu("v_bfe_u32", f"v{t1}", f"v{l}", 2, 2))
    A(valu("v_and_b32", f"v{t2}", 3, f"v{l}"))
    A(salu("s_movk_i32", "s35", 2056))
    A(valu("v_mul_lo_u32", f"v{V_T[0]}", "s35", f"v{g}"))
    A(valu("v_lshl_add_u32", f"v{V_T[0]}", f"v{t1}", 7, f"v{V_T[0]}"))
    A(valu("v_lshrrev_b32", f"v{t3}", 1, f"v{t1}"))
    A(valu("v_lshl_add_u32", f"v{V_T[0]}", f"v{t3}", 6, f"v{V_T[0]}"))
    A(valu("v_lshl_add_u32", f"v{V_T[0]}", f"v{t2}", 4, f"v{V_T[0]}"))
    A(valu("v_xor_b32", f"v{t3}", 1, f"v{t3}"))
    A(valu("v_mul_lo_u32", f"v{V_T[1]}", "s35", f"v{g}"))
    A(valu("v_lshl_add_u32", f"v{V_T[1]}", f"v{t1}", 7, f"v{V_T[1]}"))
    A(valu("v_lshl_add_u32", f"v{V_T[1]}", f"v{t3}", 6, f"v{V_T[1]}"))
    A(valu("v_lshl_add_u32", f"v{V_T[1]}", f"v{t2}", 4, f"v{V_T[1]}"))
    A(salu("s_movk_i32", "s35", 1088))
    A(valu("v_mul_lo_u32", f"v{V_W[0]}", "s35", f"v{g}"))
    A(valu("v_lshl_add_u32", f"v{V_W[0]}", f"v{t1}", 7, f"v{V_W[0]}"))
    A(valu("v_lshrrev_b32", f"v{t3}", 1, f"v{t1}"))
    A(valu("v_lshl_add_u32", f"v{V_W[0]}", f"v{t3}", 5, f"v{V_W[0]}"))
    A(valu("v_lshl_add_u32", f"v{V_W[0]}", f"v{t2}", 3, f"v{V_W[0]}"))
    A(valu("v_add_u32", f"v{V_W[0]}", WBASE, f"v{V_W[0]}"))
    A(valu("v_xor_b32", f"v{V_W[1]}", 32, f"v{V_W[0]}"))
    A(valu("v_lshlrev_b32", f"v{V_K}", 11, f"v{t1}"))
    A(valu("v_lshrrev_b32", f"v{t3}", 1, f"v{t1}"))
    A(valu("v_lshl_add_u32", f"v{V_K}", f"v{t3}", 6, f"v{V_K}"))
    A(valu("v_lshl_add_u32", f"v{V_K}", f"v{t2}", 7, f"v{V_K}"))
    A(valu("v_and_b32", f"v{t3}", 2, f"v{t2}"))
    A(valu("v_xor_b32", f"v{t3}", f"v{t3}", f"v{g}"))
    A(valu("v_lshl_add_u32", f"v{V_K}", f"v{t3}", 4, f"v{V_K}"))
    A(valu("v_add_u32", f"v{V_K}", KBASE, f"v{V_K}"))
    A(valu("v_and_b32", f"v{t2}", 15, f"v{l}"))
    A(valu("v_lshrrev_b32", f"v{t1}", 3, f"v{t2}"))
    A(salu("s_lshl_b32", "s36", f"s{S_W}", 2))
    A(valu("v_add_u32", f"v{t1}", "s36", f"v{t1}"))
    A(valu("v_mul_lo_u32", f"v{V_X}", "s35", f"v{t1}"))
    A(valu("v_and_b32", f"v{t3}", 7, f"v{t2}"))
    A(valu("v_lshl_add_u32", f"v{V_X}", f"v{t3}", 7, f"v{V_X}"))
    A(valu("v_and_b32", f"v{t3}", 2, f"v{t2}"))
    A(valu("v_xor_b32", f"v{t3}", f"v{t3}", f"v{g}"))
    A(valu("v_lshl_add_u32", f"v{V_X}", f"v{t3}", 4, f"v{V_X}"))
    A(valu("v_add_u32", f"v{V_X}", WBASE + XREG, f"v{V_X}"))
    return L

BIAS = 4096
def prologue_role(P):
    role = P.role
    A = P.emit
    l, g, t1, t2, t3 = V_TMP
    A(valu("v_lshrrev_b32", f"v{t1}", 3, f"v{l}"))
    A(valu("v_and_b32", f"v{t2}", 7, f"v{l}"))
    A(salu("s_lshl_b32", "s35", "s33", 10))
    A(salu("s_add_u32", f"s{S_SRD0}", "s10", "s35"))
    A(salu("s_addc_u32", f"s{S_SRD0+1}", "s11", 0))
    A(salu("s_sub_u32", f"s{S_SRD0}", f"s{S_SRD0}", BIAS))
    A(salu("s_subb_u32", f"s{S_SRD0+1}", f"s{S_SRD0+1}", 0))
    A(salu("s_sub_u32", f"s{S_SRD0+2}", 576 * 8192 + BIAS, "s35"))
    A(salu("s_mov_b32", f"s{S_SRD0+3}", "0x00020000"))
    A(salu("s_mul_i32", "s35", "s34", 129024))
    A(salu("s_add_u32", f"s{S_SRD1}", "s4", "s35"))
    A(salu("s_addc_u32", f"s{S_SRD1+1}", "s5", 0))
    A(salu("s_mov_b32", f"s{S_SRD1+2}", 129024))
    A(salu("s_mov_b32", f"s{S_SRD1+3}", "0x00020000"))
    A(valu("v_bfe_u32", f"v{t3}", f"v{t1}", 1, 1))
    A(valu("v_lshlrev_b32", f"v{g}", 2, f"v{t3}"))
    A(valu("v_xor_b32", f"v{g}", f"v{g}", f"v{t2}"))
    A(valu("v_lshlrev_b32", f"v{g}", 4, f"v{g}"))
    A(valu("v_lshlrev_b32", f"v{t3}", 1, f"v{t3}"))
    A(valu("v_xor_b32", f"v{t3}", f"v{t3}", f"v{t2}"))
    A(valu("v_lshlrev_b32", f"v{t3}", 4, f"v{t3}"))
    A(valu("v_lshl_add_u32", f"v{V_DQ}", f"v{t1}", 13, f"v{g}"))
    A(salu("s_lshl_b32", "s35", f"s{S_W}", 16))
    A(valu("v_add_u32", f"v{V_DQ}", "s35", f"v{V_DQ}"))
    A(salu("s_lshl_b32", "s35", f"s{S_W}", 11))
    A(valu("v_lshl_add_u32", f"v{V_DV}", f"v{t1}", 8, f"v{g}"))
    A(valu("v_add_u32", f"v{V_DV}", "s35", f"v{V_DV}"))
    A(valu("v_lshl_add_u32", f"v{V_DK}", f"v{t1}", 8, f"v{t3}"))
    A(valu("v_add_u32", f"v{V_DK}", "s35", f"v{V_DK}"))
    A(salu("s_movk_i32", "s35", 1152))
    A(valu("v_mul_lo_u32", f"v{g}", "s35", f"v{t1}"))
    A(valu("v_add_u32", f"v{g}", f"v{g}", f"v{t3}"))
    A(salu("s_mul_i32", "s35", f"s{S_W}", 36864))
    for k in range(4):
        A(salu("s_add_u32", "s36", "s35", k * (9216 - 1088)))
        A(valu("v_add_u32", f"v{V_DX[k]}", "s36", f"v{g}"))
    A(salu("s_mul_i32", "s35", f"s{S_W}", 9216))
    A(valu("v_add_u32", f"v{V_DX[0] + 8}", "s35", f"v{g}"))
    A(salu("s_mul_i32", f"s{S_MV}", f"s{S_W}", 2056))
    A(salu("s_lshl_b32", f"s{S_MK}", f"s{S_W}", 11))
    A(salu("s_lshr_b32", "s35", f"s{S_W}", 1))
    A(salu("s_lshl_b32", "s35", "s35", 6))
    A(salu("s_add_u32", f"s{S_MK}", f"s{S_MK}", "s35"))
    A(salu("s_mul_i32", f"s{S_MX}", f"s{S_W}", 4352))
    A(salu("s_mul_i32", f"s{S_MO}", f"s{S_W}", 1088))
    A(salu("s_movk_i32", f"s{S_A}", BIAS))
    A(salu("s_movk_i32", f"s{S_A2}", BIAS - 896))
    A(salu("s_mov_b32", f"s{S_B2}", 0))
    P.ptr["Q"] = 0; P.ptr["X"] = 0
    A(dma_X4(P, 0, ("X", 0)))
    for n_ in range(8): A(dma_WQ4(P, n_, ("Q", n_)))
    A(dma_X4(P, 1, ("X", 1)))
    if OPT["pf"]:
        A(salu("s_mul_i32", "s35", "s34", 288))
        A(salu("s_mul_i32", "s36", f"s{S_W}", 72))
        A(salu("s_add_u32", "s35", "s35", "s36"))
        for k in range(2):
            A(valu("v_min_u32", f"v{t3}", 63 if k == 0 else 7, f"v{l}"))
            A(valu("v_add_u32", f"v{t3}", "s35", f"v{t3}"))
            A(valu("v_lshrrev_b32", f"v{g}", 3, f"v{t3}"))
            A(valu("v_lshlrev_b32", f"v{g}", 13, f"v{g}"))
            A(valu("v_and_b32", f"v{t3}", 7, f"v{t3}"))
            A(valu("v_lshl_add_u32", f"v{g}", f"v{t3}", 7, f"v{g}"))
            A(valu("v_add_u32", f"v{g}", BIAS, f"v{g}"))
            A(tagged(bload(1, "v0", f"v{g}", rs("s", S_SRD0, 4), 0, 0, flags=" nt" if OPT.get("pfnt") else ""), ("pf", 0)))
            A(salu("s_add_u32", "s35", "s35", 64))
        A(salu("s_and_b32", "s35", "s33", 1))
        A(salu("s_lshl_b32", "s35", "s35", 2))
        A(salu("s_add_u32", "s35", "s35", f"s{S_W}"))
        A(salu("s_mul_i32", "s35", "s35", 126 * 128))
        A(valu("v_lshlrev_b32", f"v{g}", 7, f"v{l}"))
        for k in range(2):
            A(tagged(bload(1, "v0", f"v{g}", rs("s", S_SRD1, 4), "s35", 0, flags=" nt" if OPT.get("pfnt") else ""), ("pf", 1)))
            A(salu("s_add_u32", "s35", "s35", 62 * 128))
    if OPT.get("cpf", 1):
        P.cpf_id = getattr(P, "cpf_id", role)
        A(raw("s_getpc_b64 s[36:37]", "salu"))
        A(label(f"L_cpf_{role}"))
        A(raw(f"s_sub_u32 s36, s36, L_cpf_{role}-L_code_start", "salu"))
        A(raw("s_subb_u32 s37, s37, 0", "salu"))
        A(salu("s_lshr_b32", "s35", "s2", 3))
        A(salu("s_lshl_b32", "s35", "s35", 2))
        A(salu("s_add_u32", "s35", "s35", f"s{S_W}"))
        A(salu("s_and_b32", "s35", "s35", 15))
        A(salu("s_lshl_b32", "s35", "s35", 13))
        A(valu("v_lshlrev_b32", f"v{g}", 7, f"v{l}"))
        A(valu("v_add_u32", f"v{g}", "s35", f"v{g}"))
        A(raw(f"s_mov_b32 s35, L_code_end-L_code_start-4", "salu"))
        A(valu("v_min_u32", f"v{g}", "s35", f"v{g}"))
        A(tagged(I(f"global_load_dword v0, v{g}, s[36:37]", "vmem", [("v", g), ("s", 36), ("s", 37)], [("v", 0)]), ("pf", 2)))
    A(salu("s_lshl_b32", "s35", "s34", 5))
    A(salu("s_lshl_b32", "s36", "s33", 2))
    A(salu("s_add_u32", "s35", "s35", "s36"))
    A(salu("s_lshl_b32", "s36", "s35", 17))
    A(salu("s_lshr_b32", "s37", "s35", 15))
    for srd, p in ((S_SRDK, 6), (S_SRDV, 8)):
        A(salu("s_add_u32", f"s{srd}", f"s{p}", "s36"))
        A(salu("s_addc_u32", f"s{srd+1}", f"s{p+1}", "s37"))
        A(salu("s_sub_u32", f"s{srd}", f"s{srd}", BIAS))
        A(salu("s_subb_u32", f"s{srd+1}", f"s{srd+1}", 0))
        A(salu("s_mov_b32", f"s{srd+2}", 524288 + BIAS))
        A(salu("s_mov_b32", f"s{srd+3}", "0x00020000"))
    A(salu("s_movk_i32", f"s{S_KP}", BIAS)); A(salu("s_movk_i32", f"s{S_KP2}", BIAS - 896))
    A(salu("s_movk_i32", f"s{S_VP}", BIAS)); A(salu("s_movk_i32", f"s{S_VP2}", BIAS - 896))
    P.ptr["K3"] = 0; P.ptr["V3"] = 0
    if OPT.get("rot", 0):
        A(salu("s_lshr_b32", "s35", "s2", 3))
        A(salu("s_add_u32", "s35", "s35", "s2"))
        A(salu("s_add_u32", "s35", "s35", 15))
        A(salu("s_and_b32", "s35", "s35", 15))
        A(salu("s_lshl_b32", f"s{S_KT}", "s35", 13))
        A(salu("s_mov_b32", f"s{S_VT}", f"s{S_KT}"))
        A(salu("s_movk_i32", f"s{S_KH}", BIAS))
        A(salu("s_movk_i32", f"s{S_VH}", BIAS))
        P.ptr["K3"] = -8192; P.ptr["V3"] = -8192
    A(salu("s_mul_i32", "s35", "s33", 512 * 1152))
    A(salu("s_add_u32", f"s{S_SRD2}", "s12", "s35"))
    A(salu("s_addc_u32", f"s{S_SRD2+1}", "s13", 0))
    A(salu("s_mov_b32", f"s{S_SRD2+2}", 512 * 1152))
    A(salu("s_mov_b32", f"s{S_SRD2+3}", "0x00020000"))
    A(salu("s_mul_i32", "s35", "s34", 72))
    A(salu("s_mul_i32", "s36", f"s{S_W}", 18))
    A(salu("s_add_u32", "s35", "s35", "s36"))
    A(valu("v_min_u32", f"v{t3}", 17, f"v{l}"))
    A(valu("v_add_u32", f"v{t3}", "s35", f"v{t3}"))
    A(valu("v_lshlrev_b32", f"v{V_PFO}", 7, f"v{t3}"))
    A(salu("s_mov_b32", f"s{S_PFOO}", 0))
    A(salu("s_mov_b32", f"s{S_C}", (-147456) & 0xffffffff))
    P.ptr["O"] = 0
    A(valu("v_lshlrev_b32", f"v{V_QL}", 4, f"v{l}"))
    A(patterns_common())
    nacc = 256 if role == "C" else 128
    for r in range(nacc): A(valu("v_accvgpr_write_b32", f"a{r}", 0))

def build_role(role, ctx):
    P = Prog(role)
    segs = {}
    def cut(name):
        segs.setdefault(name, []).append(P.out); P.out = []
    prologue_role(P); cut("pro")
    phase_Q4(P); cut("Q")
    q4_finish(P)
    for t in [("QF", 0)]: P.issued.add(t)
    cut("F")
    for r in range(4):
        phase_A(P, ctx, f"{role}B"); cut("AO")
    phase_O(P); cut("O")
    return segs

fold_id = [0]
def norm(t):
    t = re.sub(r"vmcnt\(\d+\) ?", "", t)
    t = re.sub(r"(L_tr_|L_back_)\w+", r"\1X", t)
    return re.sub(r"(--- barrier )\w+", r"\1X", t)
def fold(seq, p):
    chunks = [[]]
    for ins in seq:
        if ins.kind == "comment" and ins.text.startswith("; --- barrier"): chunks.append([])
        chunks[-1].append(ins)
    keys = ["\n".join(norm(i.text) for i in c) for c in chunks]
    best = (0, 0); n = len(chunks)
    for a in range(n):
        k = 1
        while a + (k + 1) * p <= n and all(keys[a + k * p + r] == keys[a + r] for r in range(p)): k += 1
        if k >= 2 and k > best[1]: best = (a, k)
    a, k = best
    if k < 2:
        print("fold failed"); return seq
    out = []
    for c in chunks[:a]: out += c
    for r in range(p):
        for it in range(1, k):
            for x, y in zip(chunks[a + r], chunks[a + it * p + r]):
                if x.kind == "wait" and x.text != y.text:
                    va, la = parse_wait(x.text); vb, lb = parse_wait(y.text)
                    vs = [q for q in (va, vb) if q is not None]
                    x.text = wait(min(vs) if vs else None, la).text
    fold_id[0] += 1
    lab = f"L_loop{fold_id[0]}"
    out.append(salu("s_mov_b32", f"s{S_LOOP}", k))
    out.append(label(lab))
    for c in chunks[a:a + p]: out += c
    out.append(salu("s_sub_u32", f"s{S_LOOP}", f"s{S_LOOP}", 1))
    out.append(salu("s_cmp_lg_u32", None, f"s{S_LOOP}", 0))
    out.append(raw(f"s_cbranch_scc1 {lab}", "branch"))
    for c in chunks[a + k * p:]: out += c
    print(f"fold: {n} chunks -> loop start {a} x{k} (period {p})")
    return out

def parse_wait(t):
    vm = re.search(r"vmcnt\((\d+)\)", t); lg = re.search(r"lgkmcnt\((\d+)\)", t)
    return (int(vm.group(1)) if vm else None, int(lg.group(1)) if lg else None)
def merge_instances(insts, name):
    base = insts[0]
    for other in insts[1:]:
        assert len(other) == len(base), (name, len(other), len(base))
        for a, b in zip(base, other):
            if a.text != b.text:
                assert a.kind == "wait" and b.kind == "wait", (name, a.text, b.text)
                va, la = parse_wait(a.text); vb, lb = parse_wait(b.text)
                assert la == lb, (a.text, b.text)
                vs = [x for x in (va, vb) if x is not None]
                a.text = wait(min(vs), la).text
    return base

NRED = 32 * 7 * 18 * 64 // 256
def reduce_kernel():
    L = []
    A = L.append
    ldf = {0: "", 1: " nt", 2: " sc1", 3: " sc0 sc1"}[OPT.get("rdnt", 0)]
    A(f"s_cmp_ge_u32 s2, {NRED}")
    A("s_cbranch_scc1 L_rend")
    A("s_load_dwordx2 s[4:5], s[0:1], 96")
    A("s_load_dwordx2 s[6:7], s[0:1], 80")
    A("v_lshrrev_b32 v1, 6, v0")
    A("v_and_b32 v3, 63, v0")
    A("v_readfirstlane_b32 s12, v1")
    A("s_lshl_b32 s13, s2, 2")
    A("s_add_u32 s13, s13, s12")
    A(f"s_mul_hi_u32 s8, s13, {(2**32 + 125) // 126}")
    A("s_mul_i32 s9, s8, 126")
    A("s_sub_u32 s9, s13, s9")
    A("s_lshr_b32 s10, s8, 4")
    A("s_and_b32 s11, s8, 15")
    A(f"s_mul_hi_u32 s14, s9, {(2**32 + 17) // 18}")
    A("s_mul_i32 s15, s14, 18")
    A("s_sub_u32 s15, s9, s15")
    A("v_lshlrev_b32 v2, 4, v3")
    A("s_lshl_b32 s27, s9, 10")
    A("v_add_u32 v2, s27, v2")
    A("v_and_b32 v4, 15, v3")
    A("v_lshrrev_b32 v5, 4, v3")
    A("s_waitcnt lgkmcnt(0)")
    A("s_mov_b32 s16, s4"); A("s_mov_b32 s17, s5"); A(f"s_mov_b32 s18, {256*PSZ}"); A("s_mov_b32 s19, 0x00020000")
    A("s_mov_b32 s20, s6"); A("s_mov_b32 s21, s7"); A(f"s_mov_b32 s22, {16*112*1152*2}"); A("s_mov_b32 s23, 0x00020000")
    A("s_lshl_b32 s26, s11, 4")
    A("s_lshl_b32 s25, s10, 2")
    A("s_add_u32 s26, s26, s25")
    for j in range(8):
        A(f"s_add_u32 s24, s26, {((j & 1) << 3) | (j >> 1)}")
        A(f"s_mul_i32 s24, s24, {PSZ}")
        A(f"buffer_load_dwordx4 v[{8+4*j}:{11+4*j}], v2, s[16:19], s24 offen{ldf}")
    A("s_mul_i32 s24, s11, 112")
    A("s_lshl_b32 s25, s14, 4")
    A("s_add_u32 s24, s24, s25")
    A("v_add_u32 v4, s24, v4")
    A("s_movk_i32 s25, 2304")
    A("v_mul_lo_u32 v4, s25, v4")
    A("s_mul_i32 s24, s10, 1152")
    A("s_lshl_b32 s25, s15, 6")
    A("s_add_u32 s24, s24, s25")
    A("v_lshl_add_u32 v4, v5, 3, v4")
    A("v_add_u32 v4, s24, v4")
    for j in range(8):
        A(f"s_waitcnt vmcnt({7-j})")
        for d in range(4):
            r = 8 + 4 * j + d
            if j == 0:
                A(f"v_lshlrev_b32 v{48+2*d}, 16, v{r}")
                A(f"v_and_b32 v{48+2*d+1}, 0xffff0000, v{r}")
            else:
                A(f"v_lshlrev_b32 v40, 16, v{r}")
                A(f"v_and_b32 v41, 0xffff0000, v{r}")
                A(f"v_add_f32 v{48+2*d}, v{48+2*d}, v40")
                A(f"v_add_f32 v{48+2*d+1}, v{48+2*d+1}, v41")
    for d in range(4):
        A(f"v_cvt_pk_bf16_f32 v{56+d}, v{48+2*d}, v{48+2*d+1}")
    osf = " nt" if OPT.get("ont") else ""
    A(f"buffer_store_dwordx2 v[56:57], v4, s[20:23], 0 offen{osf}")
    A(f"buffer_store_dwordx2 v[58:59], v4, s[20:23], 0 offen offset:32{osf}")
    A("L_rend:")
    A("s_endpgm")
    return "\n".join(L) + "\n"

def fused_tail():
    T = []
    A = lambda t: T.append(raw(t, "raw"))
    T.append(label("L_tail"))
    A("s_waitcnt vmcnt(0)")
    A("s_barrier")
    A("s_load_dwordx2 s[4:5], s[0:1], 88")
    A("s_load_dwordx2 s[6:7], s[0:1], 80")
    A("v_mbcnt_lo_u32_b32 v1, -1, 0")
    A("v_mbcnt_hi_u32_b32 v1, -1, v1")
    A("s_lshl_b32 s12, s32, 4")
    A("s_add_u32 s12, s12, s34")
    A("s_lshl_b32 s12, s12, 2")
    A("s_waitcnt lgkmcnt(0)")
    A("s_mov_b32 s8, s4"); A("s_mov_b32 s9, s5"); A("s_movk_i32 s10, 256"); A("s_mov_b32 s11, 0x00020000")
    A(f"s_cmp_lg_u32 s{S_W}, 0")
    A("s_cbranch_scc1 L_tail_wait")
    A("v_mov_b32 v2, 1")
    A("v_mov_b32 v3, 0")
    A("v_cmp_eq_u32 vcc, 0, v1")
    A("s_and_saveexec_b64 s[14:15], vcc")
    A("buffer_atomic_add v2, v3, s[8:11], s12 offen")
    A("s_mov_b64 exec, s[14:15]")
    A("s_waitcnt vmcnt(0)")
    A("s_mov_b32 s13, 0")
    T.append(label("L_poll"))
    A("buffer_load_dword v2, v3, s[8:11], s12 offen sc1")
    A("s_waitcnt vmcnt(0)")
    A("v_readfirstlane_b32 s16, v2")
    A("s_add_u32 s13, s13, 1")
    A("s_cmp_ge_u32 s16, 8")
    A("s_cbranch_scc1 L_tail_wait")
    A("s_sleep 1")
    A("s_cmp_lt_u32 s13, 0x400000")
    A("s_cbranch_scc1 L_poll")
    T.append(label("L_tail_wait"))
    A("s_barrier")
    T += pstamp(True)
    A("s_mov_b32 s16, s24"); A("s_mov_b32 s17, s25"); A(f"s_mov_b32 s18, {256*PSZ}"); A("s_mov_b32 s19, 0x00020000")
    A("s_mov_b32 s20, s6"); A("s_mov_b32 s21, s7"); A(f"s_mov_b32 s22, {16*112*1152*2}"); A("s_mov_b32 s23, 0x00020000")
    A("v_lshlrev_b32 v2, 4, v1")
    A("v_and_b32 v4, 15, v1")
    A("v_lshrrev_b32 v5, 4, v1")
    A("s_lshl_b32 s26, s33, 4")
    A(f"s_lshl_b32 s27, s{S_W}, 2")
    A("s_add_u32 s26, s26, s27")
    A("s_lshl_b32 s28, s34, 4")
    A("s_lshl_b32 s29, s32, 2")
    A("s_add_u32 s28, s28, s29")
    for k in range(4):
        for p in range(8):
            A(f"s_add_u32 s30, s28, {((p & 1) << 3) | (p >> 1)}")
            A(f"s_mul_i32 s30, s30, {PSZ}")
            A(f"s_add_u32 s31, s26, {k}")
            A("s_lshl_b32 s31, s31, 10")
            A("s_add_u32 s30, s30, s31")
            r = 16 + (k * 8 + p) * 4
            A(f"buffer_load_dwordx4 v[{r}:{r+3}], v2, s[16:19], s30 offen sc1")
    for k in range(4):
        A(f"s_add_u32 s31, s26, {k}")
        A(f"s_mul_hi_u32 s30, s31, {(2**32 + 17) // 18}")
        A("s_mul_i32 s29, s30, 18")
        A("s_sub_u32 s29, s31, s29")
        A("s_mul_i32 s27, s34, 112")
        A("s_lshl_b32 s30, s30, 4")
        A("s_add_u32 s27, s27, s30")
        A("v_add_u32 v6, s27, v4")
        A("s_movk_i32 s27, 2304")
        A("v_mul_lo_u32 v6, s27, v6")
        A("s_mul_i32 s27, s32, 1152")
        A("s_lshl_b32 s29, s29, 6")
        A("s_add_u32 s27, s27, s29")
        A("v_lshl_add_u32 v6, v5, 3, v6")
        A("v_add_u32 v6, s27, v6")
        for p in range(8):
            A(f"s_waitcnt vmcnt({min(63, (3 - k) * 8 + (7 - p) + 2 * 0)})" if False else f"s_waitcnt vmcnt({(3 - k) * 8 + (7 - p) + 2 * k})")
            for d in range(4):
                r = 16 + (k * 8 + p) * 4 + d
                if p == 0:
                    A(f"v_lshlrev_b32 v{8+2*d}, 16, v{r}")
                    A(f"v_and_b32 v{8+2*d+1}, 0xffff0000, v{r}")
                else:
                    A(f"v_lshlrev_b32 v3, 16, v{r}")
                    A(f"v_and_b32 v7, 0xffff0000, v{r}")
                    A(f"v_add_f32 v{8+2*d}, v{8+2*d}, v3")
                    A(f"v_add_f32 v{8+2*d+1}, v{8+2*d+1}, v7")
        for d in range(4):
            A(f"v_cvt_pk_bf16_f32 v{150+4*k+d}, v{8+2*d}, v{8+2*d+1}")
        A("s_cmp_ge_u32 s31, 126")
        A(f"s_cselect_b32 s27, 0x7f000000, 0")
        A(f"buffer_store_dwordx2 v[{150+4*k}:{151+4*k}], v6, s[20:23], s27 offen")
        A(f"buffer_store_dwordx2 v[{152+4*k}:{153+4*k}], v6, s[20:23], s27 offen offset:32")
    if DEBUG == "T":
        A("s_waitcnt vmcnt(0)")
        T += pstamp(True)
    A("s_endpgm")
    return T

def dbg_dump(base, n):
    L = []
    L.append(raw("s_waitcnt vmcnt(0) lgkmcnt(0)", "wait"))
    L.append(nop(15))
    L.append(salu("s_lshl_b32", "s88", "s2", 2))
    L.append(salu("s_add_u32", "s88", "s88", f"s{S_W}"))
    L.append(salu("s_lshl_b32", "s88", "s88", 14))
    L.append(salu("s_add_u32", "s88", "s88", 64 << 20))
    L.append(salu("s_mov_b32", "s84", "s24")); L.append(salu("s_mov_b32", "s85", "s25"))
    L.append(salu("s_mov_b32", "s86", 128 << 20)); L.append(salu("s_mov_b32", "s87", "0x00020000"))
    L.append(valu("v_mbcnt_lo_u32_b32", "v15", -1, 0))
    L.append(valu("v_mbcnt_hi_u32_b32", "v15", -1, "v15"))
    L.append(valu("v_lshlrev_b32", "v15", 2, "v15"))
    for r in range(n):
        if r and r % 16 == 0: L.append(salu("s_add_u32", "s88", "s88", 4096))
        L.append(bstore(1, f"v{base + r}", "v15", "s[84:87]", "s88", (r % 16) * 256))
    L.append(raw("s_waitcnt vmcnt(0)", "wait"))
    L.append(raw("s_endpgm", "end"))
    return L

def stamp_init():
    L = []
    L.append(salu("s_lshl_b32", "s88", "s2", 2))
    L.append(salu("s_add_u32", "s88", "s88", f"s{S_W}"))
    L.append(salu("s_lshl_b32", "s88", "s88", 11 if DEBUG == "G" else (10 if DEBUG == "F" else 8)))
    L.append(salu("s_add_u32", "s88", "s88", 100 << 20))
    L.append(salu("s_mov_b32", "s84", "s24")); L.append(salu("s_mov_b32", "s85", "s25"))
    L.append(salu("s_mov_b32", "s86", 128 << 20)); L.append(salu("s_mov_b32", "s87", "0x00020000"))
    return L
def pstamp(real=False):
    return [] if DEBUG == "G" else stamp(real)
def stamp(real=False):
    if DEBUG not in ("T", "F", "G"): return []
    L = []
    L.append(raw("s_memrealtime s[96:97]" if real else "s_memtime s[96:97]", "smem"))
    L.append(raw("s_waitcnt lgkmcnt(0)", "wait"))
    L.append(valu("v_mov_b32", "v18", "s96"))
    L.append(valu("v_mov_b32", "v19", 0))
    L.append(bstore(1, "v18", "v19", "s[84:87]", "s88", 0))
    L.append(salu("s_add_u32", "s88", "s88", 4))
    return L

def main(outpath):
    ctx = Ctx()
    FUSE = OPT.get("fuse", 1)
    from gcommon import KN
    name = KN if FUSE else MAIN
    if FUSE: txt = header([(KN, (256, 1, 1), (256, 1, 1), LDS_TOTAL)])
    else: txt = header([(MAIN, (256, 1, 1), (256, 1, 1), LDS_TOTAL), (RED, (NRED, 1, 1), (256, 1, 1), 0)])
    txt += kstart(name)
    body = [label("L_code_start")]
    pro = prologue_common()
    body += pro
    body.append(raw(f"s_cmp_ge_u32 s{S_W}, 3", "salu"))
    body.append(raw("s_cbranch_scc1 L_role_W_far", "branch"))
    allprobs = []
    for role in ("C", "W"):
        segs = build_role(role, ctx)
        nq = 2 if role == "C" else 1
        Q = segs["Q"][0]
        AO = merge_instances(segs["AO"], "AO")
        seq = []
        if role == "W": seq.append(label("L_role_W"))
        if DEBUG in ("T", "F", "G"): seq += stamp_init() + pstamp(True) + pstamp()
        seq += segs["pro"][0]
        seq += pstamp()
        seq += fold(Q, OPT.get("qper", 8)) if DEBUG not in ("F", "G") else Q
        seq += pstamp()
        seq += segs["F"][0]
        seq += pstamp()
        if DEBUG == "Q": seq += dbg_dump(V_QF, 32)
        seq.append(label(f"L_head_{role}"))
        seq += fold(AO, 4) if DEBUG not in ("F", "G") else AO
        seq += pstamp()
        if DEBUG == "O": seq += dbg_dump(V_OF, 32)
        seq.append(raw(f"s_add_u32 s{S_R}, s{S_R}, 1", "salu"))
        seq.append(raw(f"s_cmp_lt_u32 s{S_R}, 4", "salu"))
        seq.append(raw(f"s_cbranch_scc1 L_head_{role}", "branch"))
        seq += fold(segs["O"][0], 4) if DEBUG not in ("F", "G") else segs["O"][0]
        seq += pstamp()
        seq.append(raw("s_waitcnt vmcnt(0)", "wait"))
        seq += pstamp() + pstamp(True)
        if FUSE: seq.append(raw("s_branch L_tail", "branch"))
        else: seq.append(raw("s_endpgm", "end"))
        used = set(re.findall(r"s_cbranch_scc1 L_tr_(\w+)", "\n".join(i.text for i in seq)))
        for uid, par in ctx.slow.items():
            if uid in used: seq += trampoline(uid, f"L_slow_{role}{par}")
        for par in (0, 1):
            B = slow_routine(par, nq, f"L_slow_{role}{par}")
            allprobs += check_hazards(B, f"slow{role}{par}")
            seq += B
        lin = pro + segs["pro"][0] + Q + segs["F"][0] + AO + AO + segs["O"][0]
        allprobs += check_hazards(lin, role)
        if role == "C":
            body.append(raw("s_branch L_role_C", "branch"))
            body.append(label("L_role_W_far"))
            body.append(raw("s_getpc_b64 s[30:31]", "salu"))
            body.append(label("L_pcw"))
            body.append(raw("s_add_u32 s30, s30, L_role_W-L_pcw", "salu"))
            body.append(raw("s_addc_u32 s31, s31, 0", "salu"))
            body.append(raw("s_setpc_b64 s[30:31]", "branch"))
            body.append(label("L_end"))
            body.append(raw("s_endpgm", "end"))
            body.append(label("L_role_C"))
        body += seq
        if role == "C" and FUSE: body += fused_tail()
    body.append(label("L_code_end"))
    body.append(raw("s_endpgm", "end"))
    txt += "\n".join(i.text for i in body) + "\n"
    if not FUSE: txt += kstart(RED) + reduce_kernel()
    txt += kdesc(name, 512, sgpr=100, accum=256)
    if not FUSE: txt += kdesc(RED, 64, sgpr=40)
    open(outpath, "w").write(txt)
    for p in allprobs[:40]: print("HAZARD", p)
    print("instructions:", sum(1 for i in body if i.kind not in ("label", "comment")), "bytes of text", len(txt))

if __name__ == "__main__":
    if len(sys.argv) > 2: DEBUG = sys.argv[2]
    for a in sys.argv[3:]:
        k, v = a.split("="); OPT[k] = int(v)
    main(sys.argv[1] if len(sys.argv) > 1 else "k8.s")
```

```python
import sys, math, struct, re
from asmlib import *
sys.path.insert(0, "work")
from gcommon import header, kstart, kdesc

OPT = {"bar_delay": 2, "budget": 4, "barcost": 1, "postq": 4, "catchq": 4, "capf": 2, "pf": 1, "NB": 7, "wcap": 2}
DEBUG = ""
MAIN = "fa_main_kernel"
RED = "fa_reduce_kernel"

NKV = 5
TSLOT = 8256
VBASE = 0
KBASE = NKV * TSLOT
WBASE = 2 * NKV * TSLOT
XSLOT = 14 * 1088
XREG = 0
QREG = 3 * XSLOT
LDS_TOTAL = WBASE + QREG + 4 * TSLOT
PSZ = 7 * 18 * 1024
OGRP = 4352
def wqslot(s): return QREG + ((s + 2) % 4) * TSLOT
def xslot(p): return XREG + (p % 3) * XSLOT
def oslot(z): return [XREG, XREG + XSLOT, QREG, XREG + 2 * XSLOT][z % 4]

V_T = [1, 2]
V_K = 3
V_X = 4
V_W = [5, 6]
V_D = [7, 8, 9, 10]
V_L = [11, 12]
V_TS = [13, 14]
V_TMP = [15, 16, 17, 18, 19]
V_NEGM = 20
V_P = 28
V_S = [36, 52]
V_OACC = 68
V_OUTX = 132
V_QF = 164
V_OF = 196
V_AF = 228
VW_Q = [148, 149, 150, 151]
VW_X = [152, 153, 154, 155]
VW_K = [156, 157]
VW_V = [158, 159, 160, 161]
V_Q = [52, 53]

S_SRD0, S_SRD1, S_SRD2, S_SRDP = 40, 44, 48, 52
S_W, S_R = 56, 58
S_A, S_B2, S_C = 60, 61, 62
S_TMP = 63
S_KM = [64, 65, 66]
S_VM = [67, 68, 69]
S_G = [76, 77, 78]
S_CMP = 70
S_THR = 73
S_CSC = 72
S_T = 74
S_PFQO, S_PFOO = 79, 89
S_PFQ, S_PFO = 48, 80
S_RET = 90
S_SRDK, S_SRDV = 80, 92
S_KP, S_VP = 64, 65

SCALE = 1.4426950408889634 / math.sqrt(128.0)
def f32bits(x): return struct.unpack("<I", struct.pack("<f", x))[0]
def tagged(ins, tag):
    ins.tag = tag
    return ins

def outacc(nt, qt, nq):
    idx = nt * nq + qt
    if nq == 1: return rs("a", 4 * idx, 4)
    if idx < 64: return rs("a", 4 * idx, 4)
    return rs("v", V_OUTX + 4 * (idx - 64), 4)
def oacc(s, t, qt): return V_OACC + ((s * 2 + t) * 2 + qt) * 4

class Job:
    def __init__(self, epoch, mk, reads, fixed=()):
        self.epoch = epoch; self.mk = mk; self.reads = reads; self.fixed = fixed
        self.ops = []; self.buf = None; self.pre = []
class Epoch:
    def __init__(self, name, needs):
        self.name = name; self.needs = needs; self.fill = []; self.first = None; self.done_bar = False
class FillQ:
    def __init__(self, items, start, end, isdma=False):
        self.items = list(items); self.start = start; self.end = end; self.isdma = isdma
        self.maxper = OPT.get("dmaper", 2) if isdma else None

class Prog:
    def __init__(self, role):
        self.role = role
        self.nq = 2 if role == "C" else 1
        self.out = []; self.vq = []; self.lq = []; self.nop_id = 0; self.issued = set()
        self.ptr = {}
    def emit(self, ins):
        if isinstance(ins, list):
            for i in ins: self.emit(i)
            return
        if ins.kind == "vmem" and (OPT.get("nodma") or (OPT.get("nokv") and self.role == "C") or (OPT.get("now") and self.role == "W")):
            self.vq.append(ins.tag); self.issued.add(ins.tag)
            return
        if ins.kind == "vmem" and ins.text.endswith("lds") and self.out and ("s", 124) in self.out[-1].wr:
            self.out.append(nop(0))
        self.out.append(ins)
        if ins.kind in ("vmem", "vstore"):
            self.vq.append(ins.tag if ins.kind == "vmem" else "store")
            self.issued.add(ins.tag)
        if ins.kind == "lds":
            self.nop_id += 1
            self.lq.append(self.nop_id)
            return self.nop_id
    def vm_wait_for(self, tags):
        last = -1
        for i, t in enumerate(self.vq):
            if t in tags: last = i
        if last < 0: return None
        return len(self.vq) - 1 - last
    def do_wait(self, vm=None, lgkm=None):
        if vm is not None:
            vm = min(vm, 63)
            if vm == 0: self.vq = []
            elif vm < len(self.vq): self.vq = self.vq[len(self.vq) - vm:]
        if lgkm is not None:
            if lgkm == 0: self.lq = []
            elif lgkm < len(self.lq): self.lq = self.lq[len(self.lq) - lgkm:]
        self.emit(wait(vm, lgkm))
    def move_ptr(self, name, target, sregs=()):
        d = target - self.ptr[name]
        self.ptr[name] = target
        if d == 0: return []
        return [salu("s_add_u32", f"s{r}", f"s{r}", d & 0xffffffff) for r in sregs]

    def run_stream(self, jobs):
        NB = OPT["NB"]
        n = len(jobs)
        budget = OPT["budget"] if self.nq == 2 else OPT["budget"]
        if self.nq == 1: budget = 6
        for k, j in enumerate(jobs):
            if j.epoch.first is None: j.epoch.first = k
            j.epoch.last = k
        free = list(range(NB))
        for k, j in enumerate(jobs): j.want = k % NB
        nextrd = 0
        fq = []
        state = {"lastrd": -10, "dq": None}
        def issue_reads(j):
            b = j.want; free.remove(b); j.buf = b
            base = V_AF + 4 * b
            for kind, dst, addr, imm in j.fixed:
                j.ops.append(self.emit(ds_read(kind, dst, addr, imm)))
            sub = 0
            for kind, addr, imm in j.reads:
                w = 4 if kind == "b128" else 2
                j.ops.append(self.emit(ds_read(kind, rs("v", base + sub, w), addr, imm)))
                sub += w
            return len(j.fixed) + len(j.reads)
        def do_barrier(e, g):
            for t in e.needs: assert t in self.issued, ("not issued", e.name, t)
            vm = self.vm_wait_for(set(e.needs)) if e.needs else None
            self.emit(comment(f"--- barrier {e.name}"))
            if DEBUG == "G":
                self.do_wait(lgkm=0); self.emit(stamp())
            self.do_wait(vm=vm, lgkm=0)
            if DEBUG == "G": self.emit(stamp())
            self.emit(barrier())
            if DEBUG == "F": self.emit(stamp())
            e.done_bar = True
            for q in e.fill:
                if q.start < g: q.start = g
                if q.isdma and state["dq"] is not None:
                    state["dq"].items += q.items
                    state["dq"].end = max(state["dq"].end, q.end)
                elif q.isdma:
                    state["dq"] = q; fq.insert(0, q)
                else: fq.append(q)
        def wait_for(j):
            idx = -1
            for i, o in enumerate(self.lq):
                if o in j.ops: idx = i
            if idx >= 0:
                self.do_wait(lgkm=min(15, len(self.lq) - 1 - idx))
                return 1
            return 0
        def fillers(g, rem, force_ok):
            for q in fq:
                if not q.items or g < q.start: continue
                left_gaps = max(1, q.end - g + 1)
                cost = sum(i.cost for i in q.items) // 4
                must = cost - (left_gaps - 1) * (q.maxper if q.maxper else OPT["capf"])
                if g >= q.end: must = cost
                if not force_ok: must = 0
                lim = q.maxper if q.maxper else 99
                took = 0
                while q.items and (took < lim or took < must):
                    it = q.items[0]
                    c = max(1, it.cost // 4)
                    if isinstance(it.tag, tuple) and it.tag and it.tag[0] == "after" and g < it.tag[1]: break
                    if took >= must and c > rem: break
                    q.items.pop(0)
                    self.emit(it); took += c; rem -= c
            return rem
        def reads(g, quota):
            nonlocal nextrd
            nl = 0
            while nextrd < n:
                j = jobs[nextrd]; e = j.epoch
                if not e.done_bar: break
                cnt = len(j.fixed) + len(j.reads)
                if j.want in free and (nl + cnt <= quota or (nl == 0 and quota > 0)):
                    c = issue_reads(j); nl += c
                    nextrd += 1
                    state["lastrd"] = g
                else: break
            return nl
        def try_barrier(g):
            if nextrd < n:
                j = jobs[nextrd]; e = j.epoch
                lead = nextrd - (g + 1)
                if not e.done_bar and (g == -1 or g >= state["lastrd"] + OPT["bar_delay"] or lead <= 2):
                    do_barrier(e, g); return True
            return False
        def windowA(g):
            cap = OPT["wcap"]
            lead = nextrd - (g + 1)
            used = reads(g, 2 if lead >= NB - 1 else OPT["catchq"])
            fillers(g, cap - used, False)
        def windowB(g, cap):
            nx = g + 1
            used = 0
            didbar = try_barrier(g)
            if didbar: used += 2 + OPT["barcost"]
            elif nx < n and jobs[nx].ops: used += wait_for(jobs[nx])
            lead = nextrd - (g + 1)
            if g == -1: used += reads(g, 99)
            elif self.nq == 1: used += reads(g, OPT["postq"] if didbar else (OPT["catchq"] if lead < NB - 1 else 2))
            elif didbar or lead < NB - 2: used += reads(g, 2)
            late_wait = nx < n and any(o in self.lq for o in jobs[nx].ops)
            if late_wait: used += 1
            fillers(g, cap - used, True)
            if late_wait: wait_for(jobs[nx])
        windowB(-1, 99)
        for k in range(n):
            j = jobs[k]
            for p in j.pre:
                if callable(p): p(self)
                else: self.emit(p)
            ms = j.mk(rs("v", V_AF + 4 * j.buf, 4))
            if len(ms) == 2:
                self.emit(ms[0])
                windowA(k)
                self.emit(ms[1])
                free.append(j.buf)
                windowB(k, OPT["wcap"])
            else:
                self.emit(ms[0])
                free.append(j.buf)
                windowB(k, 6)
        for q in fq:
            while q.items: self.emit(q.items.pop(0))

def dma_KV(P, kind, n, tag):
    K = kind == "K"
    b = (KBASE if K else VBASE) + ((n % 16) % NKV) * TSLOT
    ptr, srd, pat, M = (S_A, S_SRD0, V_D[0], S_KM) if K else (S_B2, S_SRD1, V_D[1], S_VM)
    L = P.move_ptr(kind, n * 8192, sregs=(ptr,))
    for t in range(3):
        L.append(salu("s_add_u32", "m0", f"s{M[t]}", b))
        L.append(salu("s_add_u32", f"s{S_TMP}", f"s{ptr}", f"s{S_G[t]}"))
        L.append(tagged(dma(f"v{pat}", rs("s", srd, 4), f"s{S_TMP}", 0, nt=True), tag))
    return L
def dma_KV3(P, kind, n, tag):
    K = kind == "K"
    b = (KBASE if K else VBASE) + ((n % 16) % NKV) * TSLOT
    ptr, srd = (S_KP, S_SRDK) if K else (S_VP, S_SRDV)
    L = []
    for half in range(2):
        L.append(salu("s_mov_b32", "m0", b + half * (4096 + (64 if K else 16))))
        if half == 0: L += P.move_ptr(kind + "3", n * 8192, sregs=(ptr,))
        else: L.append(salu("s_add_u32", f"s{S_TMP}", f"s{ptr}", 4096))
        so = ptr if half == 0 else S_TMP
        if K: pats = ((VW_K[0], 0), (VW_K[1], 1024), (VW_K[0], 2048), (VW_K[1], 3072))
        else: pats = ((VW_V[0], 0), (VW_V[1], 1024), (VW_V[2], 2056), (VW_V[3], 3080))
        for v, imm in pats:
            L.append(tagged(dma(f"v{v}", rs("s", srd, 4), f"s{so}", imm, nt=True), tag))
    return L
def dma_WQ(P, n, tag):
    s = n % 18; hd = n // 18
    b = WBASE + wqslot(s)
    L = []
    for half in range(2):
        L.append(salu("s_mov_b32", "m0", b + half * (4096 + 16)))
        if half == 0: L += P.move_ptr("Q", hd * 256 + s * 262144, sregs=(S_A,))
        else: L.append(salu("s_add_u32", f"s{S_TMP}", f"s{S_A}", 131072))
        so = S_A if half == 0 else S_TMP
        for k, imm in enumerate((0, 1024, 2056, 3080)):
            L.append(tagged(dma(f"v{VW_Q[k]}", rs("s", S_SRD0, 4), f"s{so}", imm), tag))
    return L
def dma_X(P, p, tag):
    b = WBASE + xslot(p)
    L = []
    for grp in range(4):
        L.append(salu("s_mov_b32", "m0", b + grp * 4 * 1088))
        L += P.move_ptr("X", (p % 9) * 128 + grp * 4 * 9216, sregs=(S_B2,))
        for k in range(4 if grp < 3 else 2):
            L.append(tagged(dma(f"v{VW_X[k]}", rs("s", S_SRD1, 4), f"s{S_B2}", 1088 * k), tag))
    return L
def o_tile_info(z):
    s = (z % 16) >> 2
    starts = [0, 2, 4, 6, 9]
    q = z & 3
    return s, starts[q], starts[q + 1]
def dma_O(P, z, tag):
    s, c0, c1 = o_tile_info(z)
    hd = z // 16
    b = WBASE + oslot(z)
    L = []
    for cg in range(c0, c1):
        L.append(salu("s_mov_b32", "m0", b + (cg - c0) * OGRP))
        L += P.move_ptr("O", (hd * 128 + 32 * s) * 1152 + cg * 128, sregs=(S_C,))
        for k in range(4):
            L.append(tagged(dma(f"v{VW_X[k]}", rs("s", S_SRD2, 4), f"s{S_C}", 1088 * k, nt=bool(OPT.get("wont", 0))), tag))
    return L
def pf_wq():
    if not OPT["pf"]: return []
    return [tagged(bload(1, "v0", f"v{V_D[2]}", rs("s", S_PFQ, 4), f"s{S_PFQO}", 0), ("pf", 0)),
            salu("s_add_u32", f"s{S_PFQO}", f"s{S_PFQO}", 256)]
def pf_wo():
    if not OPT["pf"]: return []
    return [tagged(bload(1, "v0", f"v{V_D[3]}", rs("s", S_PFO, 4), f"s{S_PFOO}", 0), ("pf", 0)),
            salu("s_add_u32", f"s{S_PFOO}", f"s{S_PFOO}", 128 * 1152)]

CPRE_Q = {0: ("V", 0), 2: ("K", 3), 4: ("V", 2), 6: ("K", 4), 8: ("V", 3), 10: ("V", 4)}
CPRE_A = {13: ("K", 17), 14: ("K", 18), 15: ("K", 16), 16: ("V", 17)}
def phase_Q(P):
    role, nq = P.role, P.nq
    for k in range(2): P.emit(valu("v_add_u32", f"v{V_Q[k]}", WBASE + QREG, f"v{V_T[k]}"))
    jobs = []
    for st in range(18):
        needs = []
        if role == "W":
            needs = [("Q", st)] + ([("X", st >> 1)] if st % 2 == 0 else [])
        e = Epoch(f"Q{st}", needs)
        xb = V_S[0] + 8 * (st & 1)
        first = True
        for s in range(4):
            for t in range(2):
                base = wqslot(st) - QREG + (s >> 1) * 1024 + 8 * t
                addr = f"v{V_Q[s & 1]}"
                reads = [("tr", addr, base), ("tr", addr, base + 512)]
                fixed = []
                if first:
                    fixed = [("b128", rs("v", xb + 4 * qt, 4), f"v{V_X}", xslot(st >> 1) - XREG + (st & 1) * 64 + qt * 2176) for qt in range(nq)]
                    first = False
                def mk(a, s=s, t=t, st=st, xb=xb):
                    L = []
                    for qt in range(nq):
                        acc = rs("v", oacc(s, t, qt), 4)
                        L.append(mfma16(acc, a, rs("v", xb + 4 * qt, 4), "0" if st == 0 else acc))
                    return L
                jobs.append(Job(e, mk, reads, fixed))
        f = 8 * st
        d = []
        if role == "W":
            if st + 3 < 18: d += dma_WQ(P, st + 3, ("Q", st + 3))
            if st % 2 == 0 and (st >> 1) + 2 <= 8: d += dma_X(P, (st >> 1) + 2, ("X", (st >> 1) + 2))
            if st == 14: d += dma_O(P, 0, ("O", 0))
            if st == 16: d += dma_O(P, 1, ("O", 1)) + dma_O(P, 2, ("O", 2))
        elif st in CPRE_Q:
            kind, n = CPRE_Q[st]
            d += dma_KV(P, kind, n, (kind, n))
        if d: e.fill.append(FillQ(d, f - 8, f + (9 if role == "W" else 4), isdma=True))
    P.run_stream(jobs)
    P.emit(nop(7))
    for s in range(4):
        for qt in range(nq):
            for t in range(2):
                a = oacc(s, t, qt)
                for r in range(4):
                    P.emit(valu("v_mul_f32", f"v{a + r}", f"s{S_CSC}", f"v{a + r}"))
                for h in range(2):
                    P.emit(valu("v_cvt_pk_bf16_f32", f"v{V_QF + (s * 2 + qt) * 4 + 2 * t + h}", f"v{a + 2 * h}", f"v{a + 2 * h + 1}"))
    P.emit(nop(1))

class Ctx:
    def __init__(self): self.slow = {}

def xlane_reduce(op, reg, tmp):
    L = []
    L.append(valu("v_mov_b32", f"v{tmp}", f"v{reg}"))
    L.append(nop(1))
    L.append(valu("v_permlane32_swap_b32", f"v{reg}", f"v{tmp}"))
    L.append(valu(op, f"v{reg}", f"v{reg}", f"v{tmp}"))
    L.append(valu("v_mov_b32", f"v{tmp}", f"v{reg}"))
    L.append(nop(1))
    L.append(valu("v_permlane16_swap_b32", f"v{reg}", f"v{tmp}"))
    L.append(valu(op, f"v{reg}", f"v{reg}", f"v{tmp}"))
    return L

def max8(S, dst, T):
    return [valu("v_max3_f32", f"v{dst}", f"v{S}", f"v{S+1}", f"v{S+2}"),
            valu("v_max3_f32", f"v{T}", f"v{S+3}", f"v{S+4}", f"v{S+5}"),
            valu("v_max3_f32", f"v{dst}", f"v{dst}", f"v{S+6}", f"v{S+7}"),
            valu("v_max_f32", f"v{dst}", f"v{dst}", f"v{T}")]

def exp_items(S, nq, P_after):
    T = V_TMP
    L = []
    n = 0
    for qt in range(nq):
        for e in range(4):
            a = S + qt * 8 + 2 * e
            t0, t1 = T[1 + (2 * n) % 4], T[1 + (2 * n + 1) % 4]; n += 1
            L.append(valu("v_exp_f32", f"v{t0}", f"v{a}"))
            L.append(valu("v_exp_f32", f"v{t1}", f"v{a + 1}"))
            if e == 0: L.append(valu("v_mov_b32", f"v{V_TS[qt]}", f"v{t0}"))
            else: L.append(valu("v_add_f32", f"v{V_TS[qt]}", f"v{V_TS[qt]}", f"v{t0}"))
            L.append(valu("v_add_f32", f"v{V_TS[qt]}", f"v{V_TS[qt]}", f"v{t1}"))
            cv = valu("v_cvt_pk_bf16_f32", f"v{V_P + 4 * qt + e}", f"v{t0}", f"v{t1}")
            if P_after is not None: cv.tag = ("after", P_after)
            L.append(cv)
    return L

def first_tile_items(nq):
    S = V_S[0]; T = V_TMP
    L = []
    for qt in range(nq):
        L += max8(S + 8 * qt, T[0], T[1])
        L += xlane_reduce("v_max_f32", T[0], T[1])
        for r in range(4): L.append(valu("v_sub_f32", f"v{V_NEGM + 4 * qt + r}", 0, f"v{T[0]}"))
        for r in range(8): L.append(valu("v_sub_f32", f"v{S + 8 * qt + r}", f"v{S + 8 * qt + r}", f"v{T[0]}"))
        L.append(valu("v_mov_b32", f"v{V_L[qt]}", 0))
    return L

def make_check(ctx, i, name, nq):
    uid = f"{name}{i}"
    def f(P):
        if i > 0:
            if nq == 2:
                P.emit(valu("v_max_f32", f"v{V_TMP[0]}", f"v{V_TS[0]}", f"v{V_TS[1]}"))
                P.out.pop()
                P.emit(valu("v_add_f32", f"v{V_TMP[0]}", f"v{V_TS[0]}", f"v{V_TS[1]}"))
                src_ = V_TMP[0]
            else: src_ = V_TS[0]
            P.emit(valu("v_cmp_nle_f32", rs("s", S_CMP, 2), f"v{src_}", f"s{S_THR}"))
            P.emit(salu("s_cmp_lg_u64", None, rs("s", S_CMP, 2), 0))
            if not OPT.get("noslow"): P.emit(raw(f"s_cbranch_scc1 L_tr_{uid}", "branch"))
            P.emit(label(f"L_back_{uid}"))
        for qt in range(nq): P.emit(valu("v_add_f32", f"v{V_L[qt]}", f"v{V_L[qt]}", f"v{V_TS[qt]}"))
        if i == 0: P.emit(nop(0))
    if i > 0: ctx.slow[uid] = i & 1
    return f

def slow_routine(par, nq, lab):
    S = V_S[par]; S2 = V_S[1 - par]; T = V_TMP
    B = [label(lab), nop(7), nop(7)]
    for qt in range(nq):
        B += max8(S + 8 * qt, T[0], T[1])
        B += xlane_reduce("v_max_f32", T[0], T[1])
        B.append(valu("v_max_f32", f"v{T[0]}", 0, f"v{T[0]}"))
        B.append(valu("v_sub_f32", f"v{T[1]}", 0, f"v{T[0]}"))
        B.append(valu("v_exp_f32", f"v{T[1]}", f"v{T[1]}"))
        for r in range(4): B.append(valu("v_sub_f32", f"v{V_NEGM + 4 * qt + r}", f"v{V_NEGM + 4 * qt + r}", f"v{T[0]}"))
        B.append(valu("v_mul_f32", f"v{V_L[qt]}", f"v{V_L[qt]}", f"v{T[1]}"))
        for s in range(4):
            for t in range(2):
                for r in range(4):
                    a = oacc(s, t, qt) + r
                    B.append(valu("v_mul_f32", f"v{a}", f"v{a}", f"v{T[1]}"))
        for r in range(8):
            B.append(valu("v_sub_f32", f"v{S + 8 * qt + r}", f"v{S + 8 * qt + r}", f"v{T[0]}"))
            B.append(valu("v_sub_f32", f"v{S2 + 8 * qt + r}", f"v{S2 + 8 * qt + r}", f"v{T[0]}"))
    B += exp_items(S, nq, None)
    B.append(nop(1))
    B.append(raw(f"s_setpc_b64 s[{S_RET}:{S_RET+1}]", "branch"))
    return B
def trampoline(uid, slowlab):
    return [label(f"L_tr_{uid}"),
            raw(f"s_getpc_b64 s[{S_RET}:{S_RET+1}]", "salu"),
            label(f"L_pc_{uid}"),
            raw(f"s_add_u32 s{S_RET}, s{S_RET}, L_back_{uid}-L_pc_{uid}", "salu"),
            raw(f"s_addc_u32 s{S_RET+1}, s{S_RET+1}, -1", "salu"),
            raw(f"s_branch {slowlab}", "branch")]

def qk_jobs(e, i, nq):
    jobs = []
    S = V_S[i & 1]
    slot = i % NKV
    for kt in range(2):
        for s in range(4):
            def mk(a, kt=kt, s=s):
                L = []
                for qt in range(nq):
                    d = rs("v", S + qt * 8 + kt * 4, 4)
                    c = d if s > 0 else ("0" if i == 0 else rs("v", V_NEGM + 4 * qt, 4))
                    L.append(mfma16(d, a, rs("v", V_QF + (s * 2 + qt) * 4, 4), c))
                return L
            jobs.append(Job(e, mk, [("b128", f"v{V_K}", slot * TSLOT + (s >> 1) * 1024 + (s & 1) * 64 + kt * 512)]))
    return jobs
def pv_jobs(e, i, nq):
    jobs = []
    slot = i % NKV
    for s in range(4):
        for t in range(2):
            base = VBASE + slot * TSLOT + (s >> 1) * 1024 + 8 * t
            addr = f"v{V_T[s & 1]}"
            def mk(a, s=s, t=t):
                L = []
                for qt in range(nq):
                    acc = rs("v", oacc(s, t, qt), 4)
                    L.append(mfma16(acc, a, rs("v", V_P + 4 * qt, 4), "0" if i == 0 else acc))
                return L
            jobs.append(Job(e, mk, [("tr", addr, base), ("tr", addr, base + 512)]))
    return jobs
def o_jobs(e, z, nq):
    jobs = []
    s, c0, c1 = o_tile_info(z)
    for cg in range(c0, c1):
        for q4 in range(4):
            nt = 4 * cg + q4
            base = oslot(z) + (cg - c0) * OGRP + (q4 >> 1) * 64
            def mk(a, nt=nt):
                L = []
                for qt in range(nq):
                    acc = outacc(nt, qt, nq)
                    L.append(mfma16(acc, a, rs("v", V_OF + (s * 2 + qt) * 4, 4), acc))
                return L
            jobs.append(Job(e, mk, [("tr", f"v{V_W[q4 & 1]}", base), ("tr", f"v{V_W[q4 & 1]}", base + 512)]))
    return jobs

KSEQ = {i: (i + 6 if i <= 9 else 16 + (i % 6)) for i in range(16)}
VSEQ = {i: (i + 4 if i <= 11 else 16 + ((i - 2) % 6)) for i in range(2, 17)}
QPRE = {13: 20, 15: 18, 16: 19}

def phase_A(P, ctx, has_O, name):
    role, nq = P.role, P.nq
    jobs = []; eps = []
    def mine(kind, n): return (role == "C") == (n <= 4)
    e = Epoch(f"{name}pre", [("K", 0)] if role == "C" else []); eps.append(e)
    jobs += qk_jobs(e, 0, nq)
    starts = {}; qkfirst = {}
    for i in range(17):
        needs = []
        if i >= 1 and mine("V", i - 1): needs.append(("V", i - 1))
        if i + 1 <= 15 and mine("K", i + 1): needs.append(("K", i + 1))
        if role == "W" and has_O and i <= 15: needs.append(("O", i))
        e = Epoch(f"{name}{i}", needs); eps.append(e)
        starts[i] = len(jobs)
        if i >= 1:
            pj = pv_jobs(e, i - 1, nq)
            pj[0].pre.append(make_check(ctx, i - 1, name, nq))
            jobs += pj
        if has_O and i <= 15: jobs += o_jobs(e, i, nq)
        if i + 1 <= 15:
            qkfirst[i + 1] = len(jobs)
            jobs += qk_jobs(e, i + 1, nq)
    starts[17] = len(jobs)
    ft = first_tile_items(nq)
    jobs[qkfirst[1]].pre += [nop(7)] + ft + [nop(1)] if not has_O else []
    for i in range(17):
        e = eps[i + 1]; f = starts[i]
        if i <= 15:
            items = []
            if i == 0 and has_O:
                e.fill.append(FillQ(first_tile_items(nq), f + 1, qkfirst[1] - 2))
                st = qkfirst[1] - 1
            else: st = f + 1
            pa = f + 7 if i >= 1 else None
            e.fill.append(FillQ(exp_items(V_S[i & 1], nq, pa), st, starts[i + 1] - 1))
        d = []
        if role == "C":
            if i in CPRE_A:
                kind, n = CPRE_A[i]
                d += dma_KV(P, kind, n, (kind, n))
            if i == 0: d += pf_wq()
            if i == 1: d += pf_wo()
        else:
            if has_O and i + 3 <= 15: d += dma_O(P, i + 3, ("O", i + 3))
            if i + 5 <= 15: d += dma_KV3(P, "K", i + 5, ("K", i + 5))
            if 5 <= i + 3 <= 15: d += dma_KV3(P, "V", i + 3, ("V", i + 3))
            if i == 13: d += dma_X(P, 9, ("X", 9)) + dma_WQ(P, 18, ("Q", 18))
            if i == 14: d += dma_WQ(P, 19, ("Q", 19))
            if i == 15: d += dma_X(P, 10, ("X", 10)) + dma_WQ(P, 20, ("Q", 20))
        if d: e.fill.insert(0, FillQ(d, f - 8, max(f - 7, starts[i + 1] - 8), isdma=True))
    P.run_stream(jobs)
    def rb(t):
        if isinstance(t, tuple) and t[0] in ("K", "V") and t[1] >= 16: return (t[0], t[1] - 16)
        if isinstance(t, tuple) and t[0] == "Q" and t[1] >= 18: return ("Q", t[1] - 18)
        if isinstance(t, tuple) and t[0] == "X" and t[1] >= 9: return ("X", t[1] - 9)
        return ("old", 0)
    P.vq = [rb(t) for t in P.vq]
    P.issued = set(rb(t) for t in P.issued)
    if role == "C":
        P.ptr["K"] -= 16 * 8192; P.ptr["V"] -= 16 * 8192
    else:
        P.ptr["Q"] -= 256
        P.ptr["K3"] -= 16 * 8192; P.ptr["V3"] -= 16 * 8192
        if not has_O: P.emit(P.move_ptr("O", O_LAST, sregs=(S_C,)))
        P.ptr["O"] -= 128 * 1152
    T = V_TMP
    P.emit(nop(3))
    for qt in range(nq):
        P.emit(xlane_reduce("v_add_f32", V_L[qt], T[0]))
        P.emit(valu("v_rcp_f32", f"v{T[1 + qt]}", f"v{V_L[qt]}"))
    P.emit(nop(3))
    for s in range(4):
        for qt in range(nq):
            for t in range(2):
                a = oacc(s, t, qt)
                for r in range(4):
                    P.emit(valu("v_mul_f32", f"v{a + r}", f"v{a + r}", f"v{T[1 + qt]}"))
                for h in range(2):
                    P.emit(valu("v_cvt_pk_bf16_f32", f"v{V_OF + (s * 2 + qt) * 4 + 2 * t + h}", f"v{a + 2 * h}", f"v{a + 2 * h + 1}"))
    P.emit(nop(1))

def _olast():
    s, c0, c1 = o_tile_info(15)
    return (32 * s) * 1152 + (c1 - 1) * 128
O_LAST = _olast()

def phase_O(P):
    role, nq = P.role, P.nq
    if role == "W":
        P.do_wait(vm=0)
        for z in range(3): P.emit(dma_O(P, z, ("O", z)))
    jobs = []
    for z in range(16):
        e = Epoch(f"O{z}", [("O", z)] if role == "W" else [])
        f = len(jobs)
        jobs += o_jobs(e, z, nq)
        if role == "W" and z + 3 <= 15:
            e.fill.append(FillQ(dma_O(P, z + 3, ("O", z + 3)), f - 8, f + 2, isdma=True))
    P.run_stream(jobs)
    P.emit(nop(7))
    T = V_S[0]
    v = V_TMP[0]
    P.emit(valu("v_mbcnt_lo_u32_b32", f"v{v}", -1, 0))
    P.emit(valu("v_mbcnt_hi_u32_b32", f"v{v}", -1, f"v{v}"))
    P.emit(valu("v_lshlrev_b32", f"v{v}", 4, f"v{v}"))
    P.emit(salu("s_mul_i32", f"s{S_T}", f"s{S_W}", 2 * 18 * 1024))
    stf = {0: "", 1: " nt", 2: " sc1", 3: " sc0 sc1", 4: " sc0 sc1 nt"}[OPT.get("stnt", 0)]
    cnt = 0
    for qt in range(nq):
        for ntp in range(18):
            tb = T + 16 * (cnt % 2)
            srcs = []
            for h in range(2):
                a = outacc(2 * ntp + h, qt, nq)
                regs = parse_regs(a)
                if regs[0][0] == "a":
                    for r in range(4):
                        P.emit(valu("v_accvgpr_read_b32", f"v{tb + 4 * h + r}", f"a{regs[r][1]}"))
                    srcs.append(tb + 4 * h)
                else: srcs.append(regs[0][1])
            for h in range(2):
                for d in range(2):
                    P.emit(valu("v_cvt_pk_bf16_f32", f"v{tb + 8 + 2 * h + d}", f"v{srcs[h] + 2 * d}", f"v{srcs[h] + 2 * d + 1}"))
            off = cnt * 1024
            if off % 4096 == 0 and off > 0: P.emit(salu("s_add_u32", f"s{S_T}", f"s{S_T}", 4096))
            if not OPT.get("nost"): P.emit(bstore(4, rs("v", tb + 8, 4), f"v{v}", rs("s", S_SRDP, 4), f"s{S_T}", off % 4096, flags=stf))
            cnt += 1

def prologue_common():
    L = []
    A = L.append
    A(raw("s_cmp_ge_u32 s2, 256", "salu", wr=[("scc",0)]))
    A(raw("s_cbranch_scc1 L_end", "branch"))
    A(raw("s_load_dwordx16 s[4:19], s[0:1], 0", "smem"))
    A(raw("s_load_dwordx4 s[20:23], s[0:1], 64", "smem"))
    A(raw("s_load_dwordx2 s[24:25], s[0:1], 96", "smem"))
    A(valu("v_lshrrev_b32", "v1", 6, "v0"))
    A(valu("v_and_b32", f"v{V_TMP[0]}", 63, "v0"))
    A(valu("v_readfirstlane_b32", f"s{S_W}", "v1"))
    A(salu("s_and_b32", "s30", "s2", 7))
    A(salu("s_lshr_b32", "s31", "s2", 3))
    A(salu("s_lshr_b32", "s32", "s30", 2))
    A(salu("s_and_b32", "s33", "s30", 3))
    A(salu("s_lshl_b32", "s33", "s33", 1))
    A(salu("s_and_b32", "s34", "s31", 1))
    A(salu("s_add_u32", "s33", "s33", "s34"))
    A(salu("s_lshr_b32", "s34", "s31", 1))
    A(salu("s_mov_b32", f"s{S_R}", 0))
    A(raw("s_waitcnt lgkmcnt(0)", "wait"))
    A(salu("s_cmp_eq_u32", None, "s32", 0))
    for d, a, b in ((4, 4, 14), (6, 6, 16), (8, 8, 18), (10, 10, 20), (12, 12, 22)):
        A(salu("s_cselect_b32", f"s{d}", f"s{a}", f"s{b}"))
        A(salu("s_cselect_b32", f"s{d+1}", f"s{a+1}", f"s{b+1}"))
    return L

def patterns_common():
    L = []
    A = L.append
    A(salu("s_mov_b32", f"s{S_CSC}", hex(f32bits(SCALE))))
    A(salu("s_mov_b32", f"s{S_THR}", hex(f32bits(4096.0))))
    A(salu("s_mul_i32", "s35", "s2", PSZ))
    A(salu("s_add_u32", f"s{S_SRDP}", "s24", "s35"))
    A(salu("s_addc_u32", f"s{S_SRDP+1}", "s25", 0))
    A(salu("s_mov_b32", f"s{S_SRDP+2}", PSZ))
    A(salu("s_mov_b32", f"s{S_SRDP+3}", "0x00020000"))
    l, g, t1, t2, t3 = V_TMP
    A(valu("v_lshrrev_b32", f"v{g}", 4, f"v{l}"))
    A(valu("v_bfe_u32", f"v{t1}", f"v{l}", 2, 2))
    A(valu("v_and_b32", f"v{t2}", 3, f"v{l}"))
    A(salu("s_movk_i32", "s35", 2056))
    A(valu("v_mul_lo_u32", f"v{V_T[0]}", "s35", f"v{g}"))
    A(valu("v_lshl_add_u32", f"v{V_T[0]}", f"v{t1}", 7, f"v{V_T[0]}"))
    A(valu("v_lshrrev_b32", f"v{t3}", 1, f"v{t1}"))
    A(valu("v_lshl_add_u32", f"v{V_T[0]}", f"v{t3}", 6, f"v{V_T[0]}"))
    A(valu("v_lshl_add_u32", f"v{V_T[0]}", f"v{t2}", 4, f"v{V_T[0]}"))
    A(valu("v_xor_b32", f"v{t3}", 1, f"v{t3}"))
    A(valu("v_mul_lo_u32", f"v{V_T[1]}", "s35", f"v{g}"))
    A(valu("v_lshl_add_u32", f"v{V_T[1]}", f"v{t1}", 7, f"v{V_T[1]}"))
    A(valu("v_lshl_add_u32", f"v{V_T[1]}", f"v{t3}", 6, f"v{V_T[1]}"))
    A(valu("v_lshl_add_u32", f"v{V_T[1]}", f"v{t2}", 4, f"v{V_T[1]}"))
    A(salu("s_movk_i32", "s35", 1088))
    A(valu("v_mul_lo_u32", f"v{V_W[0]}", "s35", f"v{g}"))
    A(valu("v_lshl_add_u32", f"v{V_W[0]}", f"v{t1}", 7, f"v{V_W[0]}"))
    A(valu("v_lshrrev_b32", f"v{t3}", 1, f"v{t1}"))
    A(valu("v_lshl_add_u32", f"v{V_W[0]}", f"v{t3}", 5, f"v{V_W[0]}"))
    A(valu("v_lshl_add_u32", f"v{V_W[0]}", f"v{t2}", 3, f"v{V_W[0]}"))
    A(valu("v_add_u32", f"v{V_W[0]}", WBASE, f"v{V_W[0]}"))
    A(valu("v_xor_b32", f"v{V_W[1]}", 32, f"v{V_W[0]}"))
    A(valu("v_lshlrev_b32", f"v{V_K}", 11, f"v{t1}"))
    A(valu("v_lshrrev_b32", f"v{t3}", 1, f"v{t1}"))
    A(valu("v_lshl_add_u32", f"v{V_K}", f"v{t3}", 6, f"v{V_K}"))
    A(valu("v_lshl_add_u32", f"v{V_K}", f"v{t2}", 7, f"v{V_K}"))
    A(valu("v_and_b32", f"v{t3}", 2, f"v{t2}"))
    A(valu("v_xor_b32", f"v{t3}", f"v{t3}", f"v{g}"))
    A(valu("v_lshl_add_u32", f"v{V_K}", f"v{t3}", 4, f"v{V_K}"))
    A(valu("v_add_u32", f"v{V_K}", KBASE, f"v{V_K}"))
    A(valu("v_and_b32", f"v{t2}", 15, f"v{l}"))
    A(valu("v_lshrrev_b32", f"v{t1}", 3, f"v{t2}"))
    A(salu("s_lshl_b32", "s36", f"s{S_W}", 2))
    A(valu("v_add_u32", f"v{t1}", "s36", f"v{t1}"))
    A(valu("v_mul_lo_u32", f"v{V_X}", "s35", f"v{t1}"))
    A(valu("v_and_b32", f"v{t3}", 7, f"v{t2}"))
    A(valu("v_lshl_add_u32", f"v{V_X}", f"v{t3}", 7, f"v{V_X}"))
    A(valu("v_and_b32", f"v{t3}", 2, f"v{t2}"))
    A(valu("v_xor_b32", f"v{t3}", f"v{t3}", f"v{g}"))
    A(valu("v_lshl_add_u32", f"v{V_X}", f"v{t3}", 4, f"v{V_X}"))
    A(valu("v_add_u32", f"v{V_X}", WBASE + XREG, f"v{V_X}"))
    return L

BIAS = 4096
def prologue_role(P):
    role = P.role
    A = P.emit
    l, g, t1, t2, t3 = V_TMP
    A(valu("v_lshrrev_b32", f"v{t1}", 3, f"v{l}"))
    A(valu("v_and_b32", f"v{t2}", 7, f"v{l}"))
    if role == "C":
        A(salu("s_lshl_b32", "s35", "s33", 10))
        A(salu("s_add_u32", f"s{S_PFQ}", "s10", "s35"))
        A(salu("s_addc_u32", f"s{S_PFQ+1}", "s11", 0))
        A(salu("s_sub_u32", f"s{S_PFQ+2}", 576 * 8192, "s35"))
        A(salu("s_mov_b32", f"s{S_PFQ+3}", "0x00020000"))
        A(salu("s_mov_b32", f"s{S_PFQO}", 0))
        A(salu("s_mul_i32", "s35", "s34", 72))
        A(salu("s_mul_i32", "s36", f"s{S_W}", 24))
        A(salu("s_add_u32", "s35", "s35", "s36"))
        A(valu("v_min_u32", f"v{t3}", 23, f"v{l}"))
        A(valu("v_add_u32", f"v{t3}", "s35", f"v{t3}"))
        A(valu("v_lshlrev_b32", f"v{V_D[3]}", 7, f"v{t3}"))
        A(valu("v_lshrrev_b32", f"v{g}", 1, f"v{t3}"))
        A(valu("v_lshlrev_b32", f"v{g}", 13, f"v{g}"))
        A(valu("v_and_b32", f"v{t3}", 1, f"v{t3}"))
        A(valu("v_lshl_add_u32", f"v{V_D[2]}", f"v{t3}", 7, f"v{g}"))
        A(pf_wq())
        if OPT["pf"]:
            A(salu("s_mul_i32", "s35", "s34", 129024))
            A(salu("s_add_u32", "s92", "s4", "s35"))
            A(salu("s_addc_u32", "s93", "s5", 0))
            A(salu("s_mov_b32", "s94", 129024))
            A(salu("s_mov_b32", "s95", "0x00020000"))
            A(salu("s_and_b32", "s35", "s33", 1))
            A(salu("s_mul_i32", "s35", "s35", 3))
            A(salu("s_add_u32", "s35", "s35", f"s{S_W}"))
            A(salu("s_mul_i32", "s35", "s35", 168 * 128))
            A(valu("v_lshlrev_b32", f"v{g}", 7, f"v{l}"))
            for k in range(3):
                A(tagged(bload(1, "v0", f"v{g}", "s[92:95]", "s35", 0), ("pf", 1)))
                A(salu("s_add_u32", "s35", "s35", 52 * 128))
        A(salu("s_lshl_b32", "s35", "s34", 5))
        A(salu("s_lshl_b32", "s36", "s33", 2))
        A(salu("s_add_u32", "s35", "s35", "s36"))
        A(salu("s_lshl_b32", "s36", "s35", 17))
        A(salu("s_lshr_b32", "s37", "s35", 15))
        for srd, p in ((S_SRD0, 6), (S_SRD1, 8)):
            A(salu("s_add_u32", f"s{srd}", f"s{p}", "s36"))
            A(salu("s_addc_u32", f"s{srd+1}", f"s{p+1}", "s37"))
            A(salu("s_mov_b32", f"s{srd+2}", 524288))
            A(salu("s_mov_b32", f"s{srd+3}", "0x00020000"))
        A(valu("v_bfe_u32", f"v{t3}", f"v{t1}", 1, 1))
        A(valu("v_lshlrev_b32", f"v{g}", 1, f"v{t3}"))
        A(valu("v_xor_b32", f"v{g}", f"v{g}", f"v{t2}"))
        A(valu("v_lshlrev_b32", f"v{g}", 4, f"v{g}"))
        A(valu("v_lshl_add_u32", f"v{V_D[0]}", f"v{t1}", 8, f"v{g}"))
        A(valu("v_lshlrev_b32", f"v{g}", 2, f"v{t3}"))
        A(valu("v_xor_b32", f"v{g}", f"v{g}", f"v{t2}"))
        A(valu("v_lshlrev_b32", f"v{g}", 4, f"v{g}"))
        A(valu("v_lshl_add_u32", f"v{V_D[1]}", f"v{t1}", 8, f"v{g}"))
        for t in range(3):
            A(salu("s_mul_i32", "s35", f"s{S_W}", 3))
            A(salu("s_add_u32", "s35", "s35", t))
            A(salu("s_lshr_b32", "s36", "s35", 1))
            A(salu("s_and_b32", "s37", "s35", 1))
            A(salu("s_lshl_b32", f"s{S_G[t]}", "s36", 11))
            A(salu("s_lshl_b32", "s37", "s37", 7))
            A(salu("s_add_u32", f"s{S_G[t]}", f"s{S_G[t]}", "s37"))
            A(salu("s_lshl_b32", "s38", "s35", 10))
            A(salu("s_lshr_b32", "s37", "s36", 1))
            A(salu("s_lshl_b32", "s37", "s37", 6))
            A(salu("s_add_u32", f"s{S_KM[t]}", "s38", "s37"))
            A(salu("s_lshl_b32", "s37", "s36", 3))
            A(salu("s_add_u32", f"s{S_VM[t]}", "s38", "s37"))
            A(salu("s_cmp_ge_u32", None, "s35", 8))
            A(salu("s_cselect_b32", f"s{S_KM[t]}", 163840, f"s{S_KM[t]}"))
            A(salu("s_cselect_b32", f"s{S_VM[t]}", 163840, f"s{S_VM[t]}"))
            A(salu("s_cselect_b32", f"s{S_G[t]}", 0x7f000000, f"s{S_G[t]}"))
        A(salu("s_mov_b32", f"s{S_A}", 0))
        A(salu("s_mov_b32", f"s{S_B2}", 0))
        A(salu("s_mul_i32", "s35", "s33", 512 * 1152))
        A(salu("s_add_u32", f"s{S_PFO}", "s12", "s35"))
        A(salu("s_addc_u32", f"s{S_PFO+1}", "s13", 0))
        A(salu("s_mov_b32", f"s{S_PFO+2}", 512 * 1152))
        A(salu("s_mov_b32", f"s{S_PFO+3}", "0x00020000"))
        A(salu("s_mov_b32", f"s{S_PFOO}", 0))
        P.ptr["K"] = 0; P.ptr["V"] = 0
        for kind, n in (("K", 0), ("K", 1), ("K", 2), ("V", 1)):
            A(dma_KV(P, kind, n, (kind, n)))
        A(P.move_ptr("K", 0, sregs=(S_A,)))
        A(patterns_common())
    else:
        A(salu("s_lshl_b32", "s35", "s33", 10))
        A(salu("s_add_u32", f"s{S_SRD0}", "s10", "s35"))
        A(salu("s_addc_u32", f"s{S_SRD0+1}", "s11", 0))
        A(salu("s_sub_u32", f"s{S_SRD0}", f"s{S_SRD0}", BIAS))
        A(salu("s_subb_u32", f"s{S_SRD0+1}", f"s{S_SRD0+1}", 0))
        A(salu("s_sub_u32", f"s{S_SRD0+2}", 576 * 8192 + BIAS, "s35"))
        A(salu("s_mov_b32", f"s{S_SRD0+3}", "0x00020000"))
        A(salu("s_mul_i32", "s35", "s34", 129024))
        A(salu("s_add_u32", f"s{S_SRD1}", "s4", "s35"))
        A(salu("s_addc_u32", f"s{S_SRD1+1}", "s5", 0))
        A(salu("s_mov_b32", f"s{S_SRD1+2}", 129024))
        A(salu("s_mov_b32", f"s{S_SRD1+3}", "0x00020000"))
        A(valu("v_bfe_u32", f"v{t3}", f"v{t1}", 1, 1))
        A(valu("v_lshlrev_b32", f"v{t3}", 2, f"v{t3}"))
        A(valu("v_xor_b32", f"v{t3}", f"v{t3}", f"v{t2}"))
        A(valu("v_lshlrev_b32", f"v{t3}", 4, f"v{t3}"))
        A(valu("v_lshl_add_u32", f"v{g}", f"v{t1}", 13, f"v{t3}"))
        for k, add in enumerate((0, 128 - 1024, 65536 - 2056, 65664 - 3080)):
            A(valu("v_add_u32", f"v{VW_Q[k]}", BIAS + add, f"v{g}"))
        A(salu("s_movk_i32", "s35", 1152))
        A(valu("v_mul_lo_u32", f"v{g}", "s35", f"v{t1}"))
        A(valu("v_bfe_u32", f"v{t3}", f"v{t1}", 1, 1))
        A(valu("v_lshlrev_b32", f"v{t3}", 1, f"v{t3}"))
        A(valu("v_xor_b32", f"v{t3}", f"v{t3}", f"v{t2}"))
        A(valu("v_lshl_add_u32", f"v{g}", f"v{t3}", 4, f"v{g}"))
        for k in range(4):
            A(valu("v_add_u32", f"v{VW_X[k]}", k * (9216 - 1088), f"v{g}"))
        A(salu("s_mov_b32", f"s{S_A}", 0))
        A(salu("s_mov_b32", f"s{S_B2}", 0))
        P.ptr["Q"] = 0; P.ptr["X"] = 0
        A(dma_X(P, 0, ("X", 0))); A(dma_WQ(P, 0, ("Q", 0))); A(dma_WQ(P, 1, ("Q", 1))); A(dma_X(P, 1, ("X", 1))); A(dma_WQ(P, 2, ("Q", 2)))
        A(valu("v_lshlrev_b32", f"v{t3}", 4, f"v{t3}"))
        A(valu("v_lshl_add_u32", f"v{g}", f"v{t1}", 8, f"v{t3}"))
        A(valu("v_add_u32", f"v{VW_K[0]}", BIAS, f"v{g}"))
        A(valu("v_add_u32", f"v{VW_K[1]}", BIAS - 896, f"v{g}"))
        A(valu("v_bfe_u32", f"v{t3}", f"v{t1}", 1, 1))
        A(valu("v_lshlrev_b32", f"v{t3}", 2, f"v{t3}"))
        A(valu("v_xor_b32", f"v{t3}", f"v{t3}", f"v{t2}"))
        A(valu("v_lshlrev_b32", f"v{t3}", 4, f"v{t3}"))
        A(valu("v_lshl_add_u32", f"v{g}", f"v{t1}", 8, f"v{t3}"))
        for k, add in enumerate((0, -896, -8, -904)):
            A(valu("v_add_u32", f"v{VW_V[k]}", BIAS + add, f"v{g}"))
        A(salu("s_lshl_b32", "s35", "s34", 5))
        A(salu("s_lshl_b32", "s36", "s33", 2))
        A(salu("s_add_u32", "s35", "s35", "s36"))
        A(salu("s_lshl_b32", "s36", "s35", 17))
        A(salu("s_lshr_b32", "s37", "s35", 15))
        for srd, p in ((S_SRDK, 6), (S_SRDV, 8)):
            A(salu("s_add_u32", f"s{srd}", f"s{p}", "s36"))
            A(salu("s_addc_u32", f"s{srd+1}", f"s{p+1}", "s37"))
            A(salu("s_sub_u32", f"s{srd}", f"s{srd}", BIAS))
            A(salu("s_subb_u32", f"s{srd+1}", f"s{srd+1}", 0))
            A(salu("s_mov_b32", f"s{srd+2}", 524288 + BIAS))
            A(salu("s_mov_b32", f"s{srd+3}", "0x00020000"))
        A(salu("s_mov_b32", f"s{S_KP}", (-8192) & 0xffffffff))
        A(salu("s_mov_b32", f"s{S_VP}", (-8192) & 0xffffffff))
        P.ptr["K3"] = -8192; P.ptr["V3"] = -8192
        A(salu("s_mul_i32", "s35", "s33", 512 * 1152))
        A(salu("s_add_u32", f"s{S_SRD2}", "s12", "s35"))
        A(salu("s_addc_u32", f"s{S_SRD2+1}", "s13", 0))
        A(salu("s_mov_b32", f"s{S_SRD2+2}", 512 * 1152))
        A(salu("s_mov_b32", f"s{S_SRD2+3}", "0x00020000"))
        A(salu("s_mov_b32", f"s{S_C}", (O_LAST - 2 * 147456) & 0xffffffff))
        P.ptr["O"] = O_LAST - 147456
        A(patterns_common())
    nacc = 256 if role == "C" else 144
    for r in range(nacc): A(valu("v_accvgpr_write_b32", f"a{r}", 0))
    if role == "C":
        for r in range(32): A(valu("v_mov_b32", f"v{V_OUTX + r}", 0))

def build_role(role, ctx):
    P = Prog(role)
    segs = {}
    def cut(name):
        segs.setdefault(name, []).append(P.out); P.out = []
    prologue_role(P); cut("pro")
    for r in range(4):
        phase_Q(P); cut("Q")
        if r == 0: phase_A(P, ctx, False, f"{role}A"); cut("A")
        else: phase_A(P, ctx, True, f"{role}B"); cut("AO")
    phase_O(P); cut("O")
    return segs

def parse_wait(t):
    vm = re.search(r"vmcnt\((\d+)\)", t); lg = re.search(r"lgkmcnt\((\d+)\)", t)
    return (int(vm.group(1)) if vm else None, int(lg.group(1)) if lg else None)
def merge_instances(insts, name):
    base = insts[0]
    for other in insts[1:]:
        assert len(other) == len(base), (name, len(other), len(base))
        for a, b in zip(base, other):
            if a.text != b.text:
                assert a.kind == "wait" and b.kind == "wait", (name, a.text, b.text)
                va, la = parse_wait(a.text); vb, lb = parse_wait(b.text)
                assert la == lb, (a.text, b.text)
                vs = [x for x in (va, vb) if x is not None]
                a.text = wait(min(vs), la).text
    return base

NRED = 32 * 7 * 18 * 64 // 256
def reduce_kernel():
    L = []
    A = L.append
    ldf = {0: "", 1: " nt", 2: " sc1", 3: " sc0 sc1"}[OPT.get("rdnt", 0)]
    A(f"s_cmp_ge_u32 s2, {NRED}")
    A("s_cbranch_scc1 L_rend")
    A("s_load_dwordx2 s[4:5], s[0:1], 96")
    A("s_load_dwordx2 s[6:7], s[0:1], 80")
    A("v_lshrrev_b32 v1, 6, v0")
    A("v_and_b32 v3, 63, v0")
    A("v_readfirstlane_b32 s12, v1")
    A("s_lshl_b32 s13, s2, 2")
    A("s_add_u32 s13, s13, s12")
    A(f"s_mul_hi_u32 s8, s13, {(2**32 + 125) // 126}")
    A("s_mul_i32 s9, s8, 126")
    A("s_sub_u32 s9, s13, s9")
    A("s_lshr_b32 s10, s8, 4")
    A("s_and_b32 s11, s8, 15")
    A(f"s_mul_hi_u32 s14, s9, {(2**32 + 17) // 18}")
    A("s_mul_i32 s15, s14, 18")
    A("s_sub_u32 s15, s9, s15")
    A("v_lshlrev_b32 v2, 4, v3")
    A("s_lshl_b32 s27, s9, 10")
    A("v_add_u32 v2, s27, v2")
    A("v_and_b32 v4, 15, v3")
    A("v_lshrrev_b32 v5, 4, v3")
    A("s_waitcnt lgkmcnt(0)")
    A("s_mov_b32 s16, s4"); A("s_mov_b32 s17, s5"); A(f"s_mov_b32 s18, {256*PSZ}"); A("s_mov_b32 s19, 0x00020000")
    A("s_mov_b32 s20, s6"); A("s_mov_b32 s21, s7"); A(f"s_mov_b32 s22, {16*112*1152*2}"); A("s_mov_b32 s23, 0x00020000")
    A("s_lshl_b32 s26, s11, 4")
    A("s_lshl_b32 s25, s10, 2")
    A("s_add_u32 s26, s26, s25")
    for j in range(8):
        A(f"s_add_u32 s24, s26, {((j & 1) << 3) | (j >> 1)}")
        A(f"s_mul_i32 s24, s24, {PSZ}")
        A(f"buffer_load_dwordx4 v[{8+4*j}:{11+4*j}], v2, s[16:19], s24 offen{ldf}")
    A("s_mul_i32 s24, s11, 112")
    A("s_lshl_b32 s25, s14, 4")
    A("s_add_u32 s24, s24, s25")
    A("v_add_u32 v4, s24, v4")
    A("s_movk_i32 s25, 2304")
    A("v_mul_lo_u32 v4, s25, v4")
    A("s_mul_i32 s24, s10, 1152")
    A("s_lshl_b32 s25, s15, 6")
    A("s_add_u32 s24, s24, s25")
    A("v_lshl_add_u32 v4, v5, 3, v4")
    A("v_add_u32 v4, s24, v4")
    for j in range(8):
        A(f"s_waitcnt vmcnt({7-j})")
        for d in range(4):
            r = 8 + 4 * j + d
            if j == 0:
                A(f"v_lshlrev_b32 v{48+2*d}, 16, v{r}")
                A(f"v_and_b32 v{48+2*d+1}, 0xffff0000, v{r}")
            else:
                A(f"v_lshlrev_b32 v40, 16, v{r}")
                A(f"v_and_b32 v41, 0xffff0000, v{r}")
                A(f"v_add_f32 v{48+2*d}, v{48+2*d}, v40")
                A(f"v_add_f32 v{48+2*d+1}, v{48+2*d+1}, v41")
    for d in range(4):
        A(f"v_cvt_pk_bf16_f32 v{56+d}, v{48+2*d}, v{48+2*d+1}")
    A("buffer_store_dwordx2 v[56:57], v4, s[20:23], 0 offen")
    A("buffer_store_dwordx2 v[58:59], v4, s[20:23], 0 offen offset:32")
    A("L_rend:")
    A("s_endpgm")
    return "\n".join(L) + "\n"

def dbg_dump(base, n):
    L = []
    L.append(raw("s_waitcnt vmcnt(0) lgkmcnt(0)", "wait"))
    L.append(nop(15))
    L.append(salu("s_lshl_b32", "s88", "s2", 2))
    L.append(salu("s_add_u32", "s88", "s88", f"s{S_W}"))
    L.append(salu("s_lshl_b32", "s88", "s88", 14))
    L.append(salu("s_add_u32", "s88", "s88", 64 << 20))
    L.append(salu("s_mov_b32", "s84", "s24")); L.append(salu("s_mov_b32", "s85", "s25"))
    L.append(salu("s_mov_b32", "s86", 128 << 20)); L.append(salu("s_mov_b32", "s87", "0x00020000"))
    L.append(valu("v_mbcnt_lo_u32_b32", "v15", -1, 0))
    L.append(valu("v_mbcnt_hi_u32_b32", "v15", -1, "v15"))
    L.append(valu("v_lshlrev_b32", "v15", 2, "v15"))
    for r in range(n):
        if r and r % 16 == 0: L.append(salu("s_add_u32", "s88", "s88", 4096))
        L.append(bstore(1, f"v{base + r}", "v15", "s[84:87]", "s88", (r % 16) * 256))
    L.append(raw("s_waitcnt vmcnt(0)", "wait"))
    L.append(raw("s_endpgm", "end"))
    return L

def stamp_init():
    L = []
    L.append(salu("s_lshl_b32", "s88", "s2", 2))
    L.append(salu("s_add_u32", "s88", "s88", f"s{S_W}"))
    L.append(salu("s_lshl_b32", "s88", "s88", 11 if DEBUG == "G" else (10 if DEBUG == "F" else 8)))
    L.append(salu("s_add_u32", "s88", "s88", 100 << 20))
    L.append(salu("s_mov_b32", "s84", "s24")); L.append(salu("s_mov_b32", "s85", "s25"))
    L.append(salu("s_mov_b32", "s86", 128 << 20)); L.append(salu("s_mov_b32", "s87", "0x00020000"))
    return L
def pstamp(real=False):
    return [] if DEBUG == "G" else stamp(real)
def stamp(real=False):
    if DEBUG not in ("T", "F", "G"): return []
    L = []
    L.append(raw("s_memrealtime s[96:97]" if real else "s_memtime s[96:97]", "smem"))
    L.append(raw("s_waitcnt lgkmcnt(0)", "wait"))
    L.append(valu("v_mov_b32", "v18", "s96"))
    L.append(valu("v_mov_b32", "v19", 0))
    L.append(bstore(1, "v18", "v19", "s[84:87]", "s88", 0))
    L.append(salu("s_add_u32", "s88", "s88", 4))
    return L

def main(outpath):
    ctx = Ctx()
    txt = header([(MAIN, (256, 1, 1), (256, 1, 1), LDS_TOTAL), (RED, (NRED, 1, 1), (256, 1, 1), 0)])
    txt += kstart(MAIN)
    body = []
    pro = prologue_common()
    body += pro
    body.append(raw(f"s_cmp_ge_u32 s{S_W}, 3", "salu"))
    body.append(raw("s_cbranch_scc1 L_role_W_far", "branch"))
    allprobs = []
    for role in ("C", "W"):
        segs = build_role(role, ctx)
        nq = 2 if role == "C" else 1
        Q = merge_instances(segs["Q"], "Q")
        AO = merge_instances(segs["AO"], "AO")
        seq = []
        if role == "W": seq.append(label("L_role_W"))
        if DEBUG in ("T", "F", "G"): seq += stamp_init() + pstamp(True) + pstamp()
        seq += segs["pro"][0]
        seq += pstamp()
        seq.append(label(f"L_head_{role}"))
        seq += Q
        seq += pstamp()
        if DEBUG == "Q": seq += dbg_dump(V_QF, 32)
        seq.append(raw(f"s_cmp_lg_u32 s{S_R}, 0", "salu"))
        seq.append(raw(f"s_cbranch_scc1 L_AO_{role}", "branch"))
        seq += segs["A"][0]
        seq += pstamp()
        if DEBUG == "O": seq += dbg_dump(V_OF, 32)
        seq.append(raw(f"s_mov_b32 s{S_R}, 1", "salu"))
        seq.append(raw(f"s_branch L_head_{role}", "branch"))
        seq.append(label(f"L_AO_{role}"))
        seq += AO
        seq += pstamp()
        seq.append(raw(f"s_add_u32 s{S_R}, s{S_R}, 1", "salu"))
        seq.append(raw(f"s_cmp_lt_u32 s{S_R}, 4", "salu"))
        seq.append(raw(f"s_cbranch_scc1 L_head_{role}", "branch"))
        seq += segs["O"][0]
        seq += pstamp()
        seq.append(raw("s_waitcnt vmcnt(0)", "wait"))
        seq += pstamp() + pstamp(True)
        seq.append(raw("s_endpgm", "end"))
        for uid, par in ctx.slow.items():
            if uid.startswith(role) and not OPT.get("noslow"): seq += trampoline(uid, f"L_slow_{role}{par}")
        for par in (0, 1):
            B = slow_routine(par, nq, f"L_slow_{role}{par}")
            allprobs += check_hazards(B, f"slow{role}{par}")
            seq += B
        lin = pro + segs["pro"][0] + Q + segs["A"][0] + Q + AO + Q + AO + segs["O"][0]
        allprobs += check_hazards(lin, role)
        if role == "C":
            body.append(raw("s_branch L_role_C", "branch"))
            body.append(label("L_role_W_far"))
            body.append(raw("s_getpc_b64 s[30:31]", "salu"))
            body.append(label("L_pcw"))
            body.append(raw("s_add_u32 s30, s30, L_role_W-L_pcw", "salu"))
            body.append(raw("s_addc_u32 s31, s31, 0", "salu"))
            body.append(raw("s_setpc_b64 s[30:31]", "branch"))
            body.append(label("L_end"))
            body.append(raw("s_endpgm", "end"))
            body.append(label("L_role_C"))
        body += seq
    txt += "\n".join(i.text for i in body) + "\n"
    txt += kstart(RED) + reduce_kernel()
    txt += kdesc(MAIN, 512, sgpr=100, accum=256)
    txt += kdesc(RED, 64, sgpr=40)
    open(outpath, "w").write(txt)
    for p in allprobs[:40]: print("HAZARD", p)
    print("instructions:", sum(1 for i in body if i.kind not in ("label", "comment")), "bytes of text", len(txt))

if __name__ == "__main__":
    if len(sys.argv) > 2: DEBUG = sys.argv[2]
    for a in sys.argv[3:]:
        k, v = a.split("="); OPT[k] = int(v)
    main(sys.argv[1] if len(sys.argv) > 1 else "k4.s")
```

```python
import sys, math, struct, re
from asmlib import *
sys.path.insert(0, "work")
from gcommon import header, kstart, kdesc

OPT = {"bar_delay": 2, "budget": 4, "barcost": 1, "postq": 4, "catchq": 4, "capf": 2, "pf": 1, "NB": 7, "wcap": 2}
DEBUG = ""
MAIN = "fa_main_kernel"
RED = "fa_reduce_kernel"

NKV = 4
TSLOT = 8256
VBASE = 0
KBASE = NKV * TSLOT
WBASE = 2 * NKV * TSLOT
XSLOT = 16 * 1088
XREG = 0
QREG = 3 * XSLOT
LDS_TOTAL = WBASE + QREG + 4 * TSLOT
PSZ = 7 * 18 * 1024
OGRP = 4352
def wqslot(s): return QREG + ((s + 2) % 4) * TSLOT
def xslot(p): return XREG + (p % 3) * XSLOT
def oslot(z): return [XREG, XREG + XSLOT, QREG, XREG + 2 * XSLOT][z % 4]

V_T = [1, 2]
V_K = 3
V_X = 4
V_W = [5, 6]
V_D = [7, 8, 9, 10]
V_L = [11, 12]
V_TS = [13, 14]
V_TMP = [15, 16, 17, 18, 19]
V_NEGM = 20
V_P = 28
V_S = [36, 52]
V_OACC = 68
V_OUTX = 132
V_QF = 164
V_OF = 196
V_AF = 228
VW_Q = [148, 149, 150, 151]
VW_X = [152, 153, 154, 155]
VW_K = [156, 157]
VW_V = [158, 159, 160, 161]
V_Q = [52, 53]
V_DK, V_DV, V_PFO, V_QL = 7, 8, 9, 10
V_DO = 4
V_DQ = 54
V_DX = [55, 56, 57, 58]

S_SRD0, S_SRD1, S_SRD2, S_SRDP = 40, 44, 48, 52
S_W, S_R = 56, 58
S_A, S_B2, S_C = 60, 61, 62
S_TMP = 63
S_KM = [64, 65, 66]
S_VM = [67, 68, 69]
S_G = [76, 77, 78]
S_CMP = 70
S_THR = 73
S_CSC = 72
S_CSC2 = 26
S_T = 74
S_PFQO, S_PFOO = 79, 89
S_PFQ, S_PFO = 48, 80
S_RET = 90
S_KT, S_KH, S_VT, S_VH = 4, 5, 6, 7
S_KP2, S_VP2, S_A2 = 66, 67, 68
S_MK, S_MV, S_MX, S_MO = 69, 76, 77, 78
S_LOOP = 39
S_SRDQ = 28
S_QFO = 38
QOFF = 48 << 20
S_SRDK, S_SRDV = 80, 92
S_KP, S_VP = 64, 65

SCALE = 1.4426950408889634 / math.sqrt(128.0)
def f32bits(x): return struct.unpack("<I", struct.pack("<f", x))[0]
def tagged(ins, tag):
    ins.tag = tag
    return ins

def outacc(nt, qt, nq):
    idx = nt * nq + qt
    if nq == 1: return rs("a", 4 * idx, 4)
    if idx < 64: return rs("a", 4 * idx, 4)
    return rs("v", V_OUTX + 4 * (idx - 64), 4)
def oacc(s, t, qt): return V_OACC + ((s * 2 + t) * 2 + qt) * 4

class Job:
    def __init__(self, epoch, mk, reads, fixed=()):
        self.epoch = epoch; self.mk = mk; self.reads = reads; self.fixed = fixed
        self.ops = []; self.buf = None; self.pre = []
class Epoch:
    def __init__(self, name, needs):
        self.name = name; self.needs = needs; self.fill = []; self.first = None; self.done_bar = False
class FillQ:
    def __init__(self, items, start, end, isdma=False):
        self.items = list(items); self.start = start; self.end = end; self.isdma = isdma
        self.maxper = OPT.get("dmaper", 2) if isdma else None

class Prog:
    def __init__(self, role):
        self.role = role
        self.nq = 2 if role == "C" else 1
        self.out = []; self.vq = []; self.lq = []; self.nop_id = 0; self.issued = set()
        self.ptr = {}
        self.first_tile = {}
    def emit(self, ins):
        if isinstance(ins, list):
            for i in ins: self.emit(i)
            return
        if ins.kind == "vmem" and isinstance(ins.tag, tuple) and ((OPT.get("noO") and ins.tag[0] == "O") or (OPT.get("noKV") and ins.tag[0] in ("K", "V")) or (OPT.get("noV") and ins.tag[0] == "V")):
            self.vq.append(ins.tag); self.issued.add(ins.tag)
            return
        if ins.kind == "vmem" and (OPT.get("nodma") or (OPT.get("nokv") and self.role == "C") or (OPT.get("now") and self.role == "W")):
            self.vq.append(ins.tag); self.issued.add(ins.tag)
            return
        if ins.kind == "vmem" and ins.text.endswith("lds") and self.out and ("s", 124) in self.out[-1].wr:
            self.out.append(nop(0))
        self.out.append(ins)
        if ins.kind in ("vmem", "vstore"):
            self.vq.append(ins.tag if ins.kind == "vmem" else "store")
            self.issued.add(ins.tag)
        if ins.kind == "lds":
            self.nop_id += 1
            self.lq.append(self.nop_id)
            return self.nop_id
    def vm_wait_for(self, tags):
        last = -1
        for i, t in enumerate(self.vq):
            if t in tags: last = i
        if last < 0: return None
        return len(self.vq) - 1 - last
    def do_wait(self, vm=None, lgkm=None):
        if vm is not None:
            vm = min(vm, 63)
            if vm == 0: self.vq = []
            elif vm < len(self.vq): self.vq = self.vq[len(self.vq) - vm:]
        if lgkm is not None:
            if lgkm == 0: self.lq = []
            elif lgkm < len(self.lq): self.lq = self.lq[len(self.lq) - lgkm:]
        self.emit(wait(vm, lgkm))
    def move_ptr(self, name, target, sregs=()):
        d = target - self.ptr[name]
        self.ptr[name] = target
        if d == 0: return []
        return [salu("s_add_u32", f"s{r}", f"s{r}", d & 0xffffffff) for r in sregs]

    def run_stream(self, jobs, NB=None, AFB=None, ahead=False):
        NB = NB or OPT["NB"]
        AFB = AFB or V_AF
        n = len(jobs)
        budget = OPT["budget"] if self.nq == 2 else OPT["budget"]
        if self.nq == 1: budget = 6
        for k, j in enumerate(jobs):
            if j.epoch.first is None: j.epoch.first = k
            j.epoch.last = k
        eps_list = []
        for j in jobs:
            if not eps_list or eps_list[-1] is not j.epoch: eps_list.append(j.epoch)
        for ei, e in enumerate(eps_list):
            e.idx = ei; e.vis = False
        free = list(range(NB))
        off = 0
        for e in eps_list:
            ne = e.last - e.first + 1
            for k in range(e.first, e.last + 1): jobs[k].want = (off + k - e.first) % NB
            skip = 0
            if NB == 7: skip = {24: 1, 28: 2, 8: 2}.get(ne, 0)
            off = (off + ne + skip) % NB
        nextrd = 0
        fq = []
        state = {"lastrd": -10, "dq": None}
        def issue_reads(j):
            b = j.want; free.remove(b); j.buf = b
            base = AFB + 4 * b
            for kind, dst, addr, imm in j.fixed:
                j.ops.append(self.emit(ds_read(kind, dst, addr, imm)))
            sub = 0
            for kind, addr, imm in j.reads:
                w = 4 if kind == "b128" else 2
                j.ops.append(self.emit(ds_read(kind, rs("v", base + sub, w), addr, imm)))
                sub += w
            return len(j.fixed) + len(j.reads)
        def do_barrier(e, g):
            needs = list(e.needs)
            if ahead:
                nxt = eps_list[e.idx + 1] if e.idx + 1 < len(eps_list) else None
                needs = (list(e.needs) if e.idx == 0 else []) + (list(nxt.needs) if nxt else [])
                if nxt: nxt.vis = True
            e.vis = True
            for t in needs: assert t in self.issued, ("not issued", e.name, t)
            vm = self.vm_wait_for(set(needs)) if needs else None
            self.emit(comment(f"--- barrier {e.name}"))
            if ahead and e.idx > 0:
                if vm is not None: self.do_wait(vm=vm)
                self.emit(barrier())
                e.done_bar = True
                activate(e, g)
                return
            if DEBUG == "G":
                self.do_wait(lgkm=0); self.emit(stamp())
            self.do_wait(vm=vm, lgkm=0 if not OPT.get("nolg") else None) if (vm is not None or not OPT.get("nolg")) else None
            if DEBUG == "G": self.emit(stamp())
            if not OPT.get("nobar"): self.emit(barrier())
            if DEBUG == "F": self.emit(stamp())
            e.done_bar = True
            activate(e, g)
        def activate(e, g):
            for q in e.fill:
                if q.start < g: q.start = g
                if q.isdma and state["dq"] is not None:
                    if not state["dq"].items: state["dq"].start = q.start
                    state["dq"].items += q.items
                    state["dq"].end = max(state["dq"].end, q.end)
                elif q.isdma:
                    state["dq"] = q; fq.insert(0, q)
                else: fq.append(q)
        def wait_for(j):
            idx = -1
            for i, o in enumerate(self.lq):
                if o in j.ops: idx = i
            if idx >= 0:
                self.do_wait(lgkm=min(15, len(self.lq) - 1 - idx))
                return 1
            return 0
        def fillers(g, rem, force_ok):
            for q in fq:
                if not q.items or g < q.start: continue
                left_gaps = max(1, q.end - g + 1)
                cost = sum(i.cost for i in q.items) // 4
                must = cost - (left_gaps - 1) * (q.maxper if q.maxper else OPT["capf"])
                if g >= q.end: must = cost
                if not force_ok: must = 0
                lim = q.maxper if q.maxper else 99
                took = 0
                while q.items and (took < lim or took < must):
                    it = q.items[0]
                    c = max(1, it.cost // 4)
                    if isinstance(it.tag, tuple) and it.tag and it.tag[0] == "after" and g < it.tag[1]: break
                    if took >= must and c > rem: break
                    q.items.pop(0)
                    self.emit(it); took += c; rem -= c
            return rem
        def reads(g, quota):
            nonlocal nextrd
            nl = 0
            while nextrd < n:
                j = jobs[nextrd]; e = j.epoch
                if not e.vis: break
                cnt = len(j.fixed) + len(j.reads)
                if j.want in free and (nl + cnt <= quota or (nl == 0 and quota > 0)):
                    c = issue_reads(j); nl += c
                    nextrd += 1
                    state["lastrd"] = g
                else: break
            return nl
        def try_barrier(g):
            if ahead:
                if g + 1 < n:
                    e = jobs[g + 1].epoch
                    if not e.done_bar and e.first == g + 1:
                        do_barrier(e, g); return True
                return False
            if nextrd < n:
                j = jobs[nextrd]; e = j.epoch
                lead = nextrd - (g + 1)
                if not e.done_bar and (g == -1 or g >= state["lastrd"] + OPT["bar_delay"] or lead <= 2):
                    do_barrier(e, g); return True
            return False
        def windowA(g):
            cap = OPT["wcap"]
            lead = nextrd - (g + 1)
            used = reads(g, 2 if lead >= NB - 1 else OPT["catchq"])
            fillers(g, cap - used, False)
        def windowB(g, cap):
            nx = g + 1
            used = 0
            didbar = try_barrier(g)
            if didbar: used += 2 + OPT["barcost"]
            if (not didbar or (ahead and g >= 0)) and nx < n and jobs[nx].ops: used += wait_for(jobs[nx])
            lead = nextrd - (g + 1)
            if g == -1: used += reads(g, 99)
            elif self.nq == 1: used += reads(g, OPT["postq"] if didbar else (OPT["catchq"] if lead < NB - 1 else 2))
            elif didbar or lead < NB - 2: used += reads(g, 2)
            late_wait = nx < n and any(o in self.lq for o in jobs[nx].ops)
            if late_wait: used += 1
            fillers(g, cap - used, True)
            if late_wait: wait_for(jobs[nx])
        windowB(-1, 99)
        for k in range(n):
            j = jobs[k]
            for p in j.pre:
                if callable(p): p(self)
                else: self.emit(p)
            ms = j.mk(rs("v", AFB + 4 * j.buf, 4))
            if len(ms) == 2:
                self.emit(ms[0])
                windowA(k)
                self.emit(ms[1])
                free.append(j.buf)
                windowB(k, OPT["wcap"])
            else:
                self.emit(ms[0])
                free.append(j.buf)
                windowB(k, 6)
        for q in fq:
            while q.items: self.emit(q.items.pop(0))

def dma_KVs(P, kind, n, tag):
    K = kind == "K"
    b = (KBASE if K else VBASE) + ((n % 16) % NKV) * TSLOT
    p1, p2, srd, pat, M = (S_KP, S_KP2, S_SRDK, V_DK, S_MK) if K else (S_VP, S_VP2, S_SRDV, V_DV, S_MV)
    L = [salu("s_add_u32", "m0", f"s{M}", b)]
    if OPT.get("rot", 0):
        rt, rh = (S_KT, S_KH) if K else (S_VT, S_VH)
        L.append(salu("s_add_u32", f"s{rt}", f"s{rt}", 8192))
        L.append(salu("s_and_b32", f"s{rt}", f"s{rt}", 0x1ffff))
        prev = P.ptr[kind + "3"] // 8192
        P.ptr[kind + "3"] = n * 8192
        assert n == prev + 1, (kind, n, prev)
        if n % 16 == 0 and not P.first_tile.get(kind, True): L.append(salu("s_add_u32", f"s{rh}", f"s{rh}", 131072))
        P.first_tile[kind] = False
        L.append(salu("s_add_u32", f"s{p1}", f"s{rt}", f"s{rh}"))
        L.append(salu("s_add_u32", f"s{p2}", f"s{p1}", (-896) & 0xffffffff))
    else:
        L += P.move_ptr(kind + "3", n * 8192, sregs=(p1, p2))
    L.append(tagged(dma(f"v{pat}", rs("s", srd, 4), f"s{p1}", 0, nt=True), tag))
    L.append(tagged(dma(f"v{pat}", rs("s", srd, 4), f"s{p2}", 1024, nt=True), tag))
    return L
def o_tile_info(z):
    s = (z % 16) >> 2
    starts = [0, 2, 4, 6, 9]
    q = z & 3
    return s, starts[q], starts[q + 1]
def dma_O(P, z, tag):
    s, c0, c1 = o_tile_info(z)
    hd = z // 16
    b = WBASE + oslot(z)
    L = []
    for cg in range(c0, c1):
        L.append(salu("s_add_u32", "m0", f"s{S_MO}", b + (cg - c0) * OGRP))
        mv = P.move_ptr("O", (hd * 128 + 32 * s) * 1152 + cg * 128, sregs=(S_C,))
        L += mv
        L.append(tagged(dma(f"v{V_DO}", rs("s", S_SRD2, 4), f"s{S_C}", 0, nt=bool(OPT.get("wont", 0))), tag))
    return L
def pf_wq():
    if not OPT["pf"]: return []
    return [tagged(bload(1, "v0", f"v{V_D[2]}", rs("s", S_PFQ, 4), f"s{S_PFQO}", 0), ("pf", 0)),
            salu("s_add_u32", f"s{S_PFQO}", f"s{S_PFQO}", 256)]
def pf_wo():
    if not OPT["pf"]: return []
    return [tagged(bload(1, "v0", f"v{V_PFO}", rs("s", S_SRD2, 4), f"s{S_PFOO}", 0, flags=" nt" if OPT.get("pfnt") else ""), ("pf", 0)),
            salu("s_add_u32", f"s{S_PFOO}", f"s{S_PFOO}", 128 * 1152)]

def q4acc(h, s, t, qt, nq):
    return (h * 8 + s * 2 + t) * nq * 4 + qt * 4
def xslot4(p): return (p % 2) * XSLOT
def dma_WQ4(P, eps, tag):
    st, h = eps // 4, eps % 4
    b = (eps % 8) * TSLOT
    L = [salu("s_add_u32", "m0", f"s{S_MV}", b)]
    L += P.move_ptr("Q", h * 256 + st * 262144, sregs=(S_A, S_A2))
    L.append(tagged(dma(f"v{V_DQ}", rs("s", S_SRD0, 4), f"s{S_A}", 0, nt=bool(OPT.get("wqnt", 0))), tag))
    L.append(tagged(dma(f"v{V_DQ}", rs("s", S_SRD0, 4), f"s{S_A2}", 1024, nt=bool(OPT.get("wqnt", 0))), tag))
    return L
def dma_X4(P, p, tag):
    b = WBASE + xslot4(p)
    L = [salu("s_add_u32", "m0", f"s{S_MX}", b)]
    L += P.move_ptr("X", p * 128, sregs=(S_B2,))
    for k in range(4):
        L.append(tagged(dma(f"v{V_DX[k]}", rs("s", S_SRD1, 4), f"s{S_B2}", 1088 * k, nt=bool(OPT.get("xnt", 0))), tag))
    return L

def phase_Q4(P):
    role, nq = P.role, P.nq
    jobs = []
    for m in range(36):
        st = m // 2
        needs = [("Q", 2 * m), ("Q", 2 * m + 1)] + ([("X", st >> 1)] if m % 4 == 0 else [])
        e = Epoch(f"Q{m}", needs)
        xb = V_S[0] + 8 * (st & 1)
        for hh in range(2):
            eps = 2 * m + hh
            h = eps % 4
            first = (h == 0)
            for s in range(4):
                for t in range(2):
                    base = (eps % 8) * TSLOT + (s >> 1) * 1024 + 8 * t
                    addr = f"v{V_T[s & 1]}"
                    reads = [("tr", addr, base), ("tr", addr, base + 512)]
                    fixed = []
                    if first:
                        fixed = [("b128", rs("v", xb + 4 * qt, 4), f"v{V_X}", xslot4(st >> 1) + (st & 1) * 64 + qt * 2176) for qt in range(nq)]
                        first = False
                    def mk(a, s=s, t=t, h=h, xb=xb):
                        L = []
                        for qt in range(nq):
                            acc = rs("a", q4acc(h, s, t, qt, nq), 4)
                            L.append(mfma16(acc, a, rs("v", xb + 4 * qt, 4), acc))
                        return L
                    jobs.append(Job(e, mk, reads, fixed))
        f = 16 * m
        d = []
        if m >= 1:
            d += dma_WQ4(P, 2 * (m + 3), ("Q", 2 * (m + 3))) + dma_WQ4(P, 2 * (m + 3) + 1, ("Q", 2 * (m + 3) + 1))
        if m % 4 == 0 and m >= 4: d += dma_X4(P, m // 4 + 1, ("X", m // 4 + 1))
        if d: e.fill.append(FillQ(d, f - 1, f + 10, isdma=True))
    P.run_stream(jobs, NB=8, AFB=V_OACC, ahead=True)

def q4_finish(P):
    role, nq = P.role, P.nq
    P.do_wait(vm=0, lgkm=0)
    P.emit(barrier())
    for kind, n in (("K", 0), ("K", 1), ("V", 0), ("K", 2), ("V", 1), ("K", 3)):
        P.emit(dma_KVs(P, kind, n, (kind, n)))
    P.emit(valu("v_mov_b32", f"v{V_DO}", f"v{V_DX[0] + 8}"))
    for z in range(3): P.emit(dma_O(P, z, ("O", z)))
    P.emit(nop(7))
    T = V_OACC
    v = V_TMP[0]
    P.emit(valu("v_mbcnt_lo_u32_b32", f"v{v}", -1, 0))
    P.emit(valu("v_mbcnt_hi_u32_b32", f"v{v}", -1, f"v{v}"))
    for h in range(4):
        dstbase = V_QF if h == 0 else V_OF
        for s in range(4):
            for qt in range(nq):
                for t in range(2):
                    a = q4acc(h, s, t, qt, nq)
                    tb = T + ((s * 2 + qt) * 2 + t) * 4
                    for r in range(4): P.emit(valu("v_accvgpr_read_b32", f"v{tb + r}", f"a{a + r}"))
                    for r in range(4): P.emit(valu("v_accvgpr_write_b32", f"a{a + r}", 0))
                    for r in range(0, 4, 2):
                        P.emit(valu("v_pk_mul_f32", rs("v", tb + r, 2), rs("v", tb + r, 2), rs("s", S_CSC2, 2)))
                    for hh in range(2):
                        P.emit(valu("v_cvt_pk_bf16_f32", f"v{dstbase + (s * 2 + qt) * 4 + 2 * t + hh}", f"v{tb + 2 * hh}", f"v{tb + 2 * hh + 1}"))
        if h > 0:
            for s in range(4):
                for qt in range(nq):
                    fr = s * 2 + qt
                    qsf = {0: "", 1: " nt", 2: " sc1", 3: " sc0 sc1"}[OPT.get("qst", 0)]
                    P.emit(bstore(4, rs("v", V_OF + fr * 4, 4), f"v{V_QL}", rs("s", S_SRDQ, 4), f"s{S_QFO}", (fr % 4) * 1024, flags=qsf) if fr < 4 else
                           bstore(4, rs("v", V_OF + fr * 4, 4), f"v{V_QL}", rs("s", S_SRDQ, 4), f"s{S_T}", (fr % 4) * 1024, flags=qsf))
            P.emit(salu("s_add_u32", f"s{S_QFO}", f"s{S_QFO}", 8192))
            P.emit(salu("s_add_u32", f"s{S_T}", f"s{S_T}", 8192))
    if role == "W":
        for r in range(128, 144): P.emit(valu("v_accvgpr_write_b32", f"a{r}", 0))
    else:
        for r in range(32): P.emit(valu("v_mov_b32", f"v{V_OUTX + r}", 0))
    if OPT.get("fwait", 0): P.do_wait(vm=0)
    else: P.emit(nop(3))
    for r in range(32): P.emit(valu("v_mov_b32", f"v{V_OF + r}", 0))
    P.emit(salu("s_mov_b32", f"s{S_QFO}", 0))
    P.emit(salu("s_movk_i32", f"s{S_T}", 4096))

def qf_reload(P):
    L = []
    for s in range(4):
        for qt in range(P.nq):
            fr = s * 2 + qt
            so = S_QFO if fr < 4 else S_T
            L.append(tagged(bload(4, rs("v", V_QF + fr * 4, 4), f"v{V_QL}", rs("s", S_SRDQ, 4), f"s{so}", (fr % 4) * 1024, flags={0: "", 1: " nt", 2: " sc1"}[OPT.get("qld", 0)]), ("QF", 1)))
    L.append(salu("s_add_u32", f"s{S_QFO}", f"s{S_QFO}", 8192))
    L.append(salu("s_add_u32", f"s{S_T}", f"s{S_T}", 8192))
    return L

class Ctx:
    def __init__(self): self.slow = {}

def xlane_reduce(op, reg, tmp):
    L = []
    L.append(valu("v_mov_b32", f"v{tmp}", f"v{reg}"))
    L.append(nop(1))
    L.append(valu("v_permlane32_swap_b32", f"v{reg}", f"v{tmp}"))
    L.append(valu(op, f"v{reg}", f"v{reg}", f"v{tmp}"))
    L.append(valu("v_mov_b32", f"v{tmp}", f"v{reg}"))
    L.append(nop(1))
    L.append(valu("v_permlane16_swap_b32", f"v{reg}", f"v{tmp}"))
    L.append(valu(op, f"v{reg}", f"v{reg}", f"v{tmp}"))
    return L

def max8(S, dst, T):
    return [valu("v_max3_f32", f"v{dst}", f"v{S}", f"v{S+1}", f"v{S+2}"),
            valu("v_max3_f32", f"v{T}", f"v{S+3}", f"v{S+4}", f"v{S+5}"),
            valu("v_max3_f32", f"v{dst}", f"v{dst}", f"v{S+6}", f"v{S+7}"),
            valu("v_max_f32", f"v{dst}", f"v{dst}", f"v{T}")]

def exp_items(S, nq, P_after):
    T = V_TMP
    L = []
    n = 0
    for qt in range(nq):
        for e in range(4):
            a = S + qt * 8 + 2 * e
            t0, t1 = T[1 + (2 * n) % 4], T[1 + (2 * n + 1) % 4]; n += 1
            L.append(valu("v_exp_f32", f"v{t0}", f"v{a}"))
            L.append(valu("v_exp_f32", f"v{t1}", f"v{a + 1}"))
            if e == 0: L.append(valu("v_mov_b32", f"v{V_TS[qt]}", f"v{t0}"))
            else: L.append(valu("v_add_f32", f"v{V_TS[qt]}", f"v{V_TS[qt]}", f"v{t0}"))
            L.append(valu("v_add_f32", f"v{V_TS[qt]}", f"v{V_TS[qt]}", f"v{t1}"))
            cv = valu("v_cvt_pk_bf16_f32", f"v{V_P + 4 * qt + e}", f"v{t0}", f"v{t1}")
            if P_after is not None: cv.tag = ("after", P_after)
            L.append(cv)
    return L

def first_tile_items(nq):
    S = V_S[0]; T = V_TMP
    L = []
    for qt in range(nq):
        L += max8(S + 8 * qt, T[0], T[1])
        L += xlane_reduce("v_max_f32", T[0], T[1])
        for r in range(4): L.append(valu("v_sub_f32", f"v{V_NEGM + 4 * qt + r}", 0, f"v{T[0]}"))
        for r in range(8): L.append(valu("v_sub_f32", f"v{S + 8 * qt + r}", f"v{S + 8 * qt + r}", f"v{T[0]}"))
        L.append(valu("v_mov_b32", f"v{V_L[qt]}", 0))
    return L

def make_check(ctx, i, name, nq):
    uid = f"{name}{i}"
    def f(P):
        if i > 0:
            if nq == 2:
                P.emit(valu("v_max_f32", f"v{V_TMP[0]}", f"v{V_TS[0]}", f"v{V_TS[1]}"))
                P.out.pop()
                P.emit(valu("v_add_f32", f"v{V_TMP[0]}", f"v{V_TS[0]}", f"v{V_TS[1]}"))
                src_ = V_TMP[0]
            else: src_ = V_TS[0]
            P.emit(valu("v_cmp_nle_f32", rs("s", S_CMP, 2), f"v{src_}", f"s{S_THR}"))
            P.emit(salu("s_cmp_lg_u64", None, rs("s", S_CMP, 2), 0))
            if not OPT.get("noslow"): P.emit(raw(f"s_cbranch_scc1 L_tr_{uid}", "branch"))
            P.emit(label(f"L_back_{uid}"))
        for qt in range(nq): P.emit(valu("v_add_f32", f"v{V_L[qt]}", f"v{V_L[qt]}", f"v{V_TS[qt]}"))
        if i == 0: P.emit(nop(0))
    if i > 0: ctx.slow[uid] = i & 1
    return f

def slow_routine(par, nq, lab):
    S = V_S[par]; S2 = V_S[1 - par]; T = V_TMP
    B = [label(lab), nop(7), nop(7)]
    for qt in range(nq):
        B += max8(S + 8 * qt, T[0], T[1])
        B += xlane_reduce("v_max_f32", T[0], T[1])
        B.append(valu("v_max_f32", f"v{T[0]}", 0, f"v{T[0]}"))
        B.append(valu("v_sub_f32", f"v{T[1]}", 0, f"v{T[0]}"))
        B.append(valu("v_exp_f32", f"v{T[1]}", f"v{T[1]}"))
        for r in range(4): B.append(valu("v_sub_f32", f"v{V_NEGM + 4 * qt + r}", f"v{V_NEGM + 4 * qt + r}", f"v{T[0]}"))
        B.append(valu("v_mul_f32", f"v{V_L[qt]}", f"v{V_L[qt]}", f"v{T[1]}"))
        for s in range(4):
            for t in range(2):
                for r in range(4):
                    a = oacc(s, t, qt) + r
                    B.append(valu("v_mul_f32", f"v{a}", f"v{a}", f"v{T[1]}"))
        for r in range(8):
            B.append(valu("v_sub_f32", f"v{S + 8 * qt + r}", f"v{S + 8 * qt + r}", f"v{T[0]}"))
            B.append(valu("v_sub_f32", f"v{S2 + 8 * qt + r}", f"v{S2 + 8 * qt + r}", f"v{T[0]}"))
    B += exp_items(S, nq, None)
    B.append(nop(1))
    B.append(raw(f"s_setpc_b64 s[{S_RET}:{S_RET+1}]", "branch"))
    return B
def trampoline(uid, slowlab):
    return [label(f"L_tr_{uid}"),
            raw(f"s_getpc_b64 s[{S_RET}:{S_RET+1}]", "salu"),
            label(f"L_pc_{uid}"),
            raw(f"s_add_u32 s{S_RET}, s{S_RET}, L_back_{uid}-L_pc_{uid}", "salu"),
            raw(f"s_addc_u32 s{S_RET+1}, s{S_RET+1}, -1", "salu"),
            raw(f"s_branch {slowlab}", "branch")]

def qk_jobs(e, i, nq):
    jobs = []
    S = V_S[i & 1]
    slot = i % NKV
    for kt in range(2):
        for s in range(4):
            def mk(a, kt=kt, s=s):
                L = []
                for qt in range(nq):
                    d = rs("v", S + qt * 8 + kt * 4, 4)
                    c = d if s > 0 else ("0" if i == 0 else rs("v", V_NEGM + 4 * qt, 4))
                    L.append(mfma16(d, a, rs("v", V_QF + (s * 2 + qt) * 4, 4), c))
                return L
            jobs.append(Job(e, mk, [("b128", f"v{V_K}", slot * TSLOT + (s >> 1) * 1024 + (s & 1) * 64 + kt * 512)]))
    return jobs
def pv_jobs(e, i, nq):
    jobs = []
    slot = i % NKV
    for s in range(4):
        for t in range(2):
            base = VBASE + slot * TSLOT + (s >> 1) * 1024 + 8 * t
            addr = f"v{V_T[s & 1]}"
            def mk(a, s=s, t=t):
                L = []
                for qt in range(nq):
                    acc = rs("v", oacc(s, t, qt), 4)
                    L.append(mfma16(acc, a, rs("v", V_P + 4 * qt, 4), "0" if i == 0 else acc))
                return L
            jobs.append(Job(e, mk, [("tr", addr, base), ("tr", addr, base + 512)]))
    return jobs
def of_set(z, mode):
    if mode == "AO":
        if z <= 1: return 0
        if z >= 14: return 0
        return 0 if ((z - 2) % 4) < 2 else 1
    else:
        return 0
def o_jobs(e, z, nq, mode="AO"):
    jobs = []
    s, c0, c1 = o_tile_info(z)
    s = of_set(z, mode)
    for cg in range(c0, c1):
        for q4 in range(4):
            nt = 4 * cg + q4
            base = oslot(z) + (cg - c0) * OGRP + (q4 >> 1) * 64
            def mk(a, nt=nt):
                L = []
                for qt in range(nq):
                    acc = outacc(nt, qt, nq)
                    L.append(mfma16(acc, a, rs("v", V_OF + (s * 2 + qt) * 4, 4), acc))
                return L
            jobs.append(Job(e, mk, [("tr", f"v{V_W[q4 & 1]}", base), ("tr", f"v{V_W[q4 & 1]}", base + 512)]))
    return jobs

def phase_A(P, ctx, name):
    role, nq = P.role, P.nq
    jobs = []; eps = []
    e = Epoch(f"{name}pre", [("K", 0), ("QF", 0)]); eps.append(e)
    jobs += qk_jobs(e, 0, nq)
    starts = {}; qkfirst = {}; olast = {}
    for i in range(17):
        needs = []
        if i >= 1: needs.append(("V", i - 1))
        if i + 1 <= 15: needs.append(("K", i + 1))
        if i <= 15: needs.append(("O", i))
        e = Epoch(f"{name}{i}", needs); eps.append(e)
        starts[i] = len(jobs)
        if i >= 1:
            pj = pv_jobs(e, i - 1, nq)
            pj[0].pre.append(make_check(ctx, i - 1, name, nq))
            jobs += pj
        if i <= 15:
            jobs += o_jobs(e, i, nq)
            olast[i] = len(jobs) - 1
        if i + 1 <= 15:
            qkfirst[i + 1] = len(jobs)
            jobs += qk_jobs(e, i + 1, nq)
    starts[17] = len(jobs)
    for i in range(17):
        e = eps[i + 1]; f = starts[i]
        if i <= 15:
            if i == 0:
                e.fill.append(FillQ(first_tile_items(nq), f + 1, qkfirst[1] - 2))
                st = qkfirst[1] - 1
            else: st = f + 1
            pa = f + 7 if i >= 1 else None
            e.fill.append(FillQ(exp_items(V_S[i & 1], nq, pa), st, starts[i + 1] - 1))
        if i in (3, 7, 11):
            mv = [valu("v_mov_b32", f"v{V_OF + r}", f"v{V_OF + 8 + r}") for r in range(4 * nq if nq == 1 else 8)]
            e.fill.append(FillQ(mv, olast[i] + 1, starts[i + 1] + 6))
        if i in (5, 9, 13):
            mv = [valu("v_mov_b32", f"v{V_OF + 8 + r}", f"v{V_OF + 16 + r}") for r in range(4 * nq if nq == 1 else 8)]
            mv += [valu("v_mov_b32", f"v{V_OF + 16 + r}", f"v{V_OF + 24 + r}") for r in range(4 * nq if nq == 1 else 8)]
            e.fill.append(FillQ(mv, olast[i] + 1, starts[i + 1] + 6))
        d = []
        if i <= 15:
            d += dma_O(P, i + 3, ("O", i + 3))
            d += dma_KVs(P, "K", i + 4, ("K", i + 4))
            d += dma_KVs(P, "V", i + 2, ("V", i + 2))
        if i == 1: d += pf_wo()
        if i == 15: d += qf_reload(P)
        if d:
            late = OPT.get("late", 1)
            endg = starts[i + 1] - 9
            st0 = max(f - 8, endg - OPT.get("dmawin", 8)) if late else f - 8
            e.fill.insert(0, FillQ(d, st0, endg, isdma=True))
    P.run_stream(jobs, ahead=bool(OPT.get("aheadA", 0)))
    def rb(t):
        if isinstance(t, tuple) and t[0] in ("K", "V", "O") and t[1] >= 16: return (t[0], t[1] - 16)
        if isinstance(t, tuple) and t[0] == "QF" and t[1] == 1: return ("QF", 0)
        return ("old", 0)
    P.vq = [rb(t) for t in P.vq]
    P.issued = set(rb(t) for t in P.issued)
    P.ptr["K3"] -= 16 * 8192; P.ptr["V3"] -= 16 * 8192
    P.ptr["O"] -= 128 * 1152
    T = V_TMP
    P.emit(nop(3))
    for qt in range(nq):
        P.emit(xlane_reduce("v_add_f32", V_L[qt], T[0]))
        P.emit(valu("v_rcp_f32", f"v{T[1 + qt]}", f"v{V_L[qt]}"))
    P.emit(nop(3))
    for s in range(4):
        for qt in range(nq):
            for t in range(2):
                a = oacc(s, t, qt)
                for r in range(4):
                    P.emit(valu("v_mul_f32", f"v{a + r}", f"v{a + r}", f"v{T[1 + qt]}"))
                for h in range(2):
                    P.emit(valu("v_cvt_pk_bf16_f32", f"v{V_OF + (s * 2 + qt) * 4 + 2 * t + h}", f"v{a + 2 * h}", f"v{a + 2 * h + 1}"))
    P.emit(nop(1))

def _olast():
    s, c0, c1 = o_tile_info(15)
    return (32 * s) * 1152 + (c1 - 1) * 128
O_LAST = _olast()
def _o2():
    s, c0, c1 = o_tile_info(2)
    return (32 * s) * 1152 + (c1 - 1) * 128
O2_LAST = _o2()

def phase_O(P):
    role, nq = P.role, P.nq
    jobs = []
    for z in range(16):
        e = Epoch(f"O{z}", [("O", z)])
        f = len(jobs)
        jobs += o_jobs(e, z, nq, "O")
        if z % 4 == 0 and z > 0:
            mv = [valu("v_mov_b32", f"v{V_OF + r}", f"v{V_OF + 8 + r}") for r in range(24)]
            jobs[f].pre += mv + [nop(1)]
        e.fill.append(FillQ(dma_O(P, z + 3, ("O", z + 3)), f - 8, f + 2, isdma=True))
    P.run_stream(jobs)
    P.emit(nop(7))
    T = V_S[0]
    v = V_TMP[0]
    P.emit(valu("v_mbcnt_lo_u32_b32", f"v{v}", -1, 0))
    P.emit(valu("v_mbcnt_hi_u32_b32", f"v{v}", -1, f"v{v}"))
    P.emit(valu("v_lshlrev_b32", f"v{v}", 4, f"v{v}"))
    P.emit(salu("s_mul_i32", f"s{S_T}", f"s{S_W}", 2 * 18 * 1024))
    stf = {0: "", 1: " nt", 2: " sc1", 3: " sc0 sc1", 4: " sc0 sc1 nt"}[OPT.get("stnt", 2 if OPT.get("fuse", 1) else 0)]
    cnt = 0
    for qt in range(nq):
        for ntp in range(18):
            tb = T + 16 * (cnt % 2)
            srcs = []
            for h in range(2):
                a = outacc(2 * ntp + h, qt, nq)
                regs = parse_regs(a)
                if regs[0][0] == "a":
                    for r in range(4):
                        P.emit(valu("v_accvgpr_read_b32", f"v{tb + 4 * h + r}", f"a{regs[r][1]}"))
                    srcs.append(tb + 4 * h)
                else: srcs.append(regs[0][1])
            for h in range(2):
                for d in range(2):
                    P.emit(valu("v_cvt_pk_bf16_f32", f"v{tb + 8 + 2 * h + d}", f"v{srcs[h] + 2 * d}", f"v{srcs[h] + 2 * d + 1}"))
            off = cnt * 1024
            if off % 4096 == 0 and off > 0: P.emit(salu("s_add_u32", f"s{S_T}", f"s{S_T}", 4096))
            if not OPT.get("nost"): P.emit(bstore(4, rs("v", tb + 8, 4), f"v{v}", rs("s", S_SRDP, 4), f"s{S_T}", off % 4096, flags=stf))
            cnt += 1

def prologue_common():
    L = []
    A = L.append
    A(raw("s_cmp_ge_u32 s2, 256", "salu", wr=[("scc",0)]))
    A(raw("s_cbranch_scc1 L_end", "branch"))
    A(raw("s_load_dwordx16 s[4:19], s[0:1], 0", "smem"))
    A(raw("s_load_dwordx4 s[20:23], s[0:1], 64", "smem"))
    A(raw("s_load_dwordx2 s[24:25], s[0:1], 96", "smem"))
    A(valu("v_lshrrev_b32", "v1", 6, "v0"))
    A(valu("v_and_b32", f"v{V_TMP[0]}", 63, "v0"))
    A(valu("v_readfirstlane_b32", f"s{S_W}", "v1"))
    A(salu("s_and_b32", "s30", "s2", 7))
    A(salu("s_lshr_b32", "s31", "s2", 3))
    A(salu("s_lshr_b32", "s32", "s30", 2))
    A(salu("s_and_b32", "s33", "s30", 3))
    A(salu("s_lshl_b32", "s33", "s33", 1))
    A(salu("s_and_b32", "s34", "s31", 1))
    A(salu("s_add_u32", "s33", "s33", "s34"))
    A(salu("s_lshr_b32", "s34", "s31", 1))
    A(salu("s_mov_b32", f"s{S_R}", 0))
    A(raw("s_waitcnt lgkmcnt(0)", "wait"))
    A(salu("s_cmp_eq_u32", None, "s32", 0))
    for d, a, b in ((4, 4, 14), (6, 6, 16), (8, 8, 18), (10, 10, 20), (12, 12, 22)):
        A(salu("s_cselect_b32", f"s{d}", f"s{a}", f"s{b}"))
        A(salu("s_cselect_b32", f"s{d+1}", f"s{a+1}", f"s{b+1}"))
    return L

def patterns_common():
    L = []
    A = L.append
    A(salu("s_mov_b32", f"s{S_CSC}", hex(f32bits(SCALE))))
    A(salu("s_mov_b32", f"s{S_THR}", hex(f32bits(4096.0))))
    A(salu("s_mul_i32", "s35", "s2", PSZ))
    A(salu("s_add_u32", f"s{S_SRDP}", "s24", "s35"))
    A(salu("s_addc_u32", f"s{S_SRDP+1}", "s25", 0))
    A(salu("s_mov_b32", f"s{S_SRDP+2}", PSZ))
    A(salu("s_mov_b32", f"s{S_SRDP+3}", "0x00020000"))
    A(salu("s_mov_b32", f"s{S_CSC2}", hex(f32bits(SCALE))))
    A(salu("s_mov_b32", f"s{S_CSC2+1}", hex(f32bits(SCALE))))
    A(salu("s_lshl_b32", "s35", "s2", 2))
    A(salu("s_add_u32", "s35", "s35", f"s{S_W}"))
    A(salu("s_mul_i32", "s35", "s35", 3 * 8192))
    A(salu("s_add_u32", "s35", "s35", QOFF))
    A(salu("s_add_u32", f"s{S_SRDQ}", "s24", "s35"))
    A(salu("s_addc_u32", f"s{S_SRDQ+1}", "s25", 0))
    A(salu("s_movk_i32", f"s{S_SRDQ+2}", 3 * 8192))
    A(salu("s_mov_b32", f"s{S_SRDQ+3}", "0x00020000"))
    A(salu("s_mov_b32", f"s{S_QFO}", 0))
    A(salu("s_movk_i32", f"s{S_T}", 4096))
    l, g, t1, t2, t3 = V_TMP
    A(valu("v_lshrrev_b32", f"v{g}", 4, f"v{l}"))
    A(valu("v_bfe_u32", f"v{t1}", f"v{l}", 2, 2))
    A(valu("v_and_b32", f"v{t2}", 3, f"v{l}"))
    A(salu("s_movk_i32", "s35", 2056))
    A(valu("v_mul_lo_u32", f"v{V_T[0]}", "s35", f"v{g}"))
    A(valu("v_lshl_add_u32", f"v{V_T[0]}", f"v{t1}", 7, f"v{V_T[0]}"))
    A(valu("v_lshrrev_b32", f"v{t3}", 1, f"v{t1}"))
    A(valu("v_lshl_add_u32", f"v{V_T[0]}", f"v{t3}", 6, f"v{V_T[0]}"))
    A(valu("v_lshl_add_u32", f"v{V_T[0]}", f"v{t2}", 4, f"v{V_T[0]}"))
    A(valu("v_xor_b32", f"v{t3}", 1, f"v{t3}"))
    A(valu("v_mul_lo_u32", f"v{V_T[1]}", "s35", f"v{g}"))
    A(valu("v_lshl_add_u32", f"v{V_T[1]}", f"v{t1}", 7, f"v{V_T[1]}"))
    A(valu("v_lshl_add_u32", f"v{V_T[1]}", f"v{t3}", 6, f"v{V_T[1]}"))
    A(valu("v_lshl_add_u32", f"v{V_T[1]}", f"v{t2}", 4, f"v{V_T[1]}"))
    A(salu("s_movk_i32", "s35", 1088))
    A(valu("v_mul_lo_u32", f"v{V_W[0]}", "s35", f"v{g}"))
    A(valu("v_lshl_add_u32", f"v{V_W[0]}", f"v{t1}", 7, f"v{V_W[0]}"))
    A(valu("v_lshrrev_b32", f"v{t3}", 1, f"v{t1}"))
    A(valu("v_lshl_add_u32", f"v{V_W[0]}", f"v{t3}", 5, f"v{V_W[0]}"))
    A(valu("v_lshl_add_u32", f"v{V_W[0]}", f"v{t2}", 3, f"v{V_W[0]}"))
    A(valu("v_add_u32", f"v{V_W[0]}", WBASE, f"v{V_W[0]}"))
    A(valu("v_xor_b32", f"v{V_W[1]}", 32, f"v{V_W[0]}"))
    A(valu("v_lshlrev_b32", f"v{V_K}", 11, f"v{t1}"))
    A(valu("v_lshrrev_b32", f"v{t3}", 1, f"v{t1}"))
    A(valu("v_lshl_add_u32", f"v{V_K}", f"v{t3}", 6, f"v{V_K}"))
    A(valu("v_lshl_add_u32", f"v{V_K}", f"v{t2}", 7, f"v{V_K}"))
    A(valu("v_and_b32", f"v{t3}", 2, f"v{t2}"))
    A(valu("v_xor_b32", f"v{t3}", f"v{t3}", f"v{g}"))
    A(valu("v_lshl_add_u32", f"v{V_K}", f"v{t3}", 4, f"v{V_K}"))
    A(valu("v_add_u32", f"v{V_K}", KBASE, f"v{V_K}"))
    A(valu("v_and_b32", f"v{t2}", 15, f"v{l}"))
    A(valu("v_lshrrev_b32", f"v{t1}", 3, f"v{t2}"))
    A(salu("s_lshl_b32", "s36", f"s{S_W}", 2))
    A(valu("v_add_u32", f"v{t1}", "s36", f"v{t1}"))
    A(valu("v_mul_lo_u32", f"v{V_X}", "s35", f"v{t1}"))
    A(valu("v_and_b32", f"v{t3}", 7, f"v{t2}"))
    A(valu("v_lshl_add_u32", f"v{V_X}", f"v{t3}", 7, f"v{V_X}"))
    A(valu("v_and_b32", f"v{t3}", 2, f"v{t2}"))
    A(valu("v_xor_b32", f"v{t3}", f"v{t3}", f"v{g}"))
    A(valu("v_lshl_add_u32", f"v{V_X}", f"v{t3}", 4, f"v{V_X}"))
    A(valu("v_add_u32", f"v{V_X}", WBASE + XREG, f"v{V_X}"))
    return L

BIAS = 4096
def prologue_role(P):
    role = P.role
    A = P.emit
    l, g, t1, t2, t3 = V_TMP
    A(valu("v_lshrrev_b32", f"v{t1}", 3, f"v{l}"))
    A(valu("v_and_b32", f"v{t2}", 7, f"v{l}"))
    A(salu("s_lshl_b32", "s35", "s33", 10))
    A(salu("s_add_u32", f"s{S_SRD0}", "s10", "s35"))
    A(salu("s_addc_u32", f"s{S_SRD0+1}", "s11", 0))
    A(salu("s_sub_u32", f"s{S_SRD0}", f"s{S_SRD0}", BIAS))
    A(salu("s_subb_u32", f"s{S_SRD0+1}", f"s{S_SRD0+1}", 0))
    A(salu("s_sub_u32", f"s{S_SRD0+2}", 576 * 8192 + BIAS, "s35"))
    A(salu("s_mov_b32", f"s{S_SRD0+3}", "0x00020000"))
    A(salu("s_mul_i32", "s35", "s34", 129024))
    A(salu("s_add_u32", f"s{S_SRD1}", "s4", "s35"))
    A(salu("s_addc_u32", f"s{S_SRD1+1}", "s5", 0))
    A(salu("s_mov_b32", f"s{S_SRD1+2}", 129024))
    A(salu("s_mov_b32", f"s{S_SRD1+3}", "0x00020000"))
    A(valu("v_bfe_u32", f"v{t3}", f"v{t1}", 1, 1))
    A(valu("v_lshlrev_b32", f"v{g}", 2, f"v{t3}"))
    A(valu("v_xor_b32", f"v{g}", f"v{g}", f"v{t2}"))
    A(valu("v_lshlrev_b32", f"v{g}", 4, f"v{g}"))
    A(valu("v_lshlrev_b32", f"v{t3}", 1, f"v{t3}"))
    A(valu("v_xor_b32", f"v{t3}", f"v{t3}", f"v{t2}"))
    A(valu("v_lshlrev_b32", f"v{t3}", 4, f"v{t3}"))
    A(valu("v_lshl_add_u32", f"v{V_DQ}", f"v{t1}", 13, f"v{g}"))
    A(salu("s_lshl_b32", "s35", f"s{S_W}", 16))
    A(valu("v_add_u32", f"v{V_DQ}", "s35", f"v{V_DQ}"))
    A(salu("s_lshl_b32", "s35", f"s{S_W}", 11))
    A(valu("v_lshl_add_u32", f"v{V_DV}", f"v{t1}", 8, f"v{g}"))
    A(valu("v_add_u32", f"v{V_DV}", "s35", f"v{V_DV}"))
    A(valu("v_lshl_add_u32", f"v{V_DK}", f"v{t1}", 8, f"v{t3}"))
    A(valu("v_add_u32", f"v{V_DK}", "s35", f"v{V_DK}"))
    A(salu("s_movk_i32", "s35", 1152))
    A(valu("v_mul_lo_u32", f"v{g}", "s35", f"v{t1}"))
    A(valu("v_add_u32", f"v{g}", f"v{g}", f"v{t3}"))
    A(salu("s_mul_i32", "s35", f"s{S_W}", 36864))
    for k in range(4):
        A(salu("s_add_u32", "s36", "s35", k * (9216 - 1088)))
        A(valu("v_add_u32", f"v{V_DX[k]}", "s36", f"v{g}"))
    A(salu("s_mul_i32", "s35", f"s{S_W}", 9216))
    A(valu("v_add_u32", f"v{V_DX[0] + 8}", "s35", f"v{g}"))
    A(salu("s_mul_i32", f"s{S_MV}", f"s{S_W}", 2056))
    A(salu("s_lshl_b32", f"s{S_MK}", f"s{S_W}", 11))
    A(salu("s_lshr_b32", "s35", f"s{S_W}", 1))
    A(salu("s_lshl_b32", "s35", "s35", 6))
    A(salu("s_add_u32", f"s{S_MK}", f"s{S_MK}", "s35"))
    A(salu("s_mul_i32", f"s{S_MX}", f"s{S_W}", 4352))
    A(salu("s_mul_i32", f"s{S_MO}", f"s{S_W}", 1088))
    A(salu("s_movk_i32", f"s{S_A}", BIAS))
    A(salu("s_movk_i32", f"s{S_A2}", BIAS - 896))
    A(salu("s_mov_b32", f"s{S_B2}", 0))
    P.ptr["Q"] = 0; P.ptr["X"] = 0
    A(dma_X4(P, 0, ("X", 0)))
    for n_ in range(8): A(dma_WQ4(P, n_, ("Q", n_)))
    A(dma_X4(P, 1, ("X", 1)))
    if OPT["pf"]:
        A(salu("s_mul_i32", "s35", "s34", 288))
        A(salu("s_mul_i32", "s36", f"s{S_W}", 72))
        A(salu("s_add_u32", "s35", "s35", "s36"))
        for k in range(2):
            A(valu("v_min_u32", f"v{t3}", 63 if k == 0 else 7, f"v{l}"))
            A(valu("v_add_u32", f"v{t3}", "s35", f"v{t3}"))
            A(valu("v_lshrrev_b32", f"v{g}", 3, f"v{t3}"))
            A(valu("v_lshlrev_b32", f"v{g}", 13, f"v{g}"))
            A(valu("v_and_b32", f"v{t3}", 7, f"v{t3}"))
            A(valu("v_lshl_add_u32", f"v{g}", f"v{t3}", 7, f"v{g}"))
            A(valu("v_add_u32", f"v{g}", BIAS, f"v{g}"))
            A(tagged(bload(1, "v0", f"v{g}", rs("s", S_SRD0, 4), 0, 0, flags=" nt" if OPT.get("pfnt") else ""), ("pf", 0)))
            A(salu("s_add_u32", "s35", "s35", 64))
        A(salu("s_and_b32", "s35", "s33", 1))
        A(salu("s_lshl_b32", "s35", "s35", 2))
        A(salu("s_add_u32", "s35", "s35", f"s{S_W}"))
        A(salu("s_mul_i32", "s35", "s35", 126 * 128))
        A(valu("v_lshlrev_b32", f"v{g}", 7, f"v{l}"))
        for k in range(2):
            A(tagged(bload(1, "v0", f"v{g}", rs("s", S_SRD1, 4), "s35", 0, flags=" nt" if OPT.get("pfnt") else ""), ("pf", 1)))
            A(salu("s_add_u32", "s35", "s35", 62 * 128))
    if OPT.get("cpf", 1):
        P.cpf_id = getattr(P, "cpf_id", role)
        A(raw("s_getpc_b64 s[36:37]", "salu"))
        A(label(f"L_cpf_{role}"))
        A(raw(f"s_sub_u32 s36, s36, L_cpf_{role}-L_code_start", "salu"))
        A(raw("s_subb_u32 s37, s37, 0", "salu"))
        A(salu("s_lshr_b32", "s35", "s2", 3))
        A(salu("s_lshl_b32", "s35", "s35", 2))
        A(salu("s_add_u32", "s35", "s35", f"s{S_W}"))
        A(salu("s_and_b32", "s35", "s35", 15))
        A(salu("s_lshl_b32", "s35", "s35", 13))
        A(valu("v_lshlrev_b32", f"v{g}", 7, f"v{l}"))
        A(valu("v_add_u32", f"v{g}", "s35", f"v{g}"))
        A(raw(f"s_mov_b32 s35, L_code_end-L_code_start-4", "salu"))
        A(valu("v_min_u32", f"v{g}", "s35", f"v{g}"))
        A(tagged(I(f"global_load_dword v0, v{g}, s[36:37]", "vmem", [("v", g), ("s", 36), ("s", 37)], [("v", 0)]), ("pf", 2)))
    A(salu("s_lshl_b32", "s35", "s34", 5))
    A(salu("s_lshl_b32", "s36", "s33", 2))
    A(salu("s_add_u32", "s35", "s35", "s36"))
    A(salu("s_lshl_b32", "s36", "s35", 17))
    A(salu("s_lshr_b32", "s37", "s35", 15))
    for srd, p in ((S_SRDK, 6), (S_SRDV, 8)):
        A(salu("s_add_u32", f"s{srd}", f"s{p}", "s36"))
        A(salu("s_addc_u32", f"s{srd+1}", f"s{p+1}", "s37"))
        A(salu("s_sub_u32", f"s{srd}", f"s{srd}", BIAS))
        A(salu("s_subb_u32", f"s{srd+1}", f"s{srd+1}", 0))
        A(salu("s_mov_b32", f"s{srd+2}", 524288 + BIAS))
        A(salu("s_mov_b32", f"s{srd+3}", "0x00020000"))
    A(salu("s_movk_i32", f"s{S_KP}", BIAS)); A(salu("s_movk_i32", f"s{S_KP2}", BIAS - 896))
    A(salu("s_movk_i32", f"s{S_VP}", BIAS)); A(salu("s_movk_i32", f"s{S_VP2}", BIAS - 896))
    P.ptr["K3"] = 0; P.ptr["V3"] = 0
    if OPT.get("rot", 0):
        A(salu("s_lshr_b32", "s35", "s2", 3))
        A(salu("s_add_u32", "s35", "s35", "s2"))
        A(salu("s_add_u32", "s35", "s35", 15))
        A(salu("s_and_b32", "s35", "s35", 15))
        A(salu("s_lshl_b32", f"s{S_KT}", "s35", 13))
        A(salu("s_mov_b32", f"s{S_VT}", f"s{S_KT}"))
        A(salu("s_movk_i32", f"s{S_KH}", BIAS))
        A(salu("s_movk_i32", f"s{S_VH}", BIAS))
        P.ptr["K3"] = -8192; P.ptr["V3"] = -8192
    A(salu("s_mul_i32", "s35", "s33", 512 * 1152))
    A(salu("s_add_u32", f"s{S_SRD2}", "s12", "s35"))
    A(salu("s_addc_u32", f"s{S_SRD2+1}", "s13", 0))
    A(salu("s_mov_b32", f"s{S_SRD2+2}", 512 * 1152))
    A(salu("s_mov_b32", f"s{S_SRD2+3}", "0x00020000"))
    A(salu("s_mul_i32", "s35", "s34", 72))
    A(salu("s_mul_i32", "s36", f"s{S_W}", 18))
    A(salu("s_add_u32", "s35", "s35", "s36"))
    A(valu("v_min_u32", f"v{t3}", 17, f"v{l}"))
    A(valu("v_add_u32", f"v{t3}", "s35", f"v{t3}"))
    A(valu("v_lshlrev_b32", f"v{V_PFO}", 7, f"v{t3}"))
    A(salu("s_mov_b32", f"s{S_PFOO}", 0))
    A(salu("s_mov_b32", f"s{S_C}", (-147456) & 0xffffffff))
    P.ptr["O"] = 0
    A(valu("v_lshlrev_b32", f"v{V_QL}", 4, f"v{l}"))
    A(patterns_common())
    nacc = 256 if role == "C" else 128
    for r in range(nacc): A(valu("v_accvgpr_write_b32", f"a{r}", 0))

def build_role(role, ctx):
    P = Prog(role)
    segs = {}
    def cut(name):
        segs.setdefault(name, []).append(P.out); P.out = []
    prologue_role(P); cut("pro")
    phase_Q4(P); cut("Q")
    q4_finish(P)
    for t in [("QF", 0)]: P.issued.add(t)
    cut("F")
    for r in range(4):
        phase_A(P, ctx, f"{role}B"); cut("AO")
    phase_O(P); cut("O")
    return segs

fold_id = [0]
def norm(t):
    t = re.sub(r"vmcnt\(\d+\) ?", "", t)
    t = re.sub(r"(L_tr_|L_back_)\w+", r"\1X", t)
    return re.sub(r"(--- barrier )\w+", r"\1X", t)
def fold(seq, p):
    chunks = [[]]
    for ins in seq:
        if ins.kind == "comment" and ins.text.startswith("; --- barrier"): chunks.append([])
        chunks[-1].append(ins)
    keys = ["\n".join(norm(i.text) for i in c) for c in chunks]
    best = (0, 0); n = len(chunks)
    for a in range(n):
        k = 1
        while a + (k + 1) * p <= n and all(keys[a + k * p + r] == keys[a + r] for r in range(p)): k += 1
        if k >= 2 and k > best[1]: best = (a, k)
    a, k = best
    if k < 2:
        print("fold failed"); return seq
    out = []
    for c in chunks[:a]: out += c
    for r in range(p):
        for it in range(1, k):
            for x, y in zip(chunks[a + r], chunks[a + it * p + r]):
                if x.kind == "wait" and x.text != y.text:
                    va, la = parse_wait(x.text); vb, lb = parse_wait(y.text)
                    vs = [q for q in (va, vb) if q is not None]
                    x.text = wait(min(vs) if vs else None, la).text
    fold_id[0] += 1
    lab = f"L_loop{fold_id[0]}"
    out.append(salu("s_mov_b32", f"s{S_LOOP}", k))
    out.append(label(lab))
    for c in chunks[a:a + p]: out += c
    out.append(salu("s_sub_u32", f"s{S_LOOP}", f"s{S_LOOP}", 1))
    out.append(salu("s_cmp_lg_u32", None, f"s{S_LOOP}", 0))
    out.append(raw(f"s_cbranch_scc1 {lab}", "branch"))
    for c in chunks[a + k * p:]: out += c
    print(f"fold: {n} chunks -> loop start {a} x{k} (period {p})")
    return out

def parse_wait(t):
    vm = re.search(r"vmcnt\((\d+)\)", t); lg = re.search(r"lgkmcnt\((\d+)\)", t)
    return (int(vm.group(1)) if vm else None, int(lg.group(1)) if lg else None)
def merge_instances(insts, name):
    base = insts[0]
    for other in insts[1:]:
        assert len(other) == len(base), (name, len(other), len(base))
        for a, b in zip(base, other):
            if a.text != b.text:
                assert a.kind == "wait" and b.kind == "wait", (name, a.text, b.text)
                va, la = parse_wait(a.text); vb, lb = parse_wait(b.text)
                assert la == lb, (a.text, b.text)
                vs = [x for x in (va, vb) if x is not None]
                a.text = wait(min(vs), la).text
    return base

NRED = 32 * 7 * 18 * 64 // 256
def reduce_kernel():
    L = []
    A = L.append
    ldf = {0: "", 1: " nt", 2: " sc1", 3: " sc0 sc1"}[OPT.get("rdnt", 0)]
    RB = OPT.get("rblk", 256)
    A(f"s_cmp_ge_u32 s2, {NRED * 256 // RB}")
    A("s_cbranch_scc1 L_rend")
    A("s_load_dwordx2 s[4:5], s[0:1], 96")
    A("s_load_dwordx2 s[6:7], s[0:1], 80")
    A("v_lshrrev_b32 v1, 6, v0")
    A("v_and_b32 v3, 63, v0")
    A("v_readfirstlane_b32 s12, v1")
    A(f"s_mul_i32 s13, s2, {RB // 64}")
    A("s_add_u32 s13, s13, s12")
    A(f"s_mul_hi_u32 s8, s13, {(2**32 + 125) // 126}")
    A("s_mul_i32 s9, s8, 126")
    A("s_sub_u32 s9, s13, s9")
    A("s_lshr_b32 s10, s8, 4")
    A("s_and_b32 s11, s8, 15")
    A(f"s_mul_hi_u32 s14, s9, {(2**32 + 17) // 18}")
    A("s_mul_i32 s15, s14, 18")
    A("s_sub_u32 s15, s9, s15")
    A("v_lshlrev_b32 v2, 4, v3")
    A("s_lshl_b32 s27, s9, 10")
    A("v_add_u32 v2, s27, v2")
    A("v_and_b32 v4, 15, v3")
    A("v_lshrrev_b32 v5, 4, v3")
    A("s_waitcnt lgkmcnt(0)")
    A("s_mov_b32 s16, s4"); A("s_mov_b32 s17, s5"); A(f"s_mov_b32 s18, {256*PSZ}"); A("s_mov_b32 s19, 0x00020000")
    A("s_mov_b32 s20, s6"); A("s_mov_b32 s21, s7"); A(f"s_mov_b32 s22, {16*112*1152*2}"); A("s_mov_b32 s23, 0x00020000")
    A("s_lshl_b32 s26, s11, 4")
    A("s_lshl_b32 s25, s10, 2")
    A("s_add_u32 s26, s26, s25")
    for j in range(8):
        A(f"s_add_u32 s24, s26, {((j & 1) << 3) | (j >> 1)}")
        A(f"s_mul_i32 s24, s24, {PSZ}")
        A(f"buffer_load_dwordx4 v[{8+4*j}:{11+4*j}], v2, s[16:19], s24 offen{ldf}")
    A("s_mul_i32 s24, s11, 112")
    A("s_lshl_b32 s25, s14, 4")
    A("s_add_u32 s24, s24, s25")
    A("v_add_u32 v4, s24, v4")
    A("s_movk_i32 s25, 2304")
    A("v_mul_lo_u32 v4, s25, v4")
    A("s_mul_i32 s24, s10, 1152")
    A("s_lshl_b32 s25, s15, 6")
    A("s_add_u32 s24, s24, s25")
    A("v_lshl_add_u32 v4, v5, 3, v4")
    A("v_add_u32 v4, s24, v4")
    for j in range(8):
        A(f"s_waitcnt vmcnt({7-j})")
        for d in range(4):
            r = 8 + 4 * j + d
            if j == 0:
                A(f"v_lshlrev_b32 v{48+2*d}, 16, v{r}")
                A(f"v_and_b32 v{48+2*d+1}, 0xffff0000, v{r}")
            else:
                A(f"v_lshlrev_b32 v40, 16, v{r}")
                A(f"v_and_b32 v41, 0xffff0000, v{r}")
                A(f"v_add_f32 v{48+2*d}, v{48+2*d}, v40")
                A(f"v_add_f32 v{48+2*d+1}, v{48+2*d+1}, v41")
    for d in range(4):
        A(f"v_cvt_pk_bf16_f32 v{56+d}, v{48+2*d}, v{48+2*d+1}")
    osf = " nt" if OPT.get("ont") else ""
    A(f"buffer_store_dwordx2 v[56:57], v4, s[20:23], 0 offen{osf}")
    A(f"buffer_store_dwordx2 v[58:59], v4, s[20:23], 0 offen offset:32{osf}")
    A("L_rend:")
    A("s_endpgm")
    return "\n".join(L) + "\n"

def fused_tail():
    T = []
    A = lambda t: T.append(raw(t, "raw"))
    T.append(label("L_tail"))
    A("s_waitcnt vmcnt(0)")
    A("s_barrier")
    A("s_load_dwordx2 s[4:5], s[0:1], 88")
    A("s_load_dwordx2 s[6:7], s[0:1], 80")
    A("v_mbcnt_lo_u32_b32 v1, -1, 0")
    A("v_mbcnt_hi_u32_b32 v1, -1, v1")
    A("s_lshl_b32 s12, s32, 4")
    A("s_add_u32 s12, s12, s34")
    A("s_lshl_b32 s12, s12, 2")
    A("s_waitcnt lgkmcnt(0)")
    A("s_mov_b32 s8, s4"); A("s_mov_b32 s9, s5"); A("s_movk_i32 s10, 256"); A("s_mov_b32 s11, 0x00020000")
    A(f"s_cmp_lg_u32 s{S_W}, 0")
    A("s_cbranch_scc1 L_tail_wait")
    A("v_mov_b32 v2, 1")
    A("v_mov_b32 v3, 0")
    A("v_cmp_eq_u32 vcc, 0, v1")
    A("s_and_saveexec_b64 s[14:15], vcc")
    A("buffer_atomic_add v2, v3, s[8:11], s12 offen")
    A("s_mov_b64 exec, s[14:15]")
    A("s_waitcnt vmcnt(0)")
    A("s_mov_b32 s13, 0")
    T.append(label("L_poll"))
    A("buffer_load_dword v2, v3, s[8:11], s12 offen sc1")
    A("s_waitcnt vmcnt(0)")
    A("v_readfirstlane_b32 s16, v2")
    A("s_add_u32 s13, s13, 1")
    A("s_cmp_ge_u32 s16, 8")
    A("s_cbranch_scc1 L_tail_wait")
    A("s_sleep 1")
    A("s_cmp_lt_u32 s13, 0x400000")
    A("s_cbranch_scc1 L_poll")
    T.append(label("L_tail_wait"))
    A("s_barrier")
    T += pstamp(True)
    A("s_mov_b32 s16, s24"); A("s_mov_b32 s17, s25"); A(f"s_mov_b32 s18, {256*PSZ}"); A("s_mov_b32 s19, 0x00020000")
    A("s_mov_b32 s20, s6"); A("s_mov_b32 s21, s7"); A(f"s_mov_b32 s22, {16*112*1152*2}"); A("s_mov_b32 s23, 0x00020000")
    A("v_lshlrev_b32 v2, 4, v1")
    A("v_and_b32 v4, 15, v1")
    A("v_lshrrev_b32 v5, 4, v1")
    A("s_lshl_b32 s26, s33, 4")
    A(f"s_lshl_b32 s27, s{S_W}, 2")
    A("s_add_u32 s26, s26, s27")
    A("s_lshl_b32 s28, s34, 4")
    A("s_lshl_b32 s29, s32, 2")
    A("s_add_u32 s28, s28, s29")
    for k in range(4):
        for p in range(8):
            A(f"s_add_u32 s30, s28, {((p & 1) << 3) | (p >> 1)}")
            A(f"s_mul_i32 s30, s30, {PSZ}")
            A(f"s_add_u32 s31, s26, {k}")
            A("s_lshl_b32 s31, s31, 10")
            A("s_add_u32 s30, s30, s31")
            r = 16 + (k * 8 + p) * 4
            A(f"buffer_load_dwordx4 v[{r}:{r+3}], v2, s[16:19], s30 offen sc1")
    for k in range(4):
        A(f"s_add_u32 s31, s26, {k}")
        A(f"s_mul_hi_u32 s30, s31, {(2**32 + 17) // 18}")
        A("s_mul_i32 s29, s30, 18")
        A("s_sub_u32 s29, s31, s29")
        A("s_mul_i32 s27, s34, 112")
        A("s_lshl_b32 s30, s30, 4")
        A("s_add_u32 s27, s27, s30")
        A("v_add_u32 v6, s27, v4")
        A("s_movk_i32 s27, 2304")
        A("v_mul_lo_u32 v6, s27, v6")
        A("s_mul_i32 s27, s32, 1152")
        A("s_lshl_b32 s29, s29, 6")
        A("s_add_u32 s27, s27, s29")
        A("v_lshl_add_u32 v6, v5, 3, v6")
        A("v_add_u32 v6, s27, v6")
        for p in range(8):
            A(f"s_waitcnt vmcnt({min(63, (3 - k) * 8 + (7 - p) + 2 * 0)})" if False else f"s_waitcnt vmcnt({(3 - k) * 8 + (7 - p) + 2 * k})")
            for d in range(4):
                r = 16 + (k * 8 + p) * 4 + d
                if p == 0:
                    A(f"v_lshlrev_b32 v{8+2*d}, 16, v{r}")
                    A(f"v_and_b32 v{8+2*d+1}, 0xffff0000, v{r}")
                else:
                    A(f"v_lshlrev_b32 v3, 16, v{r}")
                    A(f"v_and_b32 v7, 0xffff0000, v{r}")
                    A(f"v_add_f32 v{8+2*d}, v{8+2*d}, v3")
                    A(f"v_add_f32 v{8+2*d+1}, v{8+2*d+1}, v7")
        for d in range(4):
            A(f"v_cvt_pk_bf16_f32 v{150+4*k+d}, v{8+2*d}, v{8+2*d+1}")
        A("s_cmp_ge_u32 s31, 126")
        A(f"s_cselect_b32 s27, 0x7f000000, 0")
        A(f"buffer_store_dwordx2 v[{150+4*k}:{151+4*k}], v6, s[20:23], s27 offen")
        A(f"buffer_store_dwordx2 v[{152+4*k}:{153+4*k}], v6, s[20:23], s27 offen offset:32")
    if DEBUG == "T":
        A("s_waitcnt vmcnt(0)")
        T += pstamp(True)
    A("s_endpgm")
    return T

def dbg_dump(base, n):
    L = []
    L.append(raw("s_waitcnt vmcnt(0) lgkmcnt(0)", "wait"))
    L.append(nop(15))
    L.append(salu("s_lshl_b32", "s88", "s2", 2))
    L.append(salu("s_add_u32", "s88", "s88", f"s{S_W}"))
    L.append(salu("s_lshl_b32", "s88", "s88", 14))
    L.append(salu("s_add_u32", "s88", "s88", 64 << 20))
    L.append(salu("s_mov_b32", "s84", "s24")); L.append(salu("s_mov_b32", "s85", "s25"))
    L.append(salu("s_mov_b32", "s86", 128 << 20)); L.append(salu("s_mov_b32", "s87", "0x00020000"))
    L.append(valu("v_mbcnt_lo_u32_b32", "v15", -1, 0))
    L.append(valu("v_mbcnt_hi_u32_b32", "v15", -1, "v15"))
    L.append(valu("v_lshlrev_b32", "v15", 2, "v15"))
    for r in range(n):
        if r and r % 16 == 0: L.append(salu("s_add_u32", "s88", "s88", 4096))
        L.append(bstore(1, f"v{base + r}", "v15", "s[84:87]", "s88", (r % 16) * 256))
    L.append(raw("s_waitcnt vmcnt(0)", "wait"))
    L.append(raw("s_endpgm", "end"))
    return L

def stamp_init():
    L = []
    L.append(salu("s_lshl_b32", "s88", "s2", 2))
    L.append(salu("s_add_u32", "s88", "s88", f"s{S_W}"))
    L.append(salu("s_lshl_b32", "s88", "s88", 11 if DEBUG == "G" else (10 if DEBUG == "F" else 8)))
    L.append(salu("s_add_u32", "s88", "s88", 100 << 20))
    L.append(salu("s_mov_b32", "s84", "s24")); L.append(salu("s_mov_b32", "s85", "s25"))
    L.append(salu("s_mov_b32", "s86", 128 << 20)); L.append(salu("s_mov_b32", "s87", "0x00020000"))
    return L
def pstamp(real=False):
    return [] if DEBUG == "G" else stamp(real)
def stamp(real=False):
    if DEBUG not in ("T", "F", "G"): return []
    L = []
    L.append(raw("s_memrealtime s[96:97]" if real else "s_memtime s[96:97]", "smem"))
    L.append(raw("s_waitcnt lgkmcnt(0)", "wait"))
    L.append(valu("v_mov_b32", "v18", "s96"))
    L.append(valu("v_mov_b32", "v19", 0))
    L.append(bstore(1, "v18", "v19", "s[84:87]", "s88", 0))
    L.append(salu("s_add_u32", "s88", "s88", 4))
    return L

def main(outpath):
    ctx = Ctx()
    FUSE = OPT.get("fuse", 1)
    from gcommon import KN
    name = KN if FUSE else MAIN
    if FUSE: txt = header([(KN, (256, 1, 1), (256, 1, 1), LDS_TOTAL)])
    else: txt = header([(MAIN, (256, 1, 1), (256, 1, 1), LDS_TOTAL), (RED, (NRED * 256 // OPT.get("rblk", 256), 1, 1), (OPT.get("rblk", 256), 1, 1), 0)])
    txt += kstart(name)
    body = [label("L_code_start")]
    pro = prologue_common()
    body += pro
    body.append(raw(f"s_cmp_ge_u32 s{S_W}, 3", "salu"))
    body.append(raw("s_cbranch_scc1 L_role_W_far", "branch"))
    allprobs = []
    for role in ("C", "W"):
        segs = build_role(role, ctx)
        nq = 2 if role == "C" else 1
        Q = segs["Q"][0]
        AO = merge_instances(segs["AO"], "AO")
        seq = []
        if role == "W": seq.append(label("L_role_W"))
        if DEBUG in ("T", "F", "G"): seq += stamp_init() + pstamp(True) + pstamp()
        seq += segs["pro"][0]
        seq += pstamp()
        seq += fold(Q, OPT.get("qper", 8)) if DEBUG not in ("F", "G") else Q
        seq += pstamp()
        seq += segs["F"][0]
        seq += pstamp()
        if DEBUG == "Q": seq += dbg_dump(V_QF, 32)
        seq.append(label(f"L_head_{role}"))
        seq += fold(AO, 4) if DEBUG not in ("F", "G") else AO
        seq += pstamp()
        if DEBUG == "O": seq += dbg_dump(V_OF, 32)
        seq.append(raw(f"s_add_u32 s{S_R}, s{S_R}, 1", "salu"))
        seq.append(raw(f"s_cmp_lt_u32 s{S_R}, 4", "salu"))
        seq.append(raw(f"s_cbranch_scc1 L_head_{role}", "branch"))
        seq += fold(segs["O"][0], 4) if DEBUG not in ("F", "G") else segs["O"][0]
        seq += pstamp()
        seq.append(raw("s_waitcnt vmcnt(0)", "wait"))
        seq += pstamp() + pstamp(True)
        if FUSE: seq.append(raw("s_branch L_tail", "branch"))
        else: seq.append(raw("s_endpgm", "end"))
        used = set(re.findall(r"s_cbranch_scc1 L_tr_(\w+)", "\n".join(i.text for i in seq)))
        for uid, par in ctx.slow.items():
            if uid in used: seq += trampoline(uid, f"L_slow_{role}{par}")
        for par in (0, 1):
            B = slow_routine(par, nq, f"L_slow_{role}{par}")
            allprobs += check_hazards(B, f"slow{role}{par}")
            seq += B
        lin = pro + segs["pro"][0] + Q + segs["F"][0] + AO + AO + segs["O"][0]
        allprobs += check_hazards(lin, role)
        if role == "C":
            body.append(raw("s_branch L_role_C", "branch"))
            body.append(label("L_role_W_far"))
            body.append(raw("s_getpc_b64 s[30:31]", "salu"))
            body.append(label("L_pcw"))
            body.append(raw("s_add_u32 s30, s30, L_role_W-L_pcw", "salu"))
            body.append(raw("s_addc_u32 s31, s31, 0", "salu"))
            body.append(raw("s_setpc_b64 s[30:31]", "branch"))
            body.append(label("L_end"))
            body.append(raw("s_endpgm", "end"))
            body.append(label("L_role_C"))
        body += seq
        if role == "C" and FUSE: body += fused_tail()
    body.append(label("L_code_end"))
    body.append(raw("s_endpgm", "end"))
    txt += "\n".join(i.text for i in body) + "\n"
    if not FUSE: txt += kstart(RED) + reduce_kernel()
    txt += kdesc(name, 512, sgpr=100, accum=256)
    if not FUSE: txt += kdesc(RED, 64, sgpr=40)
    open(outpath, "w").write(txt)
    for p in allprobs[:40]: print("HAZARD", p)
    print("instructions:", sum(1 for i in body if i.kind not in ("label", "comment")), "bytes of text", len(txt))

if __name__ == "__main__":
    if len(sys.argv) > 2: DEBUG = sys.argv[2]
    for a in sys.argv[3:]:
        k, v = a.split("="); OPT[k] = int(v)
    main(sys.argv[1] if len(sys.argv) > 1 else "k8.s")
```
